```python
import torch

def _softmax(x, axis=-1):
    return torch.softmax(x, dim=axis)
def _gelu(x):
    return torch.nn.functional.gelu(x, approximate="tanh")
def _silu(x):
    return torch.nn.functional.silu(x)
def _sigmoid(x):
    return torch.sigmoid(x)
def _layernorm(x, axis=-1, eps=1e-5):
    m = x.mean(dim=axis, keepdim=True)
    v = x.var(dim=axis, keepdim=True, unbiased=False)
    return (x - m) / torch.sqrt(v + eps)
def _scatter_add(tgt, idx, src, axis=0):
    return tgt.clone().index_add_(axis, idx, src)
def _segment_sum(src, seg, n):
    out = torch.zeros((n,) + src.shape[1:], dtype=src.dtype)
    return out.index_add_(0, seg, src)
def _pad(x, pw):
    flat = tuple(v for pair in reversed(pw) for v in pair)
    return torch.nn.functional.pad(x, flat)

kernel_name = 'concat_heads__ssm_conv_h3__compressed_kv_cla__prompt'

def setup_inputs():

    _w = (lambda a: (lambda t: t.to(torch.bfloat16) if t.is_floating_point() else t)(torch.as_tensor(a)))
    def _A_setup():
        B, S, D = 1, 2048, 448
        ks = 4
        return {
            "q": _w((lambda *s: torch.randn(*s, dtype=torch.bfloat16) * 0.05)(B, S, D)),
            "k": _w((lambda *s: torch.randn(*s, dtype=torch.bfloat16) * 0.1)(B, S, D)),
            "v": _w((lambda *s: torch.randn(*s, dtype=torch.bfloat16) * 0.1)(B, S, D)),
            "shift_k": _w((lambda *s: torch.randn(*s, dtype=torch.bfloat16) * 0.1)(D, ks) * 0.5),
            "ssm_k": _w((lambda *s: torch.randn(*s, dtype=torch.bfloat16) * 0.1)(D, S) * (1.0 / S ** 0.5)),
            "ssm_D": _w((lambda *s: torch.randn(*s, dtype=torch.bfloat16) * 0.1)(D)),
        }
    _A_in = _A_setup()

    def _B_setup():
        B, H, Sq, Sk, D, M = 1, 16, 2048, 2048, 256, 448
        Dc = 4 * D
        return {
            "x": _w((lambda *s: torch.randn(*s, dtype=torch.bfloat16) * 3.2)(B, Sq, M)),
            "c_kv": _w((lambda *s: torch.randn(*s, dtype=torch.bfloat16) * 0.05)(B, Sk, Dc)),
            "w_q": _w((lambda *s: torch.randn(*s, dtype=torch.bfloat16) * 3.2)(M, H, D) * (M ** -0.5)),
            "w_uk": _w((lambda *s: torch.randn(*s, dtype=torch.bfloat16) * 3.2)(Dc, H, D) * (Dc ** -0.5)),
            "w_uv": _w((lambda *s: torch.randn(*s, dtype=torch.bfloat16) * 0.05)(Dc, H, D) * (Dc ** -0.5)),
            "w_o": _w((lambda *s: torch.randn(*s, dtype=torch.bfloat16) * 0.05)(H, D, M) * ((H * D) ** -0.5)),
        }
    _B_in = _B_setup()

    return {
        "A_q": _A_in["q"],
        "A_k": _A_in["k"],
        "A_v": _A_in["v"],
        "A_shift_k": _A_in["shift_k"],
        "A_ssm_k": _A_in["ssm_k"],
        "A_ssm_D": _A_in["ssm_D"],
        "B_x": _B_in["x"],
        "B_c_kv": _B_in["c_kv"],
        "B_w_q": _B_in["w_q"],
        "B_w_uk": _B_in["w_uk"],
        "B_w_uv": _B_in["w_uv"],
        "B_w_o": _B_in["w_o"],
    }

def reference(A_q, A_k, A_v, A_shift_k, A_ssm_k, A_ssm_D, B_x, B_c_kv, B_w_q, B_w_uk, B_w_uv, B_w_o):
    def _A_ref(q, k, v, shift_k, ssm_k, ssm_D):
        B, S, D = q.shape
        ks = shift_k.shape[-1]
        k_pad = _pad(k, ((0, 0), (ks - 1, 0), (0, 0)))
        k_shift = torch.zeros_like(k)
        for t in range(ks):
            k_shift = k_shift + k_pad[:, t:t + S, :] * shift_k[:, ks - 1 - t][None, None, :]
        kv = k_shift * v
        L = 2 * S
        kv_pad = _pad(kv, ((0, 0), (0, S), (0, 0)))
        kf_pad = _pad(ssm_k, ((0, 0), (0, S)))
        kv_f = (lambda x, axes=(-2,-1): torch.fft.rfft2(x.float(), dim=axes))(kv_pad[:, None, :, :], axes=(1, 2))
        kf_f = (lambda x, axes=(-2,-1): torch.fft.rfft2(x.float(), dim=axes))(kf_pad[:, None, :], axes=(1, 2))
        kf_f = (lambda x, *d: x.permute(*d))(kf_f, 1, 2, 0)
        y_f = kv_f * kf_f[None, :, :, :]
        y = (lambda x, s, axes=(-2,-1): torch.fft.irfft2(x, s=s, dim=axes).to(torch.bfloat16))(y_f, (1, L), axes=(1, 2))[:, 0, :S, :]
        y = y + kv * ssm_D[None, None, :]
        return q * y

    def _B_ref(x, c_kv, w_q, w_uk, w_uv, w_o):
        B, Sq, M = x.shape[0], x.shape[1], x.shape[2]
        Sk = c_kv.shape[1]
        H, D = w_q.shape[1], w_q.shape[2]
        q = torch.einsum("bqm,mhd->bhqd", x, w_q)
        k = torch.einsum("bkc,chd->bhkd", c_kv, w_uk)
        v = torch.einsum("bkc,chd->bhkd", c_kv, w_uv)
        scores = torch.einsum("bhqd,bhkd->bhqk", q, k) * (D ** -0.5)
        off = Sk - Sq
        qi = torch.arange(Sq)[:, None]
        kj = torch.arange(Sk)[None, :]
        cmask = kj <= (qi + off)
        scores = torch.where(cmask[None, None], scores, -1e9)
        p = _softmax(scores, axis=-1)
        ctx = torch.einsum("bhqk,bhkd->bhqd", p, v)
        return torch.einsum("bhqd,hdm->bqm", ctx, w_o)

    a = _A_ref(A_q, A_k, A_v, A_shift_k, A_ssm_k, A_ssm_D)
    b = _B_ref(B_x, B_c_kv, B_w_q, B_w_uk, B_w_uv, B_w_o)
    return torch.concatenate([a, b], axis=-1)
```

```python
import re

class Asm:
    def __init__(self):
        self.L = []
    def __call__(self, *lines):
        for s in lines:
            for t in s.split("\n"):
                t = t.strip()
                if t: self.L.append(t)
    def text(self):
        out = []
        for t in self.L:
            if t.endswith(":") or t.startswith(".") or t.startswith(";"): out.append(t)
            else: out.append("    " + t)
        return "\n".join(out) + "\n"

def R(kind, lo, n=1):
    return f"{kind}{lo}" if n == 1 else f"{kind}[{lo}:{lo+n-1}]"

class Reg:
    def __init__(self, kind, lo, n): self.kind, self.lo, self.n = kind, lo, n
    def __str__(self): return R(self.kind, self.lo, self.n)
    def __getitem__(self, i):
        if isinstance(i, slice):
            a, b = i.start or 0, self.n if i.stop is None else i.stop
            return Reg(self.kind, self.lo + a, b - a)
        assert 0 <= i < self.n
        return Reg(self.kind, self.lo + i, 1)
    def set(self): return {(self.kind, self.lo + i) for i in range(self.n)}

def mfma(d, a, b, c):
    return f"v_mfma_f32_16x16x32_bf16 {d}, {a}, {b}, {c}"

class Body:
    COST = dict(d=1, v=1, e=2, g=2)
    def __init__(self, n, cyclic=True):
        self.n = n; self.cyclic = cyclic
        self.m = [None] * n
        self.pre = [[] for _ in range(n)]
        self.vec = [[] for _ in range(n)]
        self.post = [[] for _ in range(n)]
    def set_mfma(self, i, d, a, b, c):
        src = a.set() | b.set() | (c.set() if isinstance(c, Reg) else set())
        self.m[i] = (mfma(d, a, b, c), src, d.set())
    def vcost(self, i): return sum(self.COST[k] for k, *_ in self.vec[i])
    def has(self, i, kind): return any(k == kind for k, *_ in self.vec[i])
    def fits(self, i, kind):
        i %= self.n
        used = self.vcost(i) + max(0, len(self.pre[i]) - 1) + len(self.post[i])
        if kind == 's':
            if self.has(i, 'g'): return False
            return len(self.pre[i]) == 0 or used < 2
        if kind == 'd': return not self.has(i, 'd') and used + 1 <= 2
        if kind == 'g': return used == 0 and all(t.startswith("s_waitcnt") for t in self.pre[i])
        return used + self.COST[kind] <= 2
    def put(self, i, kind, text, dst=None, src=None):
        i %= self.n
        if kind == 's': self.pre[i].append(text); return i
        if kind == 'S': self.post[i].append(text); return i
        item = (kind, text, dst.set() if isinstance(dst, Reg) else (dst or set()), src.set() if isinstance(src, Reg) else (src or set()))
        if kind == 'd': self.vec[i].insert(0, item)
        else: self.vec[i].append(item)
        return i
    def place(self, lo, hi, kind, text, dst=None, src=None, back=False):
        rng = range(hi - 1, lo - 1, -1) if back else range(lo, hi)
        for i in rng:
            if self.fits(i, kind):
                self.put(i, kind, text, dst, src); return i
        raise RuntimeError(f"no slot for {text} in [{lo},{hi})")
    def auto_lgkm(self, look=1, maxcnt=8):
        n = self.n
        waits = {}
        issued = []
        done = 0
        rounds = 3 if self.cyclic else 1
        for r in range(rounds):
            for i in range(n):
                for t in self.pre[i]:
                    mm = re.search(r"lgkmcnt\((\d+)\)", t)
                    if mm: done = max(done, len(issued) - int(mm.group(1)))
                need = -1
                def youngest(src):
                    for k in range(len(issued) - 1, done - 1, -1):
                        if issued[k] & src: return k
                    return -1
                j = i + 1
                if j < n or self.cyclic:
                    need = youngest(self.m[j % n][1])
                    if need >= 0:
                        for q in range(2, look + 1):
                            if i + q < n or self.cyclic:
                                need = max(need, youngest(self.m[(i + q) % n][1]))
                if need >= 0:
                    cnt = min(len(issued) - 1 - need, maxcnt)
                    need = len(issued) - 1 - cnt
                    if r == rounds - 1 or not self.cyclic: waits[i] = min(cnt, waits.get(i, 99))
                    elif r >= 1: waits[i] = min(cnt, waits.get(i, 99))
                    done = need + 1
                for k, t, dst, src in self.vec[i]:
                    if k == 'd':
                        if (j < n or self.cyclic) and dst & self.m[j % n][1]: raise RuntimeError("load right before use")
                        issued.append(dst)
        for i, c in waits.items():
            merged = False
            for k, t in enumerate(self.pre[i]):
                if t.startswith("s_waitcnt") and "lgkmcnt" not in t:
                    self.pre[i][k] = t + f" lgkmcnt({c})"; merged = True; break
            if not merged: self.pre[i].insert(0, f"s_waitcnt lgkmcnt({c})")
        return waits
    def lines(self, lo=0, hi=None):
        out = []
        for i in range(lo, self.n if hi is None else hi):
            out.append(self.m[i][0])
            out += self.pre[i]
            out += [t for k, t, *_ in self.vec[i]]
            out += self.post[i]
        return out
    def report(self):
        over = []
        for i in range(self.n):
            used = self.vcost(i) + max(0, len(self.pre[i]) - 1) + len(self.post[i])
            if used > 2 or (self.has(i, 'g') and any(not t.startswith("s_waitcnt") for t in self.pre[i])): over.append((i, used))
        return over
    def pattern(self):
        return " ".join("".join('w' if t.startswith("s_waitcnt") else 'b' if t.startswith("s_barrier") else 's' for t in self.pre[i]) + "".join(k for k, *_ in self.vec[i]) + "S" * len(self.post[i]) or "." for i in range(self.n))

def kernel_header(a, name):
    a(f".globl {name}", ".p2align 8", f".type {name},@function", f"{name}:")

def kernel_desc(name, vgpr=512, accum=256, sgpr=102):
    return "\n".join([".p2align 6", f".amdhsa_kernel {name}", f"  .amdhsa_next_free_vgpr {vgpr}", f"  .amdhsa_next_free_sgpr {sgpr}",
        f"  .amdhsa_accum_offset {accum}", "  .amdhsa_group_segment_fixed_size 0", "  .amdhsa_kernarg_size 120",
        "  .amdhsa_user_sgpr_count 2", "  .amdhsa_user_sgpr_kernarg_segment_ptr 1", "  .amdhsa_system_sgpr_workgroup_id_x 1",
        ".end_amdhsa_kernel"]) + "\n"
```

```python
import sys, os, argparse
sys.path.insert(0, os.path.dirname(os.path.abspath(__file__)))
from common import *
NAME = "concat_heads__ssm_conv_h3__compressed_kv_cla__prompt"
def build(kernels, diag=False, **opt):
    ref = open(os.path.join(os.path.dirname(os.path.abspath(__file__)), "..", NAME + ".s.ref")).read().split("\n")
    head = [l for l in ref if l.startswith(";") and "@launch" not in l and "Override launch" not in l and "grid=ceil" not in l]
    a = Asm(); descs = []
    for lab, fn, grid, lds, kw in kernels:
        descs.append(fn(a, lab, diag=diag, **kw))
    out = "\n".join(head) + "\n; Generated by gen/build.py (hand-written generator scripts)\n"
    for lab, fn, grid, lds, kw in kernels:
        blk = kw.get("threads", 256)
        out += f"; @launch kernel={lab} grid=({grid},1,1) block=({blk},1,1) lds={lds}\n"
    out += '.amdgcn_target "amdgcn-amd-amdhsa--gfx950"\n.text\n' + a.text() + '.section .rodata,"a"\n' + "".join(descs)
    return out
if __name__ == "__main__":
    from k1 import k1
    s = build([("k1_kernel", k1, 256, 131072, {})], diag=True)
    open("k1.s", "w").write(s)
```

```python
from asmlib import *
MB = 1 << 20
WS_K, WS_V, WS_Q, WS_CTX = 0, 16 * MB, 32 * MB, 48 * MB
WS_PO = 64 * MB
WS_PL = 80 * MB
WS_FLAG = 81 * MB
WS_U, WS_Y = 82 * MB, 86 * MB
WS_STAMP = 100 * MB
WS_PP = 112 * MB
WS_BYTES = 268435456
KA = dict(Aq=0, Ak=8, Av=16, Ash=24, Assm=32, AD=40, x=48, c=56, wq=64, wuk=72, wuv=80, wo=88, out=96, dbg=104, ws=112)
LOG2E = 1.4426950408889634

class Stamps:
    def __init__(self, on, kidx): self.on, self.k, self.n = on, kidx, 0
    def mark(self, a):
        if not self.on: return
        i = self.n; self.n += 1
        assert i < 8
        a(f"s_memrealtime s[{64+4*i}:{65+4*i}]", f"s_memtime s[{66+4*i}:{67+4*i}]", "s_waitcnt lgkmcnt(0)")
    def store(self, a, srd, wave_sgpr, tmp=(2, 4)):
        if not self.on: return
        va, vd = tmp
        a(f"s_lshl_b32 s96, s2, 2", f"s_add_u32 s96, s96, {wave_sgpr}", "s_lshl_b32 s96, s96, 6",
          f"s_add_u32 s96, s96, {WS_STAMP + self.k * 0x40000}", f"v_mov_b32 v{va}, s96")
        for i in range(self.n):
            a(f"v_mov_b32 v{vd}, s{64+4*i}", f"v_mov_b32 v{vd+1}, s{66+4*i}",
              f"buffer_store_dwordx2 v[{vd}:{vd+1}], v{va}, {srd}, 0 offen offset:{8*i}", "s_nop 1")

def srd(a, d, base, nbytes):
    a(f"s_mov_b32 s{d}, s{base}", f"s_mov_b32 s{d+1}, s{base+1}", f"s_mov_b32 s{d+2}, {nbytes}", f"s_mov_b32 s{d+3}, 0x20000")

class Stamps2:
    def __init__(self, on): self.on = on
    def mark(self, a, i):
        if not self.on: return
        a("s_memrealtime s[96:97]", "s_memtime s[98:99]", "v_accvgpr_read_b32 v0, a255", "s_waitcnt lgkmcnt(0)",
          f"v_writelane_b32 v0, s96, {2*i}", f"v_writelane_b32 v0, s98, {2*i+1}", "v_accvgpr_write_b32 a255, v0",
          "v_mbcnt_lo_u32_b32 v0, -1, 0", "v_mbcnt_hi_u32_b32 v0, -1, v0")
    def init(self, a):
        if self.on: a("v_accvgpr_write_b32 a255, 0")
    def store(self, a):
        if not self.on: return
        a("s_lshl_b32 s96, s2, 2", "s_add_u32 s96, s96, s3", "s_lshl_b32 s96, s96, 8", f"s_add_u32 s96, s96, {WS_STAMP}",
          "v_lshlrev_b32 v1, 2, v0", "buffer_store_dword a255, v1, s[12:15], s96 offen")
import struct
def fbits(x): return f"{struct.unpack('<I', struct.pack('<f', x))[0]:#x}"
```

```python
from common import *

def quad_order(XB, YB, p):
    XH, YH = XB // 2, YB // 2
    quads = [(0, 0), (0, 1), (1, 1), (1, 0)] if p == 0 else [(0, 1), (0, 0), (1, 0), (1, 1)]
    seq = []
    for (xh, yh) in quads:
        xs, ys = range(xh * XH, (xh + 1) * XH), range(yh * YH, (yh + 1) * YH)
        seq += [(x, y, st ^ (k % 2)) for k, (x, y) in enumerate((x, y) for x in xs for y in (ys if x % 2 == 0 else ys[::-1])) for st in (0, 1)]
    return seq

class Gemm:
    def __init__(s, XB, YB, acc, swap, xreg, yreg, xaddr, yaddr, dmas, adv, b1, b2, gstep, lat=8, xst=32768, yst=32768, g0=1):
        T = s.T = XB * YB * 2
        B = s.B = Body(2 * T)
        first = {}; last = {}
        n = 0
        for p in range(2):
            for (x, y, st) in quad_order(XB, YB, p):
                X, Y = xreg(p, x, st), yreg(p, y, st)
                B.set_mfma(n, acc(x, y), *((Y, X) if swap else (X, Y)), acc(x, y))
                for key in (('x', p, x, st), ('y', p, y, st)):
                    first.setdefault(key, n); last[key] = n
                n += 1
        s.nd = len(dmas(0))
        for p in range(2):
            pos = [p * T + b1 + g0 + 1 + gstep * j for j in range(s.nd)]
            for (m0, txt), g in zip(dmas(p), pos):
                B.put(g, 'g', txt); B.put(g - 1, 's', m0)
            if b1 == b2:
                B.put(p * T + b1 - 1, 's', "s_waitcnt vmcnt(0) lgkmcnt(0)"); B.put(p * T + b1, 's', "s_barrier")
            else:
                B.put(p * T + b1 - 1, 's', "s_waitcnt lgkmcnt(0)"); B.put(p * T + b1, 's', "s_barrier")
                assert not B.has((p * T + b2) % B.n, 'g')
                B.put(p * T + b2 - 1, 's', f"s_waitcnt vmcnt({sum(1 for g in pos if g < p*T+b2-1)})"); B.put(p * T + b2, 's', "s_barrier")
            for t in adv: B.place(pos[-1] + 1, pos[-1] + 12, 'v', t)
        s.preload = {0: [], 1: []}
        jobs = []
        for q in range(2):
            for key in [k for k in first if k[1] == q]:
                kind, _, b, st = key
                reg = (xreg if kind == 'x' else yreg)(q, b, st)
                prev = -10**9
                for k2 in last:
                    r2 = (xreg if k2[0] == 'x' else yreg)(k2[1], k2[2], k2[3])
                    if r2.set() & reg.set():
                        t = last[k2]
                        while t >= first[key]: t -= 2 * T
                        prev = max(prev, t)
                lo = max((q - 1) * T + b2, prev)
                dl = min(first[key] - lat, q * T + b1 - 1 - lat)
                if kind == 'x':
                    for e in range(2):
                        jobs.append((dl, lo, q, 't', f"ds_read_b64_tr_b16 {reg[2*e:2*e+2]}, {xaddr[b]} offset:{q*xst + st*16384 + e*4096}", reg[2*e:2*e+2], first[key]))
                else:
                    jobs.append((dl, lo, q, 'b', f"ds_read_b128 {reg}, {yaddr[st]} offset:{q*yst + b*2048}", reg, first[key]))
        big = set()
        for q in range(2):
            todo = sorted([j for j in jobs if j[2] == q], key=lambda j: (j[0], j[6]))
            t = (q - 1) * T + b2
            while todo:
                if B.fits(t, 'd') and ((t - 1) % B.n) not in big:
                    c = [j for j in todo if j[1] <= t]
                    if c:
                        j = c[0]; todo.remove(j)
                        if t > j[0] + 5: print(f"  warn: load late by {t-j[0]} gaps: {j[4]}")
                        assert t < q * T + b1 - 1
                        B.put(t, 'd', j[4], j[5])
                        if j[3] == 'b': big.add(t % B.n)
                        if t < q * T: s.preload[q].append(j[4])
                t += 1
        B.auto_lgkm(look=2)
```

```python
import re, sys
def regs(tok):
    tok = tok.strip().lstrip("-").replace("abs(", "").replace(")", "").replace("|", "")
    m = re.fullmatch(r"([vas])\[(\d+):(\d+)\]", tok)
    if m: return {(m.group(1), i) for i in range(int(m.group(2)), int(m.group(3)) + 1)}
    m = re.fullmatch(r"([vas])(\d+)", tok)
    if m: return {(m.group(1), int(m.group(2)))}
    if tok == "vcc": return {("s", "vcc")}
    if tok == "m0": return {("s", "m0")}
    if tok == "exec": return {("s", "exec")}
    return set()
TRANS = ("v_exp_", "v_log_", "v_rcp_", "v_rsq_", "v_sqrt_", "v_sin_", "v_cos_")
class I:
    def __init__(s, text, line):
        s.text, s.line = text, line
        p = text.split(None, 1); s.op = op = p[0]
        ops = [x.strip() for x in (p[1] if len(p) > 1 else "").split(",")]
        if ops: ops[-1] = ops[-1].split()[0] if ops[-1].split() else ""
        s.ws = 1
        if op == "s_nop": s.ws = int(ops[0], 0) + 1
        s.mfma = op.startswith("v_mfma"); s.valu = op.startswith("v_") and not s.mfma
        s.vmem = op.startswith(("buffer_", "global_")); s.ds = op.startswith("ds_")
        s.trans = op.startswith(TRANS); s.perm = op.startswith("v_permlane"); s.dma = s.vmem and " lds" in text
        s.wr, s.rd, s.c, s.ab, s.data = set(), set(), set(), set(), set()
        R = [regs(o) for o in ops]
        if s.mfma:
            s.wr = R[0]; s.ab = R[1] | R[2]; s.c = R[3]; s.rd = s.ab | s.c
            s.passes = 4 if "16x16x32" in op else 8
        elif s.valu:
            s.wr = set(R[0]); s.rd = set().union(*R[1:]) if len(R) > 1 else set()
            if s.perm: s.wr |= R[1]; s.rd |= R[0]
            if op.startswith(("v_fmac", "v_dot2c")): s.rd |= R[0]
            if "_co_" in op: s.wr |= R[1]
        elif s.vmem:
            if "store" in op or "atomic" in op:
                s.rd = set().union(*R)
                if "x4" in op or "x3" in op: s.data = R[0] if op.startswith("buffer") else R[1]
            elif s.dma: s.rd = set().union(*R) | {("s", "m0")}
            elif op.startswith(("buffer_wbl2", "buffer_inv")): pass
            else: s.wr = R[0]; s.rd = set().union(*R[1:])
        elif s.ds:
            if "read" in op or "permute" in op: s.wr = R[0]; s.rd = set().union(*R[1:])
            else: s.rd = set().union(*R)
        elif op.startswith("s_") and R:
            if op.startswith(("s_cmp", "s_cbranch", "s_branch", "s_waitcnt", "s_nop", "s_barrier", "s_sleep", "s_endpgm", "s_setprio")): s.rd = set().union(*R)
            else: s.wr = R[0]; s.rd = set().union(*R[1:]) if len(R) > 1 else set()
def need(p, c):
    n = 0
    vw = {r for r in p.wr if r[0] != "s"}; sw = {r for r in p.wr if r[0] == "s"}
    if p.mfma:
        big = 8 if p.passes == 4 else 12
        if c.mfma:
            if c.ab & p.wr: n = max(n, big)
            if c.c & p.wr and c.c != p.wr: n = max(n, big - 2)
            if (c.wr & p.wr) and c.c != p.wr and not (c.c & p.wr): n = max(n, 0)
        elif (c.valu or c.vmem or c.ds) and ((c.rd | c.wr) & p.wr): n = max(n, big)
        if c.valu and (c.wr & p.c): n = max(n, 3 if p.passes == 4 else 7)
    if p.valu:
        if c.mfma and (c.rd & vw): n = max(n, 2)
        if c.perm and (c.rd & vw): n = max(n, 2)
        if "dpp" in c.text and c.valu and (c.rd & vw): n = max(n, 2)
        if c.op.startswith(("v_readfirstlane", "v_readlane")) and (c.rd & vw): n = max(n, 1)
        if p.trans and c.valu and not c.trans and (c.rd & vw): n = max(n, 1)
        if c.vmem and (c.rd & sw): n = max(n, 5)
        if c.valu and (c.rd & sw): n = max(n, 2)
    if p.data and (c.valu or c.mfma or c.ds or c.vmem) and (c.wr & p.data): n = max(n, 2 if c.valu else 1)
    if p.op.startswith("s_") and ("s", "m0") in p.wr and c.dma: n = max(n, 1)
    return n
def check(text):
    ins = []; labels = {}
    for ln, t in enumerate(text.split("\n"), 1):
        t = t.split(";")[0].strip()
        if not t or t.startswith("."): continue
        if t.endswith(":"): labels[t[:-1]] = len(ins); continue
        ins.append(I(t, ln))
    bad = set()
    def succ(i):
        x = ins[i]; out = []
        if x.op == "s_endpgm": return out
        if x.op.startswith(("s_branch", "s_cbranch")):
            tgt = x.text.split()[1]
            if tgt in labels and labels[tgt] < len(ins): out.append(labels[tgt])
            if x.op == "s_branch": return out
        if i + 1 < len(ins): out.append(i + 1)
        return out
    for i, p in enumerate(ins):
        if not (p.mfma or p.valu or p.data or ("s", "m0") in p.wr): continue
        stack = [(j, 0) for j in succ(i)]
        while stack:
            j, d = stack.pop()
            c = ins[j]
            if need(p, c) > d: bad.add((p.line, c.line, p.text, c.text, d, need(p, c)))
            d2 = d + c.ws
            if d2 < 12: stack += [(k, d2) for k in succ(j)]
    for b in sorted(bad): print("HAZARD line %d -> %d: %s  ->  %s  (have %d need %d)" % b)
    return len(bad)
if __name__ == "__main__":
    print("hazards:", check(open(sys.argv[1]).read()))
```

```python
from common import *

class Gemm:
    def __init__(s, XB, YB, acc, swap, xreg, yreg, xaddr, yaddr, dmas, adv, b1, b2, gstep, lat=8, xst=32768, yst=32768, g0=1, order='snake', abl=''):
        s.__dict__.update(locals())
        T = s.T = XB * YB * 2
        B = s.B = Body(2 * T)
        XH, YH = XB // 2, YB // 2
        first = {}; last = {}
        n = 0
        for p in range(2):
            quads = [(0, 0), (0, 1), (1, 1), (1, 0)] if p == 0 else [(0, 1), (0, 0), (1, 0), (1, 1)]
            for (xh, yh) in quads:
                k = 0
                xs, ys = range(xh * XH, (xh + 1) * XH), range(yh * YH, (yh + 1) * YH)
                if order == 'snake': seq = [(x, y, st ^ (k % 2)) for k, (x, y) in enumerate((x, y) for x in xs for y in ys) for st in (0, 1)]
                elif order == 'snakey': seq = [(x, y, st ^ (k % 2)) for k, (x, y) in enumerate((x, y) for y in ys for x in xs) for st in (0, 1)]
                elif order == 'snake2': seq = [(x, y, st ^ (k % 2)) for k, (x, y) in enumerate((x, y) for x in xs for y in (ys if x % 2 == 0 else ys[::-1])) for st in (0, 1)]
                elif order == 'chain': seq = [(x, y, st) for x in xs for y in ys for st in (0, 1)]
                elif order == 'nochain': seq = [(x, y, st) for x in xs for st in (0, 1) for y in ys]
                elif order == 'fake4': seq = [(x, y, st ^ (k % 2)) for k, (x, y) in enumerate((x, y) for x in xs for y in ys) for st in (0, 1)]
                for (x, y, st) in seq:
                    X, Y = xreg(p, x, st), yreg(p, y, st)
                    ac = acc(x, y & ~1) if order == 'fake4' else acc(x, y)
                    B.set_mfma(n, ac, *((Y, X) if swap else (X, Y)), ac)
                    for key in (('x', p, x, st), ('y', p, y, st)):
                        first.setdefault(key, n); last[key] = n
                    n += 1
        s.nd = len(dmas(0))
        for p in range(2):
            pos = [p * T + b1 + g0 + 1 + gstep * j for j in range(s.nd)]
            for (m0, txt), g in zip(dmas(p), pos):
                B.put(g, 'g', txt); B.put(g - 1, 's', m0)
            inflight = sum(1 for g in pos if g < p * T + b2)
            if b1 == b2:
                B.put(p * T + b1 - 1, 's', "s_waitcnt vmcnt(0) lgkmcnt(0)"); B.put(p * T + b1, 's', "s_barrier")
            else:
                B.put(p * T + b1 - 1, 's', "s_waitcnt lgkmcnt(0)"); B.put(p * T + b1, 's', "s_barrier")
                assert not B.has((p * T + b2) % B.n, 'g')
                B.put(p * T + b2 - 1, 's', f"s_waitcnt vmcnt({sum(1 for g in pos if g < p*T+b2-1)})"); B.put(p * T + b2, 's', "s_barrier")
            for t in adv: B.place(pos[-1] + 1, pos[-1] + 12, 'v', t)
        s.preload = {0: [], 1: []}
        jobs = []
        for q in range(2):
            for key in [k for k in first if k[1] == q]:
                kind, _, b, st = key
                reg = (xreg if kind == 'x' else yreg)(q, b, st)
                prev = -10**9
                for k2 in last:
                    r2 = (xreg if k2[0] == 'x' else yreg)(k2[1], k2[2], k2[3])
                    if r2.set() & reg.set():
                        t = last[k2]
                        while t >= first[key]: t -= 2 * T
                        prev = max(prev, t)
                lo = max((q - 1) * T + b2, prev)
                dl = min(first[key] - lat, q * T + b1 - 1 - lat)
                if kind == 'x':
                    for e in range(2):
                        jobs.append((dl, lo, q, 't', f"ds_read_b64_tr_b16 {reg[2*e:2*e+2]}, {xaddr[b]} offset:{q*xst + st*16384 + e*2048}", reg[2*e:2*e+2], first[key]))
                else:
                    jobs.append((dl, lo, q, 'b', f"ds_read_b128 {reg}, {yaddr[st]} offset:{q*yst + b*2048}", reg, first[key]))
        big = set()
        for q in range(2):
            todo = sorted([j for j in jobs if j[2] == q], key=lambda j: (j[0], j[6]))
            t = (q - 1) * T + b2
            while todo:
                if B.fits(t, 'd') and ((t - 1) % B.n) not in big:
                    c = [j for j in todo if j[1] <= t]
                    if c:
                        j = c[0]; todo.remove(j)
                        if t > j[0] + 5: print(f"  warn: load late by {t-j[0]} gaps: {j[4]}")
                        B.put(t, 'd', j[4], j[5])
                        if j[3] == 'b': big.add(t % B.n)
                        if t < q * T: s.preload[q].append(j[4])
                t += 1
        B.auto_lgkm(look=2)
        for i in range(B.n):
            B.vec[i] = [it for it in B.vec[i] if not ((it[0] == 'g' and 'g' in abl) or ('tr_b16' in it[1] and 't' in abl) or ('b128' in it[1] and 'b' in abl))]

def k1(a, name, diag=False, b1=40, b2=93, gstep=5, order='snake', abl=''):
    st = Stamps(diag, 0)
    kernel_header(a, name)
    a("s_cmp_ge_u32 s2, 256", f"s_cbranch_scc1 {name}_end")
    st.mark(a)
    a("s_load_dwordx4 s[20:23], s[0:1], 48",
      "s_load_dwordx4 s[24:27], s[0:1], 64",
      "s_load_dwordx2 s[28:29], s[0:1], 80",
      "s_load_dwordx2 s[30:31], s[0:1], 112")
    a("v_lshrrev_b32 v1, 6, v0", "v_and_b32 v0, 63, v0", "v_readfirstlane_b32 s3, v1",
      "s_and_b32 s33, s2, 7", "s_lshr_b32 s34, s2, 3",
      "s_and_b32 s35, s34, 7",
      "s_bfe_u32 s36, s34, 0x10003", "s_lshl_b32 s37, s33, 1", "s_add_u32 s36, s36, s37",
      "s_lshr_b32 s38, s34, 4",
      "s_and_b32 s39, s3, 1", "s_lshr_b32 s40, s3, 1")
    def wrow(j): return 4 * (j & 1) + 16 * ((j >> 1) & 1) + 32 * (j >> 2)
    for j in range(1, 8): a(f"s_mov_b32 s{40+j}, {65536*j}", f"s_mov_b32 s{47+j}, {wrow(j)*8192}")
    ysoff = lambda j: "0" if j == 0 else f"s{40+j}"
    xsoff = lambda j: "0" if j == 0 else f"s{47+j}"
    a("s_lshl_b32 s55, s3, 10")
    a("s_lshl_b32 s56, s39, 1", "s_lshl_b32 s57, s40, 3", "s_add_u32 s56, s56, s57", "s_lshl_b32 s57, s56, 9")
    VY, VX, VST = 1, 2, 3
    yaddr = [Reg('v', 4, 1), Reg('v', 5, 1)]
    xaddr = [Reg('v', 6 + i, 1) for i in range(8)]
    def act_voff(row0_sgpr, stride):
        a("s_lshl_b32 s58, s3, 3", f"s_add_u32 s58, s58, {row0_sgpr}", "v_lshrrev_b32 v14, 3, v0", "v_add_u32 v14, s58, v14",
          f"v_mul_u32_u24 v14, {stride}, v14",
          "s_lshl_b32 s58, s39, 2", "v_lshrrev_b32 v15, 4, v0", "v_add_u32 v15, s58, v15", "v_xor_b32 v15, v0, v15", "v_and_b32 v15, 7, v15",
          f"v_lshl_add_u32 v{VY}, v15, 4, v14")
    def w_voff(head_sgpr):
        a("v_lshrrev_b32 v14, 5, v0", "s_lshl_b32 s58, s39, 1", "s_lshl_b32 s59, s40, 2", "s_add_u32 s58, s58, s59", "v_add_u32 v15, s58, v14",
          "v_lshlrev_b32 v15, 1, v15", "v_xor_b32 v15, v0, v15", "v_and_b32 v15, 31, v15", "v_lshlrev_b32 v15, 4, v15",
          "v_add_u32 v14, s56, v14", "v_lshl_add_u32 v14, v14, 13, v15", f"s_lshl_b32 s58, {head_sgpr}, 9", f"v_add_u32 v{VX}, s58, v14")
    def frag_addrs(yrow0, xunit0, nx):
        a("v_and_b32 v14, 15, v0", "v_lshrrev_b32 v15, 4, v0", f"v_lshrrev_b32 {yaddr[1]}, 1, v14", f"v_xor_b32 {yaddr[1]}, {yaddr[1]}, v15",
          f"v_add_u32 v14, {yrow0}, v14", "v_lshlrev_b32 v14, 7, v14", f"v_lshl_add_u32 {yaddr[0]}, {yaddr[1]}, 4, v14", f"v_xor_b32 {yaddr[1]}, 64, {yaddr[0]}")
        a("v_bfe_u32 v14, v0, 2, 2", "v_lshl_add_u32 v13, v15, 3, v14", "v_lshlrev_b32 v13, 9, v13",
          "v_and_b32 v15, 1, v15", "v_lshl_or_b32 v14, v15, 2, v14",
          f"v_xor_b32 v14, {xunit0}, v14", "v_lshl_add_u32 v13, v14, 5, v13", "v_and_b32 v14, 3, v0", "v_lshl_add_u32 v13, v14, 3, v13",
          f"v_add_u32 {xaddr[0]}, 0x10000, v13")
        for nb in range(1, nx): a(f"v_xor_b32 {xaddr[nb]}, {nb*32}, {xaddr[0]}")
    a("s_lshl_b32 s60, s35, 8")
    act_voff("s60", 2048); w_voff("s36")
    a("s_waitcnt lgkmcnt(0)")
    a("s_cmp_eq_u32 s38, 0", "s_cselect_b32 s8, s26, s28", "s_cselect_b32 s9, s27, s29", "s_mov_b32 s10, 8388608", "s_mov_b32 s11, 0x20000")
    srd(a, 4, 22, 4194304); srd(a, 12, 30, WS_BYTES)
    def dmas_kv(p):
        y = [(f"s_add_u32 m0, s55, {p*32768 + j*4096}", f"buffer_load_dwordx4 v{VY}, s[4:7], {ysoff(j)} offen lds") for j in range(8)]
        x = [(f"s_add_u32 m0, s57, {65536 + p*32768 + wrow(j)*512}", f"buffer_load_dwordx4 v{VX}, s[8:11], {xsoff(j)} offen lds") for j in range(8)]
        return [d for pr in zip(x, y) for d in pr]
    adv = [f"v_add_u32 v{VY}, 128, v{VY}", f"v_add_u32 v{VX}, 0x80000, v{VX}"]
    def issue(dm):
        for m0, t in dm: a(m0, "s_nop 0", t)
        a(*adv)
    issue(dmas_kv(0)); issue(dmas_kv(1))
    a("s_lshl_b32 s58, s39, 7", "s_lshl_b32 s59, s40, 3")
    frag_addrs("s58", "s59", 8)
    a(f"v_lshlrev_b32 v{VST}, 4, v0")
    def acc(x, y):
        i = x * 8 + y
        return Reg('v', 16 + 4 * i, 4) if i < 60 else Reg('a', 128 + 4 * (i - 60), 4)
    for i in range(16, 256): a(f"v_mov_b32 v{i}, 0")
    for i in range(128, 144): a(f"v_accvgpr_write_b32 a{i}, 0")
    xreg = lambda p, x, s_: Reg('a', (x * 2 + s_) * 4, 4)
    yreg = lambda p, y, s_: Reg('a', 64 + (y * 2 + s_) * 4, 4)
    G = [Gemm(8, 8, acc, sw, xreg, yreg, xaddr, yaddr, dmas_kv, adv, b1, b2, gstep, order=order, abl=abl) for sw in (False, True)]
    print("kv pattern:", G[0].B.pattern()); print("over:", G[0].B.report())
    a("s_mov_b32 s61, 0", "s_waitcnt vmcnt(16)", "s_barrier")
    st.mark(a)
    a(*G[0].preload[0]); a("s_cmp_eq_u32 s38, 0", "s_waitcnt lgkmcnt(0)", f"s_cbranch_scc0 {name}_vloop")
    def loop(g, lab, niter, kill, entry=None):
        B = g.B
        B.put(1, 's', f"s_cmp_eq_u32 s61, {niter-1}"); B.put(1, 's', "s_cmov_b32 s6, 0")
        B.put(B.n - 2, 's', "s_add_u32 s61, s61, 1")
        B.put(B.n - 1, 'S', f"s_cmp_lt_u32 s61, {niter}"); B.put(B.n - 1, 'S', f"s_cbranch_scc1 {lab}")
        a(".p2align 6", f"{lab}:")
        a(*B.lines(0, g.T))
        if entry: a(f"{entry}:")
        a(*B.lines(g.T, B.n))
    def pack(ra, rb):
        if ra.kind == 'a' or rb.kind == 'a':
            t = Reg('v', 16, 8)
            for k, r in enumerate((ra, rb)):
                for i in range(4): a(f"v_accvgpr_read_b32 {t[4*k+i]}, {r[i]}" if r.kind == 'a' else f"v_mov_b32 {t[4*k+i]}, {r[i]}")
            ra, rb = t[0:4], t[4:8]
        a(f"v_cvt_pk_bf16_f32 {ra[0]}, {ra[0]}, {ra[1]}", f"v_cvt_pk_bf16_f32 {ra[1]}, {ra[2]}, {ra[3]}",
          f"v_cvt_pk_bf16_f32 {ra[2]}, {rb[0]}, {rb[1]}", f"v_cvt_pk_bf16_f32 {ra[3]}, {rb[2]}, {rb[3]}")
        return ra
    def dmas_q(p):
        y = [(f"s_add_u32 m0, s55, {p*32768 + j*4096}", f"buffer_load_dwordx4 v{VY}, s[4:7], {ysoff(j)} offen lds") for j in range(4)]
        x = [(f"s_add_u32 m0, s57, {65536 + p*32768 + wrow(j)*512}", f"buffer_load_dwordx4 v{VX}, s[8:11], {xsoff(j)} offen lds") for j in range(8)]
        return [x[0], x[1], y[0], x[2], x[3], y[1], x[4], x[5], y[2], x[6], x[7], y[3]]
    def q_setup():
        a("s_lshr_b32 s62, s34, 4", "s_add_u32 s62, s62, s37", "s_and_b32 s63, s34, 15", "s_lshl_b32 s60, s63, 7")
        for j in range(1, 4): a(f"s_mov_b32 s{40+j}, {32*896*j}")
        a("s_waitcnt vmcnt(0) lgkmcnt(0)")
        act_voff("s60", 896); w_voff("s62")
        srd(a, 4, 20, 2048 * 896); srd(a, 8, 24, 448 * 8192)
        a("s_barrier")
        issue(dmas_q(1)); issue(dmas_q(0))
    loop(G[0], f"{name}_kloop", 8, None)
    st.mark(a)
    q_setup()
    a("s_lshl_b32 s58, s36, 20", "s_lshl_b32 s59, s35, 17", "s_add_u32 s58, s58, s59", "s_lshl_b32 s59, s39, 16", "s_add_u32 s58, s58, s59",
      "s_lshl_b32 s59, s40, 12", "s_add_u32 s58, s58, s59")
    for y in range(8):
        for sx in range(4):
            r = pack(acc(2 * sx, y), acc(2 * sx + 1, y))
            a(f"buffer_store_dwordx4 {r}, v{VST}, s[12:15], s58 offen offset:{sx*1024}")
        a("s_add_u32 s58, s58, 8192")
    a(f"s_branch {name}_q")
    st.n -= 1 if diag else 0
    loop(G[1], f"{name}_vloop", 8, None)
    st.mark(a)
    q_setup()
    a("s_lshl_b32 s58, s36, 20", "s_lshl_b32 s59, s35, 17", "s_add_u32 s58, s58, s59", "s_lshl_b32 s59, s39, 16", "s_add_u32 s58, s58, s59",
      "s_lshl_b32 s59, s40, 13", "s_add_u32 s58, s58, s59", f"s_add_u32 s58, s58, {WS_V}")
    for t in range(4):
        for x in range(8):
            r = pack(acc(x, 2 * t), acc(x, 2 * t + 1))
            a(f"buffer_store_dwordx4 {r}, v{VST}, s[12:15], s58 offen offset:{(x%4)*1024}")
            if x == 3: a("s_add_u32 s58, s58, 4096")
        a("s_add_u32 s58, s58, 12288")
    a(f"{name}_q:")
    st.mark(a)
    a("s_lshl_b32 s59, s3, 2")
    frag_addrs("0", "s59", 4)
    accq = lambda x, y: Reg('v', 128 + 4 * (x * 8 + y), 4)
    xq = lambda p, x, s_: Reg('a', p * 32 + (x * 2 + s_) * 4, 4)
    yq = lambda p, y, s_: Reg('a', 64 + p * 64 + (y * 2 + s_) * 4, 4)
    Q = Gemm(4, 8, accq, False, xq, yq, xaddr, yaddr, dmas_q, adv, 20, 20, 3)
    print("q pattern:", Q.B.pattern()); print("over:", Q.B.report())
    a("s_nop 1")
    for i in range(128, 256): a(f"v_mov_b32 v{i}, 0")
    a("s_mov_b32 s61, 0", "s_waitcnt vmcnt(44)", "s_barrier")
    a(*Q.preload[1]); a("s_waitcnt lgkmcnt(0)", f"s_branch {name}_qentry")
    loop(Q, f"{name}_qloop", 4, None, entry=f"{name}_qentry")
    st.mark(a)
    import struct
    cq = struct.unpack("<I", struct.pack("<f", LOG2E / 16))[0]
    a(f"s_mov_b32 s59, {cq:#x}", "s_lshl_b32 s58, s62, 20", "s_lshl_b32 s60, s63, 16", "s_add_u32 s58, s58, s60", "s_lshl_b32 s60, s3, 11",
      "s_add_u32 s58, s58, s60", f"s_add_u32 s58, s58, {WS_Q}", "s_nop 3")
    for y in range(8):
        for sx in range(2):
            for r in (accq(2 * sx, y), accq(2 * sx + 1, y)):
                for i in range(4): a(f"v_mul_f32 {r[i]}, s59, {r[i]}")
            r = pack(accq(2 * sx, y), accq(2 * sx + 1, y))
            a(f"buffer_store_dwordx4 {r}, v{VST}, s[12:15], s58 offen offset:{sx*1024}")
        a("s_add_u32 s58, s58, 8192")
    a("s_cmp_lg_u32 s2, 0", f"s_cbranch_scc1 {name}_noflag", "v_mov_b32 v4, 0", "v_mov_b32 v5, 0", "v_mov_b32 v6, 0", "v_mov_b32 v7, 0",
      f"s_add_u32 s58, s55, {WS_FLAG}")
    for k in range(4): a(f"buffer_store_dwordx4 v[4:7], v{VST}, s[12:15], s58 offen", "s_add_u32 s58, s58, 4096")
    a(f"{name}_noflag:")
    if diag:
        st.mark(a); a("s_waitcnt vmcnt(0)"); st.mark(a); st.store(a, "s[12:15]", "s3")
    a(f"{name}_end:", "s_endpgm")
    return kernel_desc(name)
```

```python
from common import *
import struct
def fbits(x): return f"{struct.unpack('<I', struct.pack('<f', x))[0]:#x}"

V_L16, V_KA, V_VA, V_D0, V_D1 = 1, 2, 3, 1, 4
TS = [Reg('v', 5, 1), Reg('v', 6, 1)]; LS = [Reg('v', 7, 1), Reg('v', 8, 1)]; NM = [Reg('v', 9, 1), Reg('v', 10, 1)]
V_T0, V_T1, V_T2, V_R, V_T3 = 11, 12, 13, 14, 15
P = lambda ks, qs: Reg('v', 16 + (ks * 2 + qs) * 4, 4)
S = lambda kb, qs: Reg('v', 32 + (kb * 2 + qs) * 4, 4)
E = lambda kb, qs: Reg('v', 64 + (kb * 2 + qs) * 4, 4)
C = lambda kb, qs: Reg('v', 96 + (kb * 2 + qs) * 4, 4)
O = lambda db, qs: Reg('v', 128 + (qs * 16 + db) * 4, 4)
Q = lambda qs, s: Reg('a', (qs * 8 + s) * 4, 4)
F = lambda n: Reg('a', 64 + (n % 16) * 4, 4)
def fload(n):
    if n < 32: return f"ds_read_b128 {F(n)}, v{V_KA} offset:{n*1024}"
    db, ks = (n - 32) // 2, (n - 32) % 2
    return f"ds_read_b128 {F(n)}, v{V_VA} offset:{(ks*16+db)*1024}"
def set_qk(B, base):
    for kb in range(4):
        for qs in range(2):
            for s in range(8):
                B.set_mfma(base + 16 * kb + 8 * qs + s, S(kb, qs), F(8 * kb + s), Q(qs, s), C(kb, qs) if s == 0 else S(kb, qs))
def set_pv(B, base):
    for db in range(16):
        for k, (ks, qs) in enumerate(((0, 0), (1, 0), (1, 1), (0, 1))):
            B.set_mfma(base + 4 * db + k, O(db, qs), F(32 + 2 * db + ks), P(ks, qs), O(db, qs))
def cvts():
    return [f"v_cvt_pk_bf16_f32 {P(kb//2, qs)[2*(kb%2)+h]}, {E(kb,qs)[2*h]}, {E(kb,qs)[2*h+1]}" for kb in range(4) for qs in range(2) for h in range(2)]
S_KM, S_VM, S_KP, S_VP, S_LEFT, S_THR, S_FLOOR, S_BIG = 40, 41, 42, 43, 44, 45, 46, 47
def dma(sp, j): return f"buffer_load_dwordx4 v{V_D0 if j < 4 else V_D1}, s[12:15], s{sp} offen offset:{(j%4)*1024} lds"

def main_body(name, L=16, kg=(1, 6), vg=(49, 6)):
    B = Body(128)
    set_qk(B, 0); set_pv(B, 64)
    for n in range(64): B.put(2 * n - L, 'd', fload(n), F(n))
    bv, bk = 64 - L - 1, 128 - L - 1
    for (g0, gs), sm, sp in ((kg, S_KM, S_KP), (vg, S_VM, S_VP)):
        for j in range(8):
            g = g0 + gs * j
            B.put(g, 'g', dma(sp, j))
            if j == 0: B.put(g - 1, 's', f"s_mov_b32 m0, s{sm}")
            if j == 4: B.put(g - 1, 's', "s_bitset1_b32 m0, 12")
        B.put(g + 1, 's', f"s_add_u32 s{sp}, s{sp}, 0x8000"); B.put(g + 2, 's', f"s_xor_b32 s{sm}, s{sm}, 0x8000")
    for b in (bv, bk):
        B.put(b - 1, 's', "s_waitcnt vmcnt(8)"); B.put(b, 's', "s_barrier")
    B.auto_lgkm(look=2, maxcnt=15)
    B.place(bv + 1, bk, 'v', f"v_xor_b32 v{V_KA}, 0x8000, v{V_KA}")
    B.place(bk + 1, bk + 16, 'v', f"v_xor_b32 v{V_VA}, 0x8000, v{V_VA}")
    t = 0
    cv = cvts(); cpos = {}
    seq = [cv[0], cv[1], cv[2], cv[3]] + [f"v_add_f32 {LS[q]}, {LS[q]}, {TS[q]}" for q in range(2)] + cv[4:]
    for x in seq:
        while not (B.fits(t, 'v') and (B.has(t, 'd') or t < 12)): t += 1
        B.put(t, 'v', x); cpos[x] = t
    lpos = max(cpos[seq[4]], cpos[seq[5]])
    te = 0; epos = {}
    for kb in range(4):
        for qs in range(2):
            lo = max(16 * kb + 8 * qs + 7 + 5, cpos[cv[(kb * 2 + qs) * 2 + 1]] + 1)
            for i in range(4):
                te = B.place(max(te, lo), 128, 'e', f"v_exp_f32 {E(kb,qs)[i]}, {S(kb,qs)[i]}"); epos[kb, qs, i] = te
    ta = lpos
    for kb in range(4):
        for qs in range(2):
            for i in range(4):
                if kb == 0 and i == 0: continue
                src = E(0, qs)[0] if (kb == 0 and i == 1) else TS[qs]
                ta = B.place(max(ta + 1, epos[kb, qs, i] + 1), 128, 'v', f"v_add_f32 {TS[qs]}, {src}, {E(kb,qs)[i]}")
    ta = B.place(ta + 1, 128, 'v', f"v_add_f32 v{V_T0}, {TS[0]}, {TS[1]}")
    ta = B.place(ta + 1, 127, 'v', f"v_cmp_nge_f32 vcc, s{S_BIG}, v{V_T0}")
    B.place(120, 126, 's', f"s_sub_u32 s{S_LEFT}, s{S_LEFT}, 1")
    B.put(127, 'S', f"s_cbranch_vccnz {name}_slow")
    return B

def k2(a, name, diag=False, nA=18, L=16):
    st = Stamps(diag, 1)
    kernel_header(a, name)
    a("s_cmp_ge_u32 s2, 256", f"s_cbranch_scc1 {name}_end")
    st.mark(a)
    a("s_load_dwordx2 s[30:31], s[0:1], 112")
    a("v_lshrrev_b32 v2, 6, v0", "v_and_b32 v0, 63, v0", "v_readfirstlane_b32 s3, v2",
      "s_and_b32 s33, s2, 7", "s_bfe_u32 s34, s2, 0x30003",
      "s_bfe_u32 s35, s2, 0x10006", "s_lshl_b32 s33, s33, 1", "s_add_u32 s35, s35, s33",
      "s_lshr_b32 s36, s2, 7",
      "s_lshl_b32 s37, s34, 1", f"s_sub_u32 s38, {32-nA}, s37",
      "s_and_b32 s39, s2, 127",
      f"s_mov_b32 s{S_BIG}, {fbits(2.0**24)}")
    a(f"v_lshlrev_b32 v{V_L16}, 4, v0", f"v_add_u32 v{V_D1}, 4096, v{V_L16}")
    a(f"v_and_b32 v{V_R}, 15, v0", f"v_lshrrev_b32 v{V_T0}, 4, v0", f"v_lshlrev_b32 v{V_T0}, 2, v{V_T0}", f"v_sub_u32 v{V_R}, v{V_R}, v{V_T0}",
      "s_lshl_b32 s48, s3, 4", f"v_add_u32 v{V_R}, s48, v{V_R}")
    a("s_lshl_b32 s49, s35, 20", "s_lshl_b32 s50, s3, 13")
    a("s_waitcnt lgkmcnt(0)")
    srd(a, 12, 30, WS_BYTES)
    a("s_sub_u32 s51, 15, s34", "s_cmp_eq_u32 s36, 0", f"s_cbranch_scc1 {name}_roleB")
    a("s_mov_b32 s52, s38", f"s_mov_b32 s53, {nA}", "s_cmp_eq_u32 s38, 0", "s_cselect_b32 s54, 1, 2", f"s_branch {name}_seg")
    a(f"{name}_roleB:", "s_mov_b32 s52, 0", "s_mov_b32 s53, s38", "s_mov_b32 s54, 0", "s_cmp_lg_u32 s38, 0", f"s_cbranch_scc1 {name}_seg")
    a(f"{name}_seg2:", "s_mov_b32 s51, s34", "s_mov_b32 s52, 0", "s_add_u32 s53, s37, 2", "s_mov_b32 s54, 1")
    a(f"{name}_seg:")
    a("s_lshl_b32 s55, s52, 15", "s_add_u32 s55, s55, s49", f"s_add_u32 s{S_KP}, s55, s50", f"s_add_u32 s{S_VP}, s{S_KP}, {WS_V}",
      f"s_mov_b32 s{S_KM}, s50", f"s_add_u32 s{S_VM}, s50, 0x10000",
      "s_lshl_b32 s55, s51, 16", "s_add_u32 s55, s55, s49", "s_add_u32 s55, s55, s50", f"s_add_u32 s55, s55, {WS_Q}", "s_add_u32 s56, s55, 0x8000")
    def issue(sm, sp):
        a(f"s_mov_b32 m0, s{sm}", "s_nop 0")
        for j in range(8):
            if j == 4: a("s_bitset1_b32 m0, 12", "s_nop 0")
            a(dma(sp, j))
        a(f"s_add_u32 s{sp}, s{sp}, 0x8000", f"s_xor_b32 s{sm}, s{sm}, 0x8000")
    issue(S_KM, S_KP)
    for qs in range(2):
        for s in range(8): a(f"buffer_load_dwordx4 {Q(qs,s)}, v{V_D0 if s < 4 else V_D1}, s[12:15], s{55+qs} offen offset:{(s%4)*1024}")
    issue(S_KM, S_KP); issue(S_VM, S_VP)
    a(f"v_mov_b32 v{V_KA}, v{V_L16}", f"v_add_u32 v{V_VA}, 0x10000, v{V_L16}")
    for i in range(96, 256): a(f"v_mov_b32 v{i}, 0")
    for r in LS + NM: a(f"v_mov_b32 {r}, 0")
    a(f"s_mov_b32 s{S_FLOOR}, 0xff800000", "s_cmp_eq_u32 s54, 0", f"s_cselect_b32 s{S_THR}, 0, 2", f"s_sub_u32 s{S_LEFT}, s53, 1")
    def mask(qs):
        a(f"v_mov_b32 v{V_T0}, {fbits(-1e30)}")
        for kb in range(4):
            for i in range(4): a(f"v_cmp_gt_i32 s[{16+2*i}:{17+2*i}], {16*kb+i}, v{V_R}")
            for i in range(4): a(f"v_cndmask_b32 {C(kb,qs)[i]}, {NM[qs]}, v{V_T0}, s[{16+2*i}:{17+2*i}]")
    a(f"s_cmp_ge_u32 s{S_LEFT}, s{S_THR}", f"s_cbranch_scc1 {name}_nomask0")
    mask(0)
    a(f"{name}_nomask0:")
    a("s_waitcnt vmcnt(16)", "s_barrier")
    if diag:
        a("s_cmp_eq_u32 s54, 0", f"s_cbranch_scc1 {name}_st1"); st.mark(a); a(f"{name}_st1:")
    B0 = Body(64, cyclic=False); set_qk(B0, 0)
    for n in range(8): a(fload(n))
    a("s_waitcnt lgkmcnt(0)")
    for n in range(8, 32): B0.put(2 * n - 16, 'd', fload(n), F(n))
    B0.auto_lgkm(look=2, maxcnt=15)
    a(*B0.lines())
    a(f"v_xor_b32 v{V_KA}, 0x8000, v{V_KA}", "s_waitcnt vmcnt(8)", "s_barrier")
    for n in range(L // 2): a(fload(n))
    a(f"{name}_slow:", "s_nop 7")
    for qs in range(2):
        mx, t = f"v{V_T0+qs}", f"v{V_T2}"
        el = [S(kb, qs)[i] for kb in range(4) for i in range(4)]
        a(f"v_max3_f32 {mx}, {el[0]}, {el[1]}, {el[2]}")
        for k in range(3, 15, 2): a(f"v_max3_f32 {mx}, {mx}, {el[k]}, {el[k+1]}")
        a(f"v_max_f32 {mx}, {mx}, {el[15]}")
        for sw in ("v_permlane32_swap_b32", "v_permlane16_swap_b32"):
            a(f"v_mov_b32 {t}, {mx}", "s_nop 1", f"{sw} {mx}, {t}", "s_nop 1", f"v_max_f32 {mx}, {mx}, {t}")
        a(f"v_max_f32 {mx}, s{S_FLOOR}, {mx}", f"v_sub_f32 {NM[qs]}, {NM[qs]}, {mx}")
        for e in el: a(f"v_sub_f32 {e}, {e}, {mx}")
        for kb in range(4):
            for i in range(4): a(f"v_exp_f32 {E(kb,qs)[i]}, {S(kb,qs)[i]}", f"v_mov_b32 {C(kb,qs)[i]}, {NM[qs]}")
        ee = [E(kb, qs)[i] for kb in range(4) for i in range(4)]
        a(f"v_add_f32 {TS[qs]}, {ee[0]}, {ee[1]}")
        for k in range(2, 16): a(f"v_add_f32 {TS[qs]}, {TS[qs]}, {ee[k]}")
    a("s_waitcnt lgkmcnt(0)", f"s_cmp_lg_u32 s{S_FLOOR}, 0", f"s_mov_b32 s{S_FLOOR}, 0", f"s_cbranch_scc1 {name}_ret")
    for qs in range(2):
        f = f"v{V_T0+qs}"
        a(f"v_exp_f32 {f}, -{f}", "s_nop 0", f"v_mul_f32 {LS[qs]}, {LS[qs]}, {f}")
        for db in range(16):
            for i in range(4): a(f"v_mul_f32 {O(db,qs)[i]}, {O(db,qs)[i]}, {f}")
    a(f"s_branch {name}_ret")
    B = main_body(name, L)
    print("attn pattern:", B.pattern()); print("over:", B.report())
    a(".p2align 6", f"{name}_loop:")
    a(*B.lines())
    a(f"{name}_ret:", f"s_cmp_gt_u32 s{S_LEFT}, s{S_THR}", f"s_cbranch_scc1 {name}_loop")
    a(f"s_cmp_eq_u32 s{S_LEFT}, 0", f"s_cbranch_scc1 {name}_tail", f"s_cmp_eq_u32 s{S_LEFT}, 1", f"s_cbranch_scc1 {name}_d1")
    mask(0); a("s_nop 0", f"s_branch {name}_loop")
    a(f"{name}_d1:")
    mask(1)
    for kb in range(4):
        for i in range(4): a(f"v_mov_b32 {C(kb,0)[i]}, v{V_T0}")
    a("s_nop 0", f"s_branch {name}_loop")
    a(f"{name}_tail:", "s_waitcnt vmcnt(0) lgkmcnt(0)", "s_barrier")
    for n in range(32, 40): a(fload(n))
    a(*cvts())
    for q in range(2): a(f"v_add_f32 {LS[q]}, {LS[q]}, {TS[q]}")
    a("s_waitcnt lgkmcnt(0)")
    BT = Body(64, cyclic=False); set_pv(BT, 0)
    for n in range(40, 64): BT.put(2 * (n - 32) - 16, 'd', fload(n), F(n))
    BT.auto_lgkm(look=2, maxcnt=15)
    a(*BT.lines())
    if diag:
        a("s_cmp_eq_u32 s54, 0", f"s_cbranch_scc1 {name}_st2"); st.mark(a); a(f"{name}_st2:")
    for qs in range(2):
        l, t = LS[qs], f"v{V_T2}"
        for sw in ("v_permlane32_swap_b32", "v_permlane16_swap_b32"):
            a(f"v_mov_b32 {t}, {l}", "s_nop 1", f"{sw} {l}, {t}", "s_nop 1", f"v_add_f32 {l}, {l}, {t}")
    for qs in range(2): a(f"v_log_f32 {TS[qs]}, {LS[qs]}", f"v_rcp_f32 v{V_T0+qs}, {LS[qs]}")
    for qs in range(2): a(f"v_sub_f32 {TS[qs]}, {TS[qs]}, {NM[qs]}")
    a("s_lshl_b32 s55, s39, 16", "s_lshl_b32 s57, s3, 14", "s_add_u32 s55, s55, s57", f"s_add_u32 s55, s55, {WS_PO}", "s_add_u32 s56, s55, 0x2000",
      "s_lshl_b32 s57, s39, 2", "s_add_u32 s57, s57, s3", "s_lshl_b32 s57, s57, 9", f"s_add_u32 s57, s57, {WS_PL}",
      "s_lshl_b32 s58, s39, 7", f"s_add_u32 s58, s58, {WS_FLAG}", f"v_lshrrev_b32 v{V_T3}, 2, v{V_L16}")
    def pack(qs, s):
        ra, rb = O(2 * s, qs), O(2 * s + 1, qs)
        a(f"v_cvt_pk_bf16_f32 {ra[0]}, {ra[0]}, {ra[1]}", f"v_cvt_pk_bf16_f32 {ra[1]}, {ra[2]}, {ra[3]}",
          f"v_cvt_pk_bf16_f32 {ra[2]}, {rb[0]}, {rb[1]}", f"v_cvt_pk_bf16_f32 {ra[3]}, {rb[2]}, {rb[3]}")
        return ra
    def scale_store(fl):
        for qs in range(2):
            for s in range(8):
                for db in (2 * s, 2 * s + 1):
                    for i in range(4): a(f"v_mul_f32 {O(db,qs)[i]}, {O(db,qs)[i]}, v{V_T0+qs}")
                r = pack(qs, s)
                a(f"buffer_store_dwordx4 {r}, v{V_D0 if s < 4 else V_D1}, s[12:15], s{55+qs} offen offset:{(s%4)*1024}{fl}")
    a("s_cmp_lg_u32 s54, 0", f"s_cbranch_scc1 {name}_final")
    for qs in range(2): a(f"buffer_store_dword {TS[qs]}, v{V_T3}, s[12:15], s57 offen offset:{256*qs} sc1")
    scale_store(" sc1")
    a("s_waitcnt vmcnt(0)", "s_barrier", "s_cmp_lg_u32 s3, 0", f"s_cbranch_scc1 {name}_seg2",
      f"v_mov_b32 v{V_T0}, 1", f"v_mov_b32 v{V_T1}, 0", "s_mov_b64 s[60:61], exec", "s_mov_b64 exec, 1",
      f"buffer_store_dword v{V_T0}, v{V_T1}, s[12:15], s58 offen sc1", "s_mov_b64 exec, s[60:61]", f"s_branch {name}_seg2")
    a(f"{name}_final:", "s_cmp_eq_u32 s54, 1", f"s_cbranch_scc1 {name}_store")
    a(f"v_mov_b32 v{V_T2}, 0", f"{name}_poll:", f"buffer_load_dword v16, v{V_T2}, s[12:15], s58 offen sc1", "s_waitcnt vmcnt(0)",
      "v_readfirstlane_b32 s59, v16", "s_cmp_eq_u32 s59, 1", f"s_cbranch_scc1 {name}_got", "s_sleep 4", f"s_branch {name}_poll", f"{name}_got:")
    for qs in range(2): a(f"buffer_load_dword v{16+qs}, v{V_T3}, s[12:15], s57 offen offset:{256*qs} sc1")
    PB = lambda qs, s: Reg('v', 32 + (qs * 8 + s) * 4, 4)
    for qs in range(2):
        for s in range(8): a(f"buffer_load_dwordx4 {PB(qs,s)}, v{V_D0 if s < 4 else V_D1}, s[12:15], s{55+qs} offen offset:{(s%4)*1024} sc1")
    a("s_waitcnt vmcnt(16)")
    for qs in range(2):
        a(f"v_max_f32 v18, v{16+qs}, {TS[qs]}", f"v_sub_f32 v19, {TS[qs]}, v18", f"v_sub_f32 v20, v{16+qs}, v18",
          "v_exp_f32 v19, v19", "v_exp_f32 v20, v20", "s_nop 0", "v_add_f32 v18, v19, v20", "v_rcp_f32 v18, v18", "s_nop 0",
          "v_mul_f32 v19, v19, v18", f"v_mul_f32 v{22+qs}, v20, v18", f"v_mul_f32 v{V_T0+qs}, v{V_T0+qs}, v19")
    a("s_lshl_b32 s55, s51, 20", "s_lshl_b32 s57, s3, 17", "s_add_u32 s55, s55, s57", "s_lshl_b32 s57, s35, 13", "s_add_u32 s55, s55, s57",
      f"s_add_u32 s55, s55, {WS_CTX}", "s_add_u32 s56, s55, 0x80000", "s_mov_b32 s59, 0xffff0000")
    for qs in range(2):
        for s in range(8):
            a(f"s_waitcnt vmcnt({15})")
            for k in range(8):
                o = O(2 * s + k // 4, qs)[k % 4]; pb = PB(qs, s)[k // 2]
                a(f"v_lshlrev_b32 v24, 16, {pb}" if k % 2 == 0 else f"v_and_b32 v24, s59, {pb}", f"v_mul_f32 v24, v24, v{22+qs}", f"v_fma_f32 {o}, {o}, v{V_T0+qs}, v24")
            r = pack(qs, s)
            a(f"buffer_store_dwordx4 {r}, v{V_D0 if s < 4 else V_D1}, s[12:15], s{55+qs} offen offset:{(s%4)*1024}")
    a(f"s_branch {name}_done")
    a(f"{name}_store:")
    a("s_lshl_b32 s55, s51, 20", "s_lshl_b32 s57, s3, 17", "s_add_u32 s55, s55, s57", "s_lshl_b32 s57, s35, 13", "s_add_u32 s55, s55, s57",
      f"s_add_u32 s55, s55, {WS_CTX}", "s_add_u32 s56, s55, 0x80000")
    scale_store("")
    a(f"{name}_done:")
    if diag:
        st.mark(a); a("s_waitcnt vmcnt(0)"); st.mark(a); st.store(a, "s[12:15]", "s3")
    a(f"{name}_end:", "s_endpgm")
    return kernel_desc(name)
```

```python
from common import *
from gemm import Gemm
import k2 as AT
from k2 import V_L16, V_KA, V_VA, V_D0, V_D1, TS, LS, NM, V_T0, V_T1, V_T2, V_R, V_T3, P, S, E, C, O, Q, F, fload, set_qk, set_pv, cvts
from k2 import S_KM, S_VM, S_KP, S_VP, S_LEFT, S_THR, S_FLOOR, S_BIG

F_KV, F_CTX, F_PO, F_U, F_Y = (WS_FLAG + x for x in (0, 0x1000, 0x2000, 0x6000, 0x7000))
sX, sI, sH, sROLE, sJJ, sW1K = "s24", "s25", "s26", "s27", "s28", "s29"
pAq, pAk, pAv, pAsh, pAssm, pAD, pX, pC, pWq, pWuk, pWuv, pWo, pOut, pDbg = range(64, 92, 2)
sFKV, sFCTX, sFPO, sIDX = "s92", "s93", "s94", "s95"
STAMPS = ["entry", "kv_go", "kv_end", "q_go", "q_end", "q_stored", "s1_done", "kv_flag", "att_go", "seg1_end", "seg1_fin", "tail_end", "att_fin", "s2_end", "ctx_flag", "p4_go", "p4_loop", "p4_end", "drain"]

class Mega:
    def __init__(m, a, name, diag, **o):
        m.a, m.n, m.st = a, name, Stamps2(diag)
        m.o = dict(b1=40, b2=93, gstep=5, nA=18, L=16, D=6); m.o.update(o)
        m.npoll = 0
    def mark(m, nm): m.st.mark(m.a, STAMPS.index(nm))
    def poll(m, soff, n, va, vd, val=1, dbg=False):
        a = m.a; l = f"{m.n}_poll{m.npoll}"; m.npoll += 1
        a(f"v_and_b32 v{va}, {n-1}, v0", f"v_lshlrev_b32 v{va}, 2, v{va}", "s_mov_b32 s100, 0", f"{l}:")
        a(f"global_load_dword v{vd}, v{va}, s[{pDbg}:{pDbg+1}] offset:{soff} sc1" if dbg else f"buffer_load_dword v{vd}, v{va}, s[12:15], {soff} offen sc1")
        a("s_waitcnt vmcnt(0)", f"v_cmp_ne_u32 vcc, {val}, v{vd}", f"s_cbranch_vccz {l}_ok", "s_sleep 2", "s_add_u32 s100, s100, 1",
          "s_cmp_lt_u32 s100, 0x80000", f"s_cbranch_scc1 {l}", f"{l}_ok:")
    def setflag(m, soff, va, vd):
        m.a(f"v_mov_b32 v{va}, 0", f"v_mov_b32 v{vd}, 1", "s_mov_b64 exec, 1", f"buffer_store_dword v{vd}, v{va}, s[12:15], {soff} offen sc1", "s_mov_b64 exec, -1")
    def publish(m, soff, va, vd, local=False):
        a = m.a; l = f"{m.n}_pub{m.npoll}"; m.npoll += 1
        a("s_waitcnt vmcnt(0)", "s_barrier", "s_cmp_lg_u32 s3, 0", f"s_cbranch_scc1 {l}")
        if local: a("s_cmp_lg_u32 s30, 0", f"s_cbranch_scc1 {l}_x", "buffer_wbl2 sc1", "s_waitcnt vmcnt(0)", f"{l}_x:")
        m.setflag(soff, va, vd)
        a(f"{l}:")

    def proj(m):
        a, name, o = m.a, m.n, m.o
        a("s_load_dwordx16 s[64:79], s[0:1], 0", "s_load_dwordx8 s[80:87], s[0:1], 64", "s_load_dwordx4 s[88:91], s[0:1], 96", "s_load_dwordx2 s[12:13], s[0:1], 112")
        a("v_lshrrev_b32 v1, 6, v0", "v_and_b32 v0, 63, v0", "v_readfirstlane_b32 s3, v1",
          f"s_and_b32 {sX}, s2, 7", f"s_bfe_u32 {sI}, s2, 0x30003", f"s_bfe_u32 {sH}, s2, 0x10006", f"s_lshl_b32 s37, {sX}, 1", f"s_add_u32 {sH}, {sH}, s37",
          f"s_lshr_b32 {sROLE}, s2, 7", f"s_bfe_u32 {sJJ}, s2, 0x40003", f"s_lshl_b32 {sW1K}, s3, 10",
          "s_and_b32 s39, s3, 1", "s_lshr_b32 s40, s3, 1")
        m.st.init(a); m.mark("entry")
        def wrow(j): return 4 * (j & 1) + 16 * ((j >> 1) & 1) + 32 * (j >> 2)
        for j in range(1, 8): a(f"s_mov_b32 s{40+j}, {65536*j}", f"s_mov_b32 s{47+j}, {wrow(j)*8192}")
        ysoff = lambda j: "0" if j == 0 else f"s{40+j}"
        xsoff = lambda j: "0" if j == 0 else f"s{47+j}"
        a("s_lshl_b32 s56, s39, 1", "s_lshl_b32 s57, s40, 3", "s_add_u32 s56, s56, s57")
        VY, VX, VST = 1, 2, 3
        yaddr = [Reg('v', 4, 1), Reg('v', 5, 1)]
        xaddr = [Reg('v', 6 + i, 1) for i in range(8)]
        def act_voff(row0_sgpr, stride):
            a("s_lshl_b32 s58, s3, 3", f"s_add_u32 s58, s58, {row0_sgpr}", "v_lshrrev_b32 v14, 3, v0", "v_add_u32 v14, s58, v14",
              f"v_mul_u32_u24 v14, {stride}, v14",
              "s_lshl_b32 s58, s39, 2", "v_lshrrev_b32 v15, 4, v0", "v_add_u32 v15, s58, v15", "v_xor_b32 v15, v0, v15", "v_and_b32 v15, 7, v15",
              f"v_lshl_add_u32 v{VY}, v15, 4, v14")
        def w_voff():
            a("v_lshrrev_b32 v14, 5, v0", "s_lshl_b32 s58, s3, 1", "v_add_u32 v15, s58, v14",
              "v_lshlrev_b32 v15, 1, v15", "v_xor_b32 v15, v0, v15", "v_and_b32 v15, 31, v15", "v_lshlrev_b32 v15, 4, v15",
              "v_add_u32 v14, s56, v14", "v_lshl_add_u32 v14, v14, 13, v15", f"s_lshl_b32 s58, {sH}, 9", f"v_add_u32 v{VX}, s58, v14")
        def frag_addrs(yrow0, xunit0, nx):
            a("v_and_b32 v14, 15, v0", "v_lshrrev_b32 v15, 4, v0", f"v_lshrrev_b32 {yaddr[1]}, 1, v14", f"v_xor_b32 {yaddr[1]}, {yaddr[1]}, v15",
              f"v_add_u32 v14, {yrow0}, v14", "v_lshlrev_b32 v14, 7, v14", f"v_lshl_add_u32 {yaddr[0]}, {yaddr[1]}, 4, v14", f"v_xor_b32 {yaddr[1]}, 64, {yaddr[0]}")
            a("v_bfe_u32 v14, v0, 2, 3", "v_lshrrev_b32 v15, 5, v0", "v_lshl_add_u32 v13, v15, 4, v14", "v_lshlrev_b32 v13, 9, v13",
              f"v_xor_b32 v14, {xunit0}, v14", "v_lshl_add_u32 v13, v14, 5, v13", "v_and_b32 v14, 3, v0", "v_lshl_add_u32 v13, v14, 3, v13",
              f"v_add_u32 {xaddr[0]}, 0x10000, v13")
            for nb in range(1, nx): a(f"v_xor_b32 {xaddr[nb]}, {nb*32}, {xaddr[0]}")
        a(f"s_lshl_b32 s60, {sI}, 8")
        act_voff("s60", 2048); w_voff()
        a("s_waitcnt lgkmcnt(0)")
        a(f"s_cmp_eq_u32 {sROLE}, 0", f"s_cselect_b32 s8, s{pWuk}, s{pWuv}", f"s_cselect_b32 s9, s{pWuk+1}, s{pWuv+1}", "s_mov_b32 s10, 8388608", "s_mov_b32 s11, 0x20000")
        srd(a, 4, pC, 4194304); a(f"s_mov_b32 s14, {WS_BYTES}", "s_mov_b32 s15, 0x20000")
        def dmas(ny):
            def f(p):
                y = [(f"s_add_u32 m0, {sW1K}, {p*32768 + j*4096}", f"buffer_load_dwordx4 v{VY}, s[4:7], {ysoff(j)} offen lds") for j in range(ny)]
                x = [(f"s_add_u32 m0, {sW1K}, {65536 + p*32768 + j*4096}", f"buffer_load_dwordx4 v{VX}, s[8:11], {xsoff(j)} offen lds") for j in range(8)]
                if ny == 8: return [d for pr in zip(x, y) for d in pr]
                return [x[0], x[1], y[0], x[2], x[3], y[1], x[4], x[5], y[2], x[6], x[7], y[3]]
            return f
        adv = [f"v_add_u32 v{VY}, 128, v{VY}", f"v_add_u32 v{VX}, 0x80000, v{VX}"]
        def issue(dm):
            for m0, t in dm: a(m0, "s_nop 0", t)
            a(*adv)
        issue(dmas(8)(0))
        a(f"s_lshl_b32 s58, {sROLE}, 3", f"s_add_u32 s59, s58, {sI}", "s_lshl_b32 s59, s59, 2", f"s_lshl_b32 {sFKV}, {sH}, 7", f"s_add_u32 {sFKV}, {sFKV}, s59", f"s_add_u32 {sFKV}, {sFKV}, {F_KV}",
          f"s_add_u32 s58, s58, {sX}", f"s_mul_i32 {sIDX}, s58, 14", f"s_add_u32 {sIDX}, {sIDX}, {sJJ}",
          f"s_sub_u32 s63, 15, {sI}", f"s_cmp_eq_u32 {sROLE}, 0", f"s_cselect_b32 s63, {sI}, s63",
          f"s_lshl_b32 {sFCTX}, s63, 7", f"s_lshl_b32 s59, {sH}, 2", f"s_add_u32 {sFCTX}, {sFCTX}, s59", f"s_add_u32 {sFCTX}, {sFCTX}, {F_CTX}",
          f"s_and_b32 {sFPO}, s2, 127", f"s_lshl_b32 {sFPO}, {sFPO}, 7", f"s_add_u32 {sFPO}, {sFPO}, {F_PO}")
        a("s_cmp_lg_u32 s3, 0", f"s_cbranch_scc1 {name}_noclr")
        a(f"s_lshl_b32 s58, {sIDX}, 2", f"s_add_u32 s59, s58, {F_Y}", f"s_add_u32 s58, s58, {F_U}", f"s_lshl_b32 s61, {sROLE}, 2", f"s_add_u32 s61, s61, {sFPO}",
          f"s_cmp_lt_u32 {sJJ}, 14", f"s_cselect_b32 s58, s58, {sFKV}", f"s_cselect_b32 s59, s59, {sFKV}",
          f"v_mov_b32 v14, {sFKV}", f"v_writelane_b32 v14, {sFCTX}, 1", "v_writelane_b32 v14, s61, 2", "v_writelane_b32 v14, s58, 3", "v_writelane_b32 v14, s59, 4",
          "v_mov_b32 v15, 0", "s_mov_b64 exec, 31", "buffer_store_dword v15, v14, s[12:15], 0 offen sc1", "s_mov_b64 exec, -1")
        a(f"{name}_noclr:")
        issue(dmas(8)(1))
        a("s_lshl_b32 s58, s39, 7", "s_lshl_b32 s59, s40, 3")
        frag_addrs("s58", "s59", 8)
        a(f"v_lshlrev_b32 v{VST}, 4, v0")
        def pair(pi): return Reg('v', 16 + 8 * pi, 8) if pi < 30 else Reg('a', 224 + 8 * (pi - 30), 8)
        acck = lambda x, y: pair(y * 4 + x // 2)[4 * (x % 2):4 * (x % 2) + 4]
        accv = lambda x, y: pair((y // 2) * 8 + x)[4 * (y % 2):4 * (y % 2) + 4]
        for i in range(16, 256, 2): a(f"v_mov_b64 v[{i}:{i+1}], 0")
        for i in range(224, 240): a(f"v_accvgpr_write_b32 a{i}, 0")
        xreg = lambda p, x, s_: Reg('a', (x * 2 + s_) * 4, 4)
        yreg = lambda p, y, s_: Reg('a', 64 + (y * 2 + s_) * 4, 4)
        G = [Gemm(8, 8, ac, sw, xreg, yreg, xaddr, yaddr, dmas(8), adv, o['b1'], o['b2'], o['gstep']) for ac, sw in ((acck, False), (accv, True))]
        print("kv pattern:", G[0].B.pattern()); print("over:", G[0].B.report())
        a("s_mov_b32 s61, 0", "s_waitcnt vmcnt(16)", "s_barrier")
        a(*G[0].preload[0])
        a(f"s_mul_i32 s55, {sI}, 6", "s_lshr_b32 s55, s55, 3", "s_cmp_lg_u32 s3, 0", "s_cmov_b32 s55, 64",
          "s_getreg_b32 s58, hwreg(HW_REG_XCC_ID, 0, 3)", "s_and_b32 s59, s58, 3", "s_lshl_b32 s59, s59, 3", "s_lshl_b32 s59, 1, s59",
          "s_and_b32 s58, s58, 4", f"s_lshl_b32 s62, {sX}, 3", "s_add_u32 s58, s58, s62",
          "v_mov_b32 v14, 128", "v_mov_b32 v15, 1", "v_writelane_b32 v14, s58, 0", "v_writelane_b32 v15, s59, 0")
        m.mark("kv_go")
        a(f"s_cmp_eq_u32 {sROLE}, 0", "s_waitcnt lgkmcnt(0)", f"s_cbranch_scc0 {name}_vloop")
        def loop(g, lab, niter, entry=None, side=False):
            B = g.B
            if side:
                k = [i for i in range(4, 40) if not B.pre[i] and not B.vec[i]][0]
                B.put(k, 's', "s_cmp_eq_u32 s61, s55"); B.put(k, 's', f"s_cbranch_scc1 {lab}_side"); B.put(k, 'S', f"{lab}_back:")
            B.put(1, 's', f"s_cmp_eq_u32 s61, {niter-1}"); B.put(1, 's', "s_cmov_b32 s6, 0")
            B.put(B.n - 2, 's', "s_add_u32 s61, s61, 1")
            B.put(B.n - 1, 'S', f"s_cmp_lt_u32 s61, {niter}"); B.put(B.n - 1, 'S', f"s_cbranch_scc1 {lab}")
            a(".p2align 6", f"{lab}:")
            a(*B.lines(0, g.T))
            if entry: a(f"{entry}:")
            a(*B.lines(g.T, B.n))
        loop(G[0], f"{name}_kloop", 8, side=True)
        a(f"s_branch {name}_kvdone")
        for lab in ("kloop", "vloop"):
            a(f"{name}_{lab}_side:", "s_mov_b64 exec, 3", f"global_atomic_add v14, v15, s[{pDbg}:{pDbg+1}] sc1", "s_mov_b64 exec, -1", f"s_branch {name}_{lab}_back")
        loop(G[1], f"{name}_vloop", 8, side=True)
        a(f"{name}_kvdone:")
        m.mark("kv_end")
        a("s_lshl_b32 s60, s63, 7")
        for j in range(1, 4): a(f"s_mov_b32 s{40+j}, {32*896*j}")
        a("s_waitcnt vmcnt(0) lgkmcnt(0)")
        act_voff("s60", 896); w_voff()
        srd(a, 4, pX, 2048 * 896); srd(a, 8, pWq, 448 * 8192)
        a("s_barrier")
        issue(dmas(4)(1)); issue(dmas(4)(0))
        a(f"s_lshl_b32 s58, {sX}, 3", "v_mov_b32 v13, s58", f"global_load_dwordx2 v[14:15], v13, s[{pDbg}:{pDbg+1}] sc1")
        a(f"s_lshl_b32 s58, {sH}, 20", f"s_lshl_b32 s59, {sI}, 17", "s_add_u32 s58, s58, s59", "s_lshl_b32 s59, s39, 16", "s_add_u32 s58, s58, s59",
          "s_lshl_b32 s59, s40, 12", f"s_lshl_b32 s59, s59, {sROLE}", "s_add_u32 s58, s58, s59", f"s_lshl_b32 s59, {sROLE}, 24", "s_add_u32 s58, s58, s59",
          f"s_cmp_eq_u32 {sROLE}, 0", "s_movk_i32 s44, 0x2000", "s_cselect_b32 s45, s44, 0x3000", "s_cselect_b32 s44, s44, 0x1000")
        def pack8(r):
            a(*[f"v_cvt_pk_bf16_f32 {r[i]}, {r[2*i]}, {r[2*i+1]}" for i in range(4)])
            return r[0:4]
        for pi in range(32):
            r = pair(pi)
            if r.kind == 'a':
                t = pair(pi - 30)
                for i in range(8): a(f"v_accvgpr_read_b32 {t[i]}, {r[i]}")
                r = t
            a(f"buffer_store_dwordx4 {pack8(r)}, v{VST}, s[12:15], s58 offen offset:{(pi%4)*1024}")
            if pi % 4 == 3: a(f"s_add_u32 s58, s58, s{44 + (pi//4)%2}")
        m.mark("q_go")
        a("s_waitcnt vmcnt(32)", "v_or_b32 v14, v14, v15", "v_and_b32 v14, 0x20202020, v14", "s_nop 0", "v_readfirstlane_b32 s30, v14")
        a("s_lshl_b32 s59, s3, 2")
        frag_addrs("0", "s59", 4)
        accq = lambda x, y: Reg('v', 128 + 8 * (y * 2 + x // 2) + 4 * (x % 2), 4)
        xq = lambda p, x, s_: Reg('a', p * 32 + (x * 2 + s_) * 4, 4)
        yq = lambda p, y, s_: Reg('a', 64 + p * 64 + (y * 2 + s_) * 4, 4)
        Qg = Gemm(4, 8, accq, False, xq, yq, xaddr, yaddr, dmas(4), adv, 22, 22, 3)
        print("q pattern:", Qg.B.pattern()); print("over:", Qg.B.report())
        for i in range(128, 256, 2): a(f"v_mov_b64 v[{i}:{i+1}], 0")
        a("s_mov_b32 s61, 0", "s_barrier")
        a(*Qg.preload[1]); a("s_waitcnt lgkmcnt(0)", f"s_branch {name}_qentry")
        loop(Qg, f"{name}_qloop", 4, entry=f"{name}_qentry")
        m.mark("q_end")
        cq = fbits(LOG2E / 16)
        a(f"s_mov_b32 s44, {cq}", f"s_mov_b32 s45, {cq}", f"s_lshl_b32 s58, {sH}, 20", "s_lshl_b32 s60, s63, 16", "s_add_u32 s58, s58, s60", "s_lshl_b32 s60, s3, 11",
          "s_add_u32 s58, s58, s60", f"s_add_u32 s58, s58, {WS_Q}", "s_nop 3")
        for y in range(8):
            for sx in range(2):
                r = Reg('v', 128 + 8 * (y * 2 + sx), 8)
                for i in range(4): a(f"v_pk_mul_f32 {r[2*i:2*i+2]}, {r[2*i:2*i+2]}, s[44:45]")
                a(f"buffer_store_dwordx4 {pack8(r)}, v{VST}, s[12:15], s58 offen offset:{sx*1024}")
            a("s_add_u32 s58, s58, 8192")
        m.publish(sFKV, 14, 15, local=True)
        m.mark("q_stored")

    def s1(m):
        a, name = m.a, m.n
        a(f"s_cmp_ge_u32 {sJJ}, 14", f"s_cbranch_scc1 {name}_s1end")
        a(f"s_and_b32 s33, {sIDX}, 31", f"s_lshr_b32 s34, {sIDX}, 5")
        a("v_lshrrev_b32 v1, 3, v0", "s_lshl_b32 s35, s3, 3", "v_add_u32 v1, s35, v1", "v_lshlrev_b32 v4, 8, v1", "v_lshlrev_b32 v1, 1, v1", "s_lshl_b32 s35, s33, 6", "v_add_u32 v1, s35, v1", "v_mul_u32_u24 v1, 896, v1",
          "v_and_b32 v3, 7, v0", "v_lshl_add_u32 v1, v3, 4, v1", "s_lshl_b32 s35, s34, 7", "v_add_u32 v1, s35, v1",
          "v_lshl_add_u32 v4, v3, 4, v4", "v_add_u32 v4, 0x20000, v4", "v_lshlrev_b32 v3, 6, v3", "s_lshl_b32 s35, s34, 9", "v_add_u32 v3, s35, v3")
        for j in range(3): a(f"v_subrev_u32 v{5+j}, {896*(3-j)}, v1")
        srd(a, 4, pAk, 2048 * 896); srd(a, 8, pAv, 2048 * 896); srd(a, 16, pAsh, 448 * 8)
        KR = lambda j: 16 + 4 * j; VR = lambda j: 36 + 4 * j; WR = 44
        for j in range(3): a(f"buffer_load_dwordx4 v[{KR(j)}:{KR(j)+3}], v{5+j}, s[4:7], 0 offen")
        for j in range(2): a(f"buffer_load_dwordx4 v[{KR(3+j)}:{KR(3+j)+3}], v1, s[4:7], 0 offen offset:{896*j}")
        for j in range(2): a(f"buffer_load_dwordx4 v[{VR(j)}:{VR(j)+3}], v1, s[8:11], 0 offen offset:{896*j}")
        for j in range(4): a(f"buffer_load_dwordx4 v[{WR+4*j}:{WR+4*j+3}], v3, s[16:19], 0 offen offset:{16*j}")
        a("s_mov_b32 s36, 0xffff0000", "s_waitcnt vmcnt(0)")
        def unpack(dst, src, hi): a(f"v_and_b32 v{dst}, s36, v{src}" if hi else f"v_lshlrev_b32 v{dst}, 16, v{src}")
        for c in range(8):
            for j in range(5): unpack(64 + j, KR(j) + c // 2, c % 2)
            for j in range(2): unpack(70 + j, VR(j) + c // 2, c % 2)
            for j in range(4): unpack(72 + j, WR + 2 * c + j // 2, j % 2)
            for t in range(2):
                d = 80 + 8 * t + c
                a(f"v_mul_f32 v{d}, v{64+t}, v75", f"v_fmac_f32 v{d}, v{65+t}, v74", f"v_fmac_f32 v{d}, v{66+t}, v73", f"v_fmac_f32 v{d}, v{67+t}, v72", f"v_mul_f32 v{d}, v{d}, v{70+t}")
        for t in range(2):
            for h in range(4): a(f"v_cvt_pk_bf16_f32 v{96+4*t+h}, v{80+8*t+2*h}, v{81+8*t+2*h}")
            a(f"ds_write_b128 v4, v[{96+4*t}:{99+4*t}] offset:{128*t}")
        a("v_bfe_u32 v5, v0, 2, 2", "v_bfe_u32 v6, v0, 4, 1", "v_lshl_add_u32 v5, v6, 3, v5", "v_lshlrev_b32 v5, 2, v5", "v_lshrrev_b32 v7, 5, v0", "v_add_u32 v5, v5, v7",
          "v_lshlrev_b32 v5, 7, v5", "v_and_b32 v8, 3, v0", "v_lshl_add_u32 v5, v8, 3, v5", "s_lshl_b32 s35, s3, 5", "s_add_u32 s35, s35, 0x20000", "v_add_u32 v5, s35, v5")
        a("v_and_b32 v9, 15, v0", "v_lshlrev_b32 v9, 12, v9", "v_lshrrev_b32 v8, 4, v0", "v_lshl_add_u32 v9, v8, 4, v9",
          "s_lshl_b32 s35, s34, 2", "s_add_u32 s35, s35, s3", "s_lshl_b32 s35, s35, 16", "s_lshl_b32 s37, s33, 7", "s_add_u32 s35, s35, s37", f"s_add_u32 s35, s35, {WS_U}")
        a("s_waitcnt lgkmcnt(0)", "s_barrier")
        for ph in range(2):
            for e in range(2): a(f"ds_read_b64_tr_b16 v[{16+4*ph+2*e}:{17+4*ph+2*e}], v5 offset:{(16*e + 2*ph)*128}")
        a("s_waitcnt lgkmcnt(0)")
        for ph in range(2): a(f"buffer_store_dwordx4 v[{16+4*ph}:{19+4*ph}], v9, s[12:15], s35 offen offset:{64*ph} sc1")
        a(f"s_lshl_b32 s35, {sIDX}, 2", f"s_add_u32 s35, s35, {F_U}")
        m.publish("s35", 14, 15)
        a(f"{name}_s1end:")
        m.mark("s1_done")

    def attn(m):
        a, name, o = m.a, m.n, m.o
        nA, L = o['nA'], o['L']
        sNB, sHB, sW8K, sMODE, sQB = "s38", "s49", "s50", "s54", "s51"
        dma = lambda sp, j: AT.dma(sp, j).replace(" lds", " sc1 lds")
        m.poll(128, 1, 14, 15, val=256, dbg=True)
        a(f"s_lshl_b32 s33, {sH}, 7", f"s_add_u32 s33, s33, {F_KV}")
        m.poll("s33", 16, 14, 15)
        m.mark("kv_flag")
        a(f"s_lshl_b32 s37, {sI}, 1", f"s_sub_i32 {sNB}, {32-nA}, s37", f"s_max_i32 {sNB}, {sNB}, 0",
          f"s_lshl_b32 {sHB}, {sH}, 20", f"s_lshl_b32 {sW8K}, s3, 13", f"s_add_u32 {sHB}, {sHB}, {sW8K}", f"s_mov_b32 {sQB}, s63")
        a("s_add_u32 s53, s37, 2", "s_sub_u32 s55, 32, s37", f"s_sub_u32 s55, s55, {sNB}", f"s_cmp_eq_u32 {sROLE}, 0", "s_cselect_b32 s53, s53, s55",
          f"s_cselect_b32 s52, 0, {sNB}", f"s_cselect_b32 {sMODE}, 0, 2")
        a(f"v_lshlrev_b32 v{V_L16}, 4, v0", f"v_add_u32 v{V_D1}, 4096, v{V_L16}")
        a("s_lshl_b32 s55, s52, 15", f"s_add_u32 s{S_KP}, s55, {sHB}", f"s_add_u32 s{S_VP}, s{S_KP}, {WS_V}",
          f"s_mov_b32 s{S_KM}, {sW8K}", f"s_add_u32 s{S_VM}, {sW8K}, 0x10000")
        def issue(sm, sp):
            a(f"s_mov_b32 m0, s{sm}", "s_nop 0")
            for j in range(8):
                if j == 4: a("s_bitset1_b32 m0, 12", "s_nop 0")
                a(dma(sp, j))
            a(f"s_add_u32 s{sp}, s{sp}, 0x8000", f"s_xor_b32 s{sm}, s{sm}, 0x8000")
        def qload(qb, dst):
            a(f"s_lshl_b32 s55, {qb}, 16", f"s_add_u32 s55, s55, {sHB}", f"s_add_u32 s55, s55, {WS_Q}", "s_add_u32 s56, s55, 0x8000")
            for qs in range(2):
                for s in range(8): a(f"buffer_load_dwordx4 a[{dst+(qs*8+s)*4}:{dst+(qs*8+s)*4+3}], v{V_D0 if s < 4 else V_D1}, s[12:15], s{55+qs} offen offset:{(s%4)*1024} sc1")
        issue(S_KM, S_KP); qload(sQB, 0); issue(S_KM, S_KP); issue(S_VM, S_VP)
        a(f"v_and_b32 v{V_R}, 15, v0", f"v_lshrrev_b32 v{V_T0}, 4, v0", f"v_lshlrev_b32 v{V_T0}, 2, v{V_T0}", f"v_sub_u32 v{V_R}, v{V_R}, v{V_T0}",
          "s_lshl_b32 s48, s3, 4", f"v_add_u32 v{V_R}, s48, v{V_R}")
        a(f"v_mov_b32 v{V_KA}, v{V_L16}", f"v_add_u32 v{V_VA}, 0x10000, v{V_L16}")
        for i in range(96, 256, 2): a(f"v_mov_b64 v[{i}:{i+1}], 0")
        for r in LS + NM: a(f"v_mov_b32 {r}, 0")
        BIG = fbits(2.0**24)
        a(f"s_mov_b32 s{S_BIG}, {BIG}", f"s_mov_b32 s{S_THR}, 2", f"s_sub_u32 s{S_LEFT}, s53, 1")
        def mask(qs):
            a(f"v_mov_b32 v{V_T0}, {fbits(-1e30)}")
            for kb in range(4):
                for i in range(4): a(f"v_cmp_gt_i32 s[{16+2*i}:{17+2*i}], {16*kb+i}, v{V_R}")
                for i in range(4): a(f"v_cndmask_b32 {C(kb,qs)[i]}, {NM[qs]}, v{V_T0}, s[{16+2*i}:{17+2*i}]")
        a(f"s_cmp_ge_u32 s{S_LEFT}, 2", f"s_cbranch_scc1 {name}_nomask0")
        mask(0)
        a(f"{name}_nomask0:", "s_waitcnt vmcnt(16)", "s_barrier")
        m.mark("att_go")
        B0 = Body(64, cyclic=False); set_qk(B0, 0)
        for n in range(8): a(fload(n))
        a("s_waitcnt lgkmcnt(0)")
        for n in range(8, 32): B0.put(2 * n - 16, 'd', fload(n), F(n))
        B0.auto_lgkm(look=2, maxcnt=15)
        rest = []; te = 0; ta = 0; epos = {}
        els = [(kb, qs, i) for kb in range(4) for qs in range(2) for i in range(4)]
        ex = lambda kb, qs, i: f"v_exp_f32 {E(kb,qs)[i]}, {S(kb,qs)[i]}"
        ad = lambda kb, qs, i: f"v_add_f32 {TS[qs]}, {E(0,qs)[0] if (kb == 0 and i == 1) else TS[qs]}, {E(kb,qs)[i]}"
        for el in els:
            try: te = B0.place(max(te, 16 * el[0] + 8 * el[1] + 13), 64, 'e', ex(*el)); epos[el] = te
            except RuntimeError: te = 64; rest.append(ex(*el))
        rest2 = []
        for el in els:
            if el[0] == 0 and el[2] == 0: continue
            try: ta = B0.place(max(ta + 1, epos.get(el, 64) + 1), 64, 'v', ad(*el))
            except RuntimeError: ta = 64; rest2.append(ad(*el))
        print("first pattern:", B0.pattern(), len(rest), len(rest2))
        a(*B0.lines())
        a(f"v_xor_b32 v{V_KA}, 0x8000, v{V_KA}", "s_waitcnt vmcnt(8)", "s_barrier")
        for n in range(L // 2): a(fload(n))
        a(*rest); a(*rest2)
        a(f"{name}_first:", f"v_add_f32 v{V_T0}, {TS[0]}, {TS[1]}", f"v_min_f32 v{V_T1}, {TS[0]}, {TS[1]}", f"v_cmp_nge_f32 vcc, s{S_BIG}, v{V_T0}",
          f"s_mov_b32 s{S_FLOOR}, 0xff800000", f"s_cbranch_vccnz {name}_slow2", f"v_cmp_gt_f32 vcc, {fbits(2.0**-24)}, v{V_T1}", f"s_cbranch_vccnz {name}_slow2",
          f"s_mov_b32 s{S_FLOOR}, 0", "s_waitcnt lgkmcnt(0)", f"s_branch {name}_ret")
        a(f"{name}_slow:", f"s_cmp_lg_u32 s{S_BIG}, {BIG}", f"s_cbranch_scc1 {name}_switched", "s_nop 5", f"{name}_slow2:")
        for qs in range(2):
            mx, t = f"v{V_T0+qs}", f"v{V_T2}"
            el = [S(kb, qs)[i] for kb in range(4) for i in range(4)]
            a(f"v_max3_f32 {mx}, {el[0]}, {el[1]}, {el[2]}")
            for k in range(3, 15, 2): a(f"v_max3_f32 {mx}, {mx}, {el[k]}, {el[k+1]}")
            a(f"v_max_f32 {mx}, {mx}, {el[15]}")
            for sw in ("v_permlane32_swap_b32", "v_permlane16_swap_b32"):
                a(f"v_mov_b32 {t}, {mx}", "s_nop 1", f"{sw} {mx}, {t}", "s_nop 1", f"v_max_f32 {mx}, {mx}, {t}")
            a(f"v_max_f32 {mx}, s{S_FLOOR}, {mx}", f"v_sub_f32 {NM[qs]}, {NM[qs]}, {mx}")
            for e in el: a(f"v_sub_f32 {e}, {e}, {mx}")
            for kb in range(4):
                for i in range(4): a(f"v_exp_f32 {E(kb,qs)[i]}, {S(kb,qs)[i]}", f"v_mov_b32 {C(kb,qs)[i]}, {NM[qs]}")
            ee = [E(kb, qs)[i] for kb in range(4) for i in range(4)]
            a(f"v_add_f32 {TS[qs]}, {ee[0]}, {ee[1]}")
            for k in range(2, 16): a(f"v_add_f32 {TS[qs]}, {TS[qs]}, {ee[k]}")
        a("s_waitcnt lgkmcnt(0)", f"s_cmp_lg_u32 s{S_FLOOR}, 0", f"s_mov_b32 s{S_FLOOR}, 0", f"s_cbranch_scc1 {name}_ret")
        for qs in range(2):
            f = f"v{V_T0+qs}"
            a(f"v_exp_f32 {f}, -{f}", "s_nop 0", f"v_mul_f32 {LS[qs]}, {LS[qs]}, {f}")
            for db in range(16):
                for i in range(4): a(f"v_mul_f32 {O(db,qs)[i]}, {O(db,qs)[i]}, {f}")
        a(f"s_branch {name}_ret")
        B = AT.main_body(name, L)
        for i in range(B.n): B.vec[i] = [(k, t.replace(" lds", " sc1 lds") if k == 'g' else t, d, s_) for k, t, d, s_ in B.vec[i]]
        print("attn pattern:", B.pattern()); print("over:", B.report())
        a(".p2align 6", f"{name}_loop:")
        a(*B.lines())
        a(f"{name}_ret:", f"s_cmp_gt_u32 s{S_LEFT}, s{S_THR}", f"s_cbranch_scc1 {name}_loop")
        a(f"s_cmp_eq_u32 s{S_LEFT}, 0", f"s_cbranch_scc1 {name}_segend", f"s_cmp_eq_u32 s{S_LEFT}, 1", f"s_cbranch_scc1 {name}_d1")
        mask(0); a("s_nop 0", f"s_branch {name}_loop")
        a(f"{name}_d1:")
        a(f"s_cmp_eq_u32 {sMODE}, 0", f"s_cselect_b32 s57, {sNB}, 0", "s_cmp_lg_u32 s57, 0", f"s_cselect_b32 s{S_KP}, {sHB}, 0xf0000000", f"s_cbranch_scc0 {name}_d1b",
          f"s_sub_u32 s58, 15, {sI}")
        qload("s58", 128)
        a(f"{name}_d1b:")
        mask(1)
        for kb in range(4):
            for i in range(4): a(f"v_mov_b32 {C(kb,0)[i]}, v{V_T0}")
        a("s_nop 0", f"s_branch {name}_loop")
        a(f"{name}_segend:", f"s_cmp_eq_u32 {sMODE}, 0", f"s_cselect_b32 s57, {sNB}, 0", "s_cmp_eq_u32 s57, 0", f"s_cbranch_scc1 {name}_tail")
        for i in range(64): a(f"v_accvgpr_mov_b32 a{i}, a{128+i}")
        for i in range(96, 128, 2): a(f"v_mov_b64 v[{i}:{i+1}], 0")
        a(f"s_add_u32 s{S_VP}, {sHB}, {WS_V}", f"s_mov_b32 s{S_LEFT}, {sNB}", f"s_mov_b32 s{S_THR}, 0", f"s_mov_b32 s{S_BIG}, -1.0", f"s_branch {name}_loop")
        def lsum():
            for qs in range(2):
                l, t = LS[qs], f"v{V_T2}"
                for sw in ("v_permlane32_swap_b32", "v_permlane16_swap_b32"):
                    a(f"v_mov_b32 {t}, {l}", "s_nop 1", f"{sw} {l}, {t}", "s_nop 1", f"v_add_f32 {l}, {l}, {t}")
        def pack(qs, s):
            r = Reg('v', O(2 * s, qs).lo, 8)
            a(*[f"v_cvt_pk_bf16_f32 {r[i]}, {r[2*i]}, {r[2*i+1]}" for i in range(4)])
            return r[0:4]
        def scale_store(fl):
            for qs in range(2):
                sel = "op_sel:[0,0] op_sel_hi:[1,0]" if qs == 0 else "op_sel:[0,1] op_sel_hi:[1,1]"
                for s in range(8):
                    r = Reg('v', O(2 * s, qs).lo, 8)
                    for i in range(4): a(f"v_pk_mul_f32 {r[2*i:2*i+2]}, {r[2*i:2*i+2]}, v[16:17] {sel}")
                    a(f"buffer_store_dwordx4 {pack(qs, s)}, v{V_D0 if s < 4 else V_D1}, s[12:15], s{55+qs} offen offset:{(s%4)*1024}{fl}")
        def ctx_addr():
            a(f"s_lshl_b32 s55, {sQB}, 20", "s_lshl_b32 s57, s3, 17", "s_add_u32 s55, s55, s57", f"s_lshl_b32 s57, {sH}, 13", "s_add_u32 s55, s55, s57",
              f"s_add_u32 s55, s55, {WS_CTX}", "s_add_u32 s56, s55, 0x80000")
        a(f"{name}_switched:")
        m.mark("seg1_end")
        lsum()
        for qs in range(2): a(f"v_rcp_f32 v{16+qs}, {LS[qs]}")
        ctx_addr(); scale_store(" sc1")
        a("s_nop 0")
        for i in range(128, 256, 2): a(f"v_mov_b64 v[{i}:{i+1}], 0")
        for r in LS + NM: a(f"v_mov_b32 {r}, 0")
        a(f"s_mov_b32 s{S_BIG}, {BIG}", f"s_mov_b32 {sMODE}, 1")
        m.publish(sFCTX, V_T0, V_T1)
        m.mark("seg1_fin")
        a(f"s_branch {name}_first")
        a(f"{name}_tail:", "s_waitcnt vmcnt(0) lgkmcnt(0)", "s_barrier")
        for n in range(32, 40): a(fload(n))
        a(*cvts())
        for q in range(2): a(f"v_add_f32 {LS[q]}, {LS[q]}, {TS[q]}")
        a("s_waitcnt lgkmcnt(0)")
        BT = Body(64, cyclic=False); set_pv(BT, 0)
        for n in range(40, 64): BT.put(2 * (n - 32) - 16, 'd', fload(n), F(n))
        BT.auto_lgkm(look=2, maxcnt=15)
        a(*BT.lines())
        m.mark("tail_end")
        lsum()
        for qs in range(2): a(f"v_log_f32 {TS[qs]}, {LS[qs]}", f"v_rcp_f32 v{16+qs}, {LS[qs]}")
        for qs in range(2): a(f"v_sub_f32 {TS[qs]}, {TS[qs]}, {NM[qs]}")
        a(f"s_cmp_eq_u32 {sNB}, 0", f"s_cbranch_scc1 {name}_store")
        a("s_and_b32 s39, s2, 127", "s_lshl_b32 s55, s39, 16", "s_lshl_b32 s57, s3, 14", "s_add_u32 s55, s55, s57", f"s_add_u32 s55, s55, {WS_PO}", "s_add_u32 s56, s55, 0x2000",
          "s_lshl_b32 s57, s39, 2", "s_add_u32 s57, s57, s3", "s_lshl_b32 s57, s57, 9", f"s_add_u32 s57, s57, {WS_PL}", f"v_lshrrev_b32 v{V_T3}, 2, v{V_L16}")
        a(f"s_cmp_eq_u32 {sMODE}, 2", f"s_cbranch_scc1 {name}_merge")
        for qs in range(2): a(f"buffer_store_dword {TS[qs]}, v{V_T3}, s[12:15], s57 offen offset:{256*qs}")
        scale_store("")
        m.publish(sFPO, V_T0, V_T1, local=True)
        a(f"s_branch {name}_attdone")
        a(f"{name}_merge:")
        m.poll(sFPO, 1, V_T0, V_T1)
        for qs in range(2): a(f"buffer_load_dword v{18+qs}, v{V_T3}, s[12:15], s57 offen offset:{256*qs} sc1")
        PB = lambda qs, s: Reg('v', 32 + (qs * 8 + s) * 4, 4)
        for qs in range(2):
            for s in range(8): a(f"buffer_load_dwordx4 {PB(qs,s)}, v{V_D0 if s < 4 else V_D1}, s[12:15], s{55+qs} offen offset:{(s%4)*1024} sc1")
        a("s_waitcnt vmcnt(16)")
        for qs in range(2):
            a(f"v_max_f32 v20, v{18+qs}, {TS[qs]}", f"v_sub_f32 v21, {TS[qs]}, v20", f"v_sub_f32 v22, v{18+qs}, v20",
              "v_exp_f32 v21, v21", "v_exp_f32 v22, v22", "s_nop 0", "v_add_f32 v20, v21, v22", "v_rcp_f32 v20, v20", "s_nop 0",
              "v_mul_f32 v21, v21, v20", f"v_mul_f32 v{18+qs}, v22, v20", f"v_mul_f32 v{16+qs}, v{16+qs}, v21")
        ctx_addr(); a("s_mov_b32 s59, 0xffff0000")
        for qs in range(2):
            sel = "op_sel:[0,0] op_sel_hi:[1,0]" if qs == 0 else "op_sel:[0,1] op_sel_hi:[1,1]"
            sel3 = "op_sel:[0,0,0] op_sel_hi:[1,0,1]" if qs == 0 else "op_sel:[0,1,0] op_sel_hi:[1,1,1]"
            for s in range(8):
                a("s_waitcnt vmcnt(15)")
                r = Reg('v', O(2 * s, qs).lo, 8)
                for k in range(4):
                    pb = PB(qs, s)[k]; t = Reg('v', 24 + 2 * k, 2)
                    a(f"v_lshlrev_b32 {t[0]}, 16, {pb}", f"v_and_b32 {t[1]}, s59, {pb}", f"v_pk_mul_f32 {t}, {t}, v[18:19] {sel}",
                      f"v_pk_fma_f32 {r[2*k:2*k+2]}, {r[2*k:2*k+2]}, v[16:17], {t} {sel3}")
                a(f"buffer_store_dwordx4 {pack(qs, s)}, v{V_D0 if s < 4 else V_D1}, s[12:15], s{55+qs} offen offset:{(s%4)*1024} sc1")
        a(f"s_branch {name}_pubctx")
        a(f"{name}_store:")
        ctx_addr(); scale_store(" sc1")
        a(f"{name}_pubctx:")
        m.publish(sFCTX, V_T0, V_T1)
        a(f"{name}_attdone:")
        m.mark("att_fin")

    def s2(m):
        a, name = m.a, m.n
        a(f"s_cmp_lg_u32 {sROLE}, 0", f"s_cbranch_scc1 {name}_s2end")
        WB = 38912; UB, RB, RS = 0, 4608, 8224; KB = RB + 3 * RS
        a(f"s_lshr_b32 s33, {sIDX}, 4", "s_lshl_b32 s33, s33, 7", f"s_add_u32 s33, s33, {F_U}")
        m.poll("s33", 32, 14, 15)
        a(f"s_lshl_b32 s34, {sIDX}, 2", "s_add_u32 s34, s34, s3", "s_lshl_b32 s35, s34, 12", f"s_add_u32 s36, s35, {WS_U}", f"s_mul_i32 s37, s3, {WB}",
          "s_lshr_b32 s38, s34, 1", "s_lshl_b32 s38, s38, 2", f"s_load_dword s39, s[{pAD}:{pAD+1}], s38")
        srd(a, 4, pAssm, 448 * 4096)
        a("v_lshlrev_b32 v1, 4, v0", "v_lshrrev_b32 v3, 1, v0", "v_lshlrev_b32 v3, 7, v3", "v_and_b32 v4, 1, v0", "v_lshl_add_u32 v3, v4, 4, v3")
        a(f"s_add_u32 m0, s37, {KB + 256}", "s_nop 0")
        for k in range(4): a(f"buffer_load_dwordx4 v1, s[4:7], s35 offen offset:{1024*k} lds")
        for p in range(4): a(f"s_add_u32 m0, s37, {UB + p*1152 + 128 - 32*p}", "s_nop 0", f"buffer_load_dwordx4 v3, s[12:15], s36 offen offset:{32*p} sc1 lds")
        a("v_mov_b32 v8, 0", "v_lshlrev_b32 v5, 2, v0", "v_add_u32 v5, s37, v5", "v_and_b32 v6, 31, v0", "v_lshlrev_b32 v6, 2, v6", "v_add_u32 v6, s37, v6")
        a(f"ds_write_b32 v5, v8 offset:{KB}")
        for p in range(4): a(f"ds_write_b32 v6, v8 offset:{UB + p*1152}")
        for p in (1, 2): a(f"ds_write_b32 v6, v8 offset:{RB + p*RS}")
        a("v_and_b32 v14, 15, v0", "v_lshrrev_b32 v15, 4, v0", "v_lshlrev_b32 v9, 3, v14", "v_lshl_add_u32 v9, v15, 4, v9", "v_add_u32 v9, s37, v9",
          "v_and_b32 v10, 3, v0", "v_bfe_u32 v4, v0, 2, 2", "v_sub_u32 v10, v10, v4", "v_lshlrev_b32 v4, 3, v15", "v_sub_u32 v10, v10, v4", "v_add_u32 v10, 56, v10", "v_lshlrev_b32 v10, 3, v10", "v_add_u32 v10, s37, v10",
          "v_lshl_add_u32 v11, v15, 6, v14", "v_lshlrev_b32 v11, 2, v11", "v_add_u32 v11, s37, v11",
          "v_lshlrev_b32 v12, 5, v0", "v_add_u32 v12, s37, v12")
        a(f"s_add_u32 s42, s35, {WS_Y}", "s_mov_b32 s45, 0xffff0000", "s_waitcnt vmcnt(0) lgkmcnt(0)",
          "s_lshl_b32 s43, s39, 16", "s_and_b32 s44, s39, s45", "s_bitcmp1_b32 s3, 0", "s_cselect_b32 s43, s44, s43")
        X = lambda n: Reg('a', 4 * n, 4); Z = lambda p, d: Reg('a', 64 + 64 * (p % 2) + 4 * d, 4); AC = lambda p, c: Reg('v', 32 + 32 * (p % 2) + 4 * c, 4)
        xl = lambda n, e: f"ds_read_b64_tr_b16 {X(n)[2*e:2*e+2]}, v10 offset:{KB + 256*n + 32*(1-e)}"
        zl = lambda p, d, e: f"ds_read_b64 {Z(p,d)[2*e:2*e+2]}, v9 offset:{UB + p*1152 + 8 + 64*d + 8*e}"
        B = Body(288, cyclic=False)
        n = 0; endc = {}
        for p in range(4):
            for c in range(8):
                for k in range(2 * c + 2):
                    B.set_mfma(n, AC(p, c), Z(p, 2 * c - k + 1), X(k), 0 if k == 0 else AC(p, c)); n += 1
                endc[p, c] = n - 1
        PRE = 8
        for d in range(PRE):
            a(xl(d, 0), xl(d, 1), zl(0, d, 0), zl(0, d, 1))
            if d % 3 == 2: a("s_waitcnt lgkmcnt(4)")
        a("s_waitcnt lgkmcnt(0)")
        t = -1
        for d in range(PRE, 16):
            for tx, r in ((xl(d, 0), X(d)[0:2]), (xl(d, 1), X(d)[2:4]), (zl(0, d, 0), Z(0, d)[0:2]), (zl(0, d, 1), Z(0, d)[2:4])): t = B.place(t + 1, 288, 'd', tx, r)
        for p in range(1, 4):
            t = max(t, 72 * (p - 1) + 30)
            for d in range(16):
                for e in range(2): t = B.place(t + 1, 288, 'd', zl(p, d, e), Z(p, d)[2*e:2*e+2])
        late = []; t = 64
        for p in range(4):
            for c in range(8):
                for r in range(4):
                    tx = f"ds_write_b32 v11, {AC(p,c)[r]} offset:{RB + p*RS + 4*p + 1024*c + 64*r}"
                    try:
                        t = B.place(max(t + 1, endc[p, c] + 9), 288, 'd', tx)
                        assert p >= 2 or t < 72 * (p + 2) + c * (c + 1) - 1, (p, c, t)
                    except RuntimeError: t = 288; late.append(tx)
        B.auto_lgkm(look=2, maxcnt=15)
        print("s2 pattern:", B.pattern(), len(late))
        a(*B.lines()); a("s_nop 7"); a(*late)
        a("s_waitcnt lgkmcnt(0)")
        for q in range(4):
            b = 96 + 40 * (q % 2)
            for p in range(4):
                for h in range(2): a(f"ds_read_b128 v[{b+8*p+4*h}:{b+3+8*p+4*h}], v12 offset:{RB + RS*p + 2048*q + 16*h}")
                a(f"ds_read_b32 v{b+32+p}, v5 offset:{UB + 1152*p + 128 + 256*q}")
            a("s_waitcnt lgkmcnt(0)")
            for k in range(0, 8, 2):
                a(f"v_pk_add_f32 v[{b+k}:{b+k+1}], v[{b+k}:{b+k+1}], v[{b+8+k}:{b+9+k}]", f"v_pk_add_f32 v[{b+16+k}:{b+17+k}], v[{b+16+k}:{b+17+k}], v[{b+24+k}:{b+25+k}]",
                  f"v_pk_add_f32 v[{b+k}:{b+k+1}], v[{b+k}:{b+k+1}], v[{b+16+k}:{b+17+k}]")
            for k in range(8):
                a(f"v_and_b32 v16, s45, v{b+32+k%4}" if k >= 4 else f"v_lshlrev_b32 v16, 16, v{b+32+k%4}", f"v_fmac_f32 v{b+k}, s43, v16")
            for h in range(4): a(f"v_cvt_pk_bf16_f32 v{b+36+h}, v{b+2*h}, v{b+2*h+1}")
            a(f"buffer_store_dwordx4 v[{b+36}:{b+39}], v1, s[12:15], s42 offen offset:{1024*q} sc1")
        a(f"s_lshl_b32 s35, {sIDX}, 2", f"s_add_u32 s35, s35, {F_Y}")
        m.publish("s35", 14, 15)
        m.mark("s2_end")
        a(f"{name}_s2end:")

    def outp(m):
        a, name, D = m.a, m.n, m.o['D']
        a(f"s_lshl_b32 s33, {sX}, 1", f"s_and_b32 s34, {sJJ}, 1", "s_add_u32 s33, s33, s34", f"s_xor_b32 s34, {sROLE}, 1", "s_lshl_b32 s34, s34, 4", "s_add_u32 s33, s33, s34",
          f"s_lshr_b32 s34, {sJJ}, 1")
        a("v_lshlrev_b32 v1, 4, v0")
        a("v_lshrrev_b32 v3, 3, v0", "v_mul_u32_u24 v4, 896, v3", "v_and_b32 v3, 6, v3", "v_xor_b32 v3, v3, v0", "v_and_b32 v3, 7, v3", "v_lshl_add_u32 v3, v3, 4, v4")
        a("v_lshrrev_b32 v8, 2, v0", "v_lshlrev_b32 v4, 7, v8", "v_bfe_u32 v8, v8, 1, 2", "v_lshl_add_u32 v4, v8, 5, v4", "v_and_b32 v8, 3, v0", "v_lshl_add_u32 v4, v8, 3, v4",
          "s_lshl_b32 s35, s3, 15", "v_add_u32 v4, s35, v4")
        for mb in range(1, 4): a(f"v_xor_b32 v{4+mb}, {32*mb}, v4")
        a(f"s_mul_i32 s36, s3, {1024*896}", "s_lshl_b32 s41, s34, 7", "s_add_u32 s36, s36, s41",
          "s_lshl_b32 s37, s33, 19", "s_add_u32 s37, s37, s35", f"s_add_u32 s37, s37, {WS_CTX}")
        for j in range(1, 4): a(f"v_add_u32 v{8+j}, {j*0x20000}, v1", f"v_add_u32 v{12+j}, {j*8*896}, v3")
        cv = [1, 9, 10, 11]; wv = [3, 13, 14, 15]
        srd(a, 4, pWo, 4096 * 896); srd(a, 8, pOut, 2048 * 1792); srd(a, 16, pAq, 2048 * 896)
        NS = 8
        CT = lambda sl, qb: Reg('a', sl * 16 + qb * 4, 4)
        W = lambda b, mb: Reg('v', 32 + b * 16 + mb * 4, 4)
        AC = lambda mb, qb: Reg('v', 64 + (mb * 4 + qb) * 4, 4)
        wl = lambda sl, j: (f"s_add_u32 m0, s35, {sl*4096 + j*1024}", f"buffer_load_dwordx4 v{wv[j]}, s[4:7], s36 offen lds")
        cl = lambda sl, j: (None, f"buffer_load_dwordx4 {CT(sl,j)}, v{cv[j]}, s[12:15], s37 offen sc1")
        loads = lambda sl: [x for j in range(4) for x in (wl(sl, j), cl(sl, j))]
        adv = [f"s_add_u32 s36, s36, {32*896}", "s_add_u32 s37, s37, 1024"]
        for sl in range(D):
            for j in range(4): a(wl(sl, j)[0], "s_nop 0", wl(sl, j)[1])
            a(adv[0])
        for i in range(64, 128, 2): a(f"v_mov_b64 v[{i}:{i+1}], 0")
        a("s_lshr_b32 s44, s33, 1", "s_lshl_b32 s44, s44, 7", f"s_add_u32 s44, s44, {F_CTX}")
        m.poll("s44", 16, 16, 17)
        m.mark("ctx_flag")
        for sl in range(D):
            for j in range(4): a(cl(sl, j)[1])
            a(adv[1])
        def trs(b, sl): return [f"ds_read_b64_tr_b16 {W(b,mb)[2*e:2*e+2]}, v{4+mb} offset:{sl*4096 + e*2048}" for mb in range(4) for e in range(2)]
        a(*trs(0, 0))
        a("s_waitcnt vmcnt(0)")
        m.mark("p4_go")
        a("s_mov_b32 s42, 0", "s_mov_b32 s43, 0xf0000000")
        a(".p2align 6", f"{name}_oloop:")
        for sl in range(NS):
            if sl == NS - D: a("s_cmp_eq_u32 s42, 3", "s_cmov_b32 s36, s43", "s_cmov_b32 s37, s43")
            a(f"s_waitcnt vmcnt({8*(D-2)}) lgkmcnt(0)")
            tr = trs((sl + 1) % 2, (sl + 1) % NS); ld = loads((sl + D) % NS)
            k = 0
            for mb in range(4):
                for qb in range(4):
                    a(mfma(AC(mb, qb), W(sl % 2, mb), CT(sl, qb), AC(mb, qb)))
                    if k % 2 == 0:
                        if ld[k // 2][0]: a(ld[k // 2][0])
                        a(tr[k // 2])
                    else: a(ld[k // 2][1])
                    k += 1
            a(*adv)
        a("s_add_u32 s42, s42, 1", "s_cmp_lt_u32 s42, 4", f"s_cbranch_scc1 {name}_oloop")
        m.mark("p4_loop")
        a("s_lshl_b32 s44, s34, 6", f"s_add_u32 s44, s44, {F_Y}", "s_waitcnt lgkmcnt(0)")
        m.poll("s44", 16, 16, 17)
        a("v_lshrrev_b32 v8, 3, v0", "v_lshlrev_b32 v8, 12, v8", "v_and_b32 v9, 7, v0", "v_lshl_add_u32 v8, v9, 4, v8",
          "s_lshl_b32 s44, s34, 2", "s_add_u32 s44, s44, s3", "s_lshl_b32 s44, s44, 16", "s_lshl_b32 s45, s33, 7", "s_add_u32 s44, s44, s45", f"s_add_u32 s44, s44, {WS_Y}",
          "s_lshl_b32 s45, s3, 11", "s_add_u32 m0, s45, 0x20000", "s_nop 0", "buffer_load_dwordx4 v8, s[12:15], s44 offen sc1 lds",
          "s_add_u32 m0, s45, 0x20400", "s_add_u32 s44, s44, 0x8000", "buffer_load_dwordx4 v8, s[12:15], s44 offen sc1 lds")
        a("s_lshl_b32 s44, s33, 6", "s_lshl_b32 s45, s3, 4", "s_add_u32 s44, s44, s45", "v_and_b32 v9, 15, v0", "v_add_u32 v9, s44, v9", "v_mul_u32_u24 v9, 896, v9",
          "v_lshrrev_b32 v10, 4, v0", "v_lshlrev_b32 v10, 4, v10", "v_add_u32 v10, s41, v10", "v_add_u32 v11, v9, v10", "v_lshl_add_u32 v12, v9, 1, v10")
        for h in range(2): a(f"buffer_load_dwordx4 v[{16+4*h}:{19+4*h}], v11, s[16:19], 0 offen offset:{64*h}")
        a("v_and_b32 v9, 15, v0", "v_mul_u32_u24 v9, 272, v9", "v_lshrrev_b32 v10, 4, v0", "v_lshl_add_u32 v9, v10, 4, v9", "v_add_u32 v9, s35, v9")
        for mb in range(4):
            for qb in range(4): a(f"ds_write_b128 v9, {AC(mb,qb)} offset:{qb*16*272 + mb*64}")
        a("v_lshrrev_b32 v9, 3, v0", "v_add_u32 v9, s45, v9", "v_mul_u32_u24 v13, 272, v9", "v_and_b32 v10, 7, v0", "v_lshl_add_u32 v13, v10, 5, v13", "v_add_u32 v14, 0x10000, v13",
          "s_lshl_b32 s44, s33, 6", "v_add_u32 v9, s44, v9", "v_mul_u32_u24 v9, 1792, v9", "v_lshl_add_u32 v9, v10, 4, v9", "s_add_u32 s46, s41, 896", "s_add_u32 s47, s46, 14336")
        a("v_lshrrev_b32 v10, 4, v0", "v_lshlrev_b32 v10, 3, v10", "v_bfe_u32 v15, v0, 2, 2", "v_add_u32 v10, v10, v15", "v_lshlrev_b32 v10, 7, v10", "v_and_b32 v15, 3, v0", "v_lshl_add_u32 v10, v15, 3, v10",
          "s_lshl_b32 s48, s3, 5", "s_add_u32 s48, s48, 0x20000", "v_add_u32 v10, s48, v10", "s_mov_b32 s49, 0xffff0000")
        a("s_waitcnt vmcnt(0) lgkmcnt(0)", "s_barrier")
        for h in range(2):
            for e in range(2): a(f"ds_read_b64_tr_b16 v[{24+4*h+2*e}:{25+4*h+2*e}], v10 offset:{(32*h + 4*e)*128}")
        for hh in range(2):
            for w in range(4):
                for h in range(2): a(f"ds_read_b128 v[{64+32*hh+8*w+4*h}:{67+32*hh+8*w+4*h}], v{13 + w//2} offset:{(w%2)*32768 + hh*8*272 + 16*h}")
            if hh == 0: a("s_waitcnt lgkmcnt(8)")
        for h in range(2):
            for k in range(4):
                a(f"v_lshlrev_b32 v32, 16, v{16+4*h+k}", f"v_lshlrev_b32 v33, 16, v{24+4*h+k}", f"v_and_b32 v34, s49, v{16+4*h+k}", f"v_and_b32 v35, s49, v{24+4*h+k}",
                  "v_mul_f32 v32, v32, v33", "v_mul_f32 v34, v34, v35", f"v_cvt_pk_bf16_f32 v{40+4*h+k}, v32, v34")
            a(f"buffer_store_dwordx4 v[{40+4*h}:{43+4*h}], v12, s[8:11], 0 offen offset:{64*h}")
        a("s_waitcnt lgkmcnt(0)")
        for hh in range(2):
            b = 64 + 32 * hh
            for k in range(0, 8, 2):
                a(f"v_pk_add_f32 v[{b+k}:{b+k+1}], v[{b+k}:{b+k+1}], v[{b+8+k}:{b+9+k}]", f"v_pk_add_f32 v[{b+16+k}:{b+17+k}], v[{b+16+k}:{b+17+k}], v[{b+24+k}:{b+25+k}]",
                  f"v_pk_add_f32 v[{b+k}:{b+k+1}], v[{b+k}:{b+k+1}], v[{b+16+k}:{b+17+k}]")
            for k in range(4): a(f"v_cvt_pk_bf16_f32 v{48+4*hh+k}, v{b+2*k}, v{b+2*k+1}")
            a(f"buffer_store_dwordx4 v[{48+4*hh}:{51+4*hh}], v9, s[8:11], s{46+hh} offen")
        m.mark("p4_end")

def mega(a, name, diag=False, **o):
    m = Mega(a, name, diag, **o)
    kernel_header(a, name)
    a("s_cmp_lt_u32 s2, 256", f"s_cbranch_scc1 {name}_go", "s_endpgm", f"{name}_go:")
    m.proj(); m.s1(); m.attn()
    a(f"s_cmp_ge_u32 {sJJ}, 14", f"s_cbranch_scc1 {name}_fin")
    m.s2(); m.outp()
    a(f"{name}_fin:")
    if diag:
        a("s_waitcnt vmcnt(0)"); m.mark("drain"); m.st.store(a)
    a("s_endpgm")
    return kernel_desc(name)

def make(diag=False, **o):
    from build import build, NAME
    s = build([(NAME + "_kernel", mega, 256, 163840, o)], diag=diag)
    return s.replace(f"; @launch kernel={NAME}_kernel grid", "; @launch grid").replace(NAME + "_kernel_", "L_")
if __name__ == "__main__":
    import sys, hazard
    s = make(diag=len(sys.argv) > 2)
    print("hazards", hazard.check(s))
    open(sys.argv[1] if len(sys.argv) > 1 else "mega.s", "w").write(s)
```

```python
import re

class Asm:
    def __init__(self):
        self.L = []
    def __call__(self, *lines):
        for s in lines:
            for t in s.split("\n"):
                t = t.strip()
                if t: self.L.append(t)
    def text(self):
        out = []
        for t in self.L:
            if t.endswith(":") or t.startswith(".") or t.startswith(";"): out.append(t)
            else: out.append("    " + t)
        return "\n".join(out) + "\n"

def R(kind, lo, n=1):
    return f"{kind}{lo}" if n == 1 else f"{kind}[{lo}:{lo+n-1}]"

class Reg:
    def __init__(self, kind, lo, n): self.kind, self.lo, self.n = kind, lo, n
    def __str__(self): return R(self.kind, self.lo, self.n)
    def __getitem__(self, i):
        if isinstance(i, slice):
            a, b = i.start or 0, self.n if i.stop is None else i.stop
            return Reg(self.kind, self.lo + a, b - a)
        assert 0 <= i < self.n
        return Reg(self.kind, self.lo + i, 1)
    def set(self): return {(self.kind, self.lo + i) for i in range(self.n)}

def mfma(d, a, b, c):
    return f"v_mfma_f32_16x16x32_bf16 {d}, {a}, {b}, {c}"

class Body:
    COST = dict(d=1, v=1, e=2, g=2)
    def __init__(self, n, cyclic=True):
        self.n = n; self.cyclic = cyclic
        self.m = [None] * n
        self.pre = [[] for _ in range(n)]
        self.vec = [[] for _ in range(n)]
        self.post = [[] for _ in range(n)]
        self.tag = {}
    def set_mfma(self, i, d, a, b, c):
        src = a.set() | b.set() | (c.set() if isinstance(c, Reg) else set())
        self.m[i] = (mfma(d, a, b, c), src, d.set())
    def vcost(self, i): return sum(self.COST[k] for k, *_ in self.vec[i])
    def has(self, i, kind): return any(k == kind for k, *_ in self.vec[i])
    def fits(self, i, kind):
        i %= self.n
        used = self.vcost(i) + max(0, len(self.pre[i]) - 1) + len(self.post[i])
        if kind == 's':
            if self.has(i, 'g'): return False
            return len(self.pre[i]) == 0 or used < 2
        if kind == 'd': return not self.has(i, 'd') and used + 1 <= 2
        if kind == 'g': return used == 0 and all(t.startswith("s_waitcnt") for t in self.pre[i])
        return used + self.COST[kind] <= 2
    def put(self, i, kind, text, dst=None, src=None):
        i %= self.n
        if kind == 's': self.pre[i].append(text); return i
        if kind == 'S': self.post[i].append(text); return i
        item = (kind, text, dst.set() if isinstance(dst, Reg) else (dst or set()), src.set() if isinstance(src, Reg) else (src or set()))
        if kind == 'd': self.vec[i].insert(0, item)
        else: self.vec[i].append(item)
        return i
    def putg(self, i, text, tag, m0=None):
        self.put(i, 'g', text); self.tag[i % self.n, text] = tag
        if m0: self.put(i - 1, 's', m0)
        return i
    def vmwait(self, i, tags):
        self.pre[i % self.n].insert(0, "s_waitcnt vmcnt(@" + ",".join(tags) + "@)")
    def resolve_vm(self):
        ops = []
        for i in range(self.n):
            for k, t in enumerate(self.pre[i]):
                mm = re.search(r"vmcnt\(@(.*)@\)", t)
                if mm:
                    tags = mm.group(1).split(",")
                    lastidx = max(j for j, tg in enumerate(ops) if tg in tags)
                    cnt = min(63, len(ops) - 1 - lastidx)
                    self.pre[i][k] = t.replace(mm.group(0), f"vmcnt({cnt})")
                    self.vm_seen = getattr(self, "vm_seen", {}); self.vm_seen.update({tg: i for tg in tags})
            for kd, t, *_ in self.vec[i]:
                if kd == 'g':
                    tg = self.tag.get((i, t))
                    assert tg not in getattr(self, "vm_seen", {}), f"op {t} tagged {tg} issued after its wait"
                    ops.append(tg)
        return ops
    def place(self, lo, hi, kind, text, dst=None, src=None, back=False):
        rng = range(hi - 1, lo - 1, -1) if back else range(lo, hi)
        for i in rng:
            if self.fits(i, kind):
                self.put(i, kind, text, dst, src); return i
        raise RuntimeError(f"no slot for {text} in [{lo},{hi})")
    def auto_lgkm(self, look=1, maxcnt=8):
        n = self.n
        waits = {}
        issued = []
        done = 0
        rounds = 3 if self.cyclic else 1
        for r in range(rounds):
            for i in range(n):
                for t in self.pre[i]:
                    mm = re.search(r"lgkmcnt\((\d+)\)", t)
                    if mm: done = max(done, len(issued) - int(mm.group(1)))
                need = -1
                def youngest(src):
                    for k in range(len(issued) - 1, done - 1, -1):
                        if issued[k] & src: return k
                    return -1
                j = i + 1
                if j < n or self.cyclic:
                    need = youngest(self.m[j % n][1])
                    if need >= 0:
                        for q in range(2, look + 1):
                            if i + q < n or self.cyclic:
                                need = max(need, youngest(self.m[(i + q) % n][1]))
                if need >= 0:
                    cnt = min(len(issued) - 1 - need, maxcnt)
                    need = len(issued) - 1 - cnt
                    if r == rounds - 1 or not self.cyclic: waits[i] = min(cnt, waits.get(i, 99))
                    elif r >= 1: waits[i] = min(cnt, waits.get(i, 99))
                    done = need + 1
                for k, t, dst, src in self.vec[i]:
                    if k == 'd':
                        if (j < n or self.cyclic) and dst & self.m[j % n][1]: raise RuntimeError("load right before use")
                        issued.append(dst)
        for i, c in waits.items():
            merged = False
            for k, t in enumerate(self.pre[i]):
                if t.startswith("s_waitcnt") and "lgkmcnt" not in t:
                    self.pre[i][k] = t + f" lgkmcnt({c})"; merged = True; break
            if not merged: self.pre[i].insert(0, f"s_waitcnt lgkmcnt({c})")
        return waits
    def lines(self, lo=0, hi=None):
        out = []
        for i in range(lo, self.n if hi is None else hi):
            out.append(self.m[i][0])
            out += self.pre[i]
            out += [t for k, t, *_ in self.vec[i]]
            out += self.post[i]
        return out
    def report(self):
        over = []
        for i in range(self.n):
            used = self.vcost(i) + max(0, len(self.pre[i]) - 1) + len(self.post[i])
            if used > 2 or (self.has(i, 'g') and any(not t.startswith("s_waitcnt") for t in self.pre[i])): over.append((i, used))
        return over
    def pattern(self):
        return " ".join("".join('w' if t.startswith("s_waitcnt") else 'b' if t.startswith("s_barrier") else 's' for t in self.pre[i]) + "".join(k for k, *_ in self.vec[i]) + "S" * len(self.post[i]) or "." for i in range(self.n))

def kernel_header(a, name):
    a(f".globl {name}", ".p2align 8", f".type {name},@function", f"{name}:")

def kernel_desc(name, vgpr=512, accum=256, sgpr=102):
    return "\n".join([".p2align 6", f".amdhsa_kernel {name}", f"  .amdhsa_next_free_vgpr {vgpr}", f"  .amdhsa_next_free_sgpr {sgpr}",
        f"  .amdhsa_accum_offset {accum}", "  .amdhsa_group_segment_fixed_size 0", "  .amdhsa_kernarg_size 120",
        "  .amdhsa_user_sgpr_count 2", "  .amdhsa_user_sgpr_kernarg_segment_ptr 1", "  .amdhsa_system_sgpr_workgroup_id_x 1",
        ".end_amdhsa_kernel"]) + "\n"
```

```python
from common import *

def quad_order(XB, YB, p):
    XH, YH = XB // 2, YB // 2
    quads = [(0, 0), (0, 1), (1, 1), (1, 0)] if p == 0 else [(0, 1), (0, 0), (1, 0), (1, 1)]
    seq = []
    for (xh, yh) in quads:
        xs, ys = range(xh * XH, (xh + 1) * XH), range(yh * YH, (yh + 1) * YH)
        seq += [(x, y, st ^ (k % 2)) for k, (x, y) in enumerate((x, y) for x in xs for y in (ys if x % 2 == 0 else ys[::-1])) for st in (0, 1)]
    return seq

class Gemm:
    def __init__(s, XB, YB, acc, swap, xreg, yreg, xaddr, yaddr, dmas, adv, b1, b2, gstep, lat=8, xst=32768, yst=32768, g0=1, pf=None, bskip=0, maxcnt=8):
        T = s.T = XB * YB * 2
        B = s.B = Body(2 * T)
        first = {}; last = {}
        n = 0
        for p in range(2):
            for (x, y, st) in quad_order(XB, YB, p):
                X, Y = xreg(p, x, st), yreg(p, y, st)
                B.set_mfma(n, acc(x, y), *((Y, X) if swap else (X, Y)), acc(x, y))
                for key in (('x', p, x, st), ('y', p, y, st)):
                    first.setdefault(key, n); last[key] = n
                n += 1
        s.nd = len(dmas(0)); s.gpos = {}; s.dl = []; s.advpos = []
        for p in range(2):
            pos = [p * T + b1 + g0 + 1 + gstep * j for j in range(s.nd)]
            s.gpos[p] = pos
            extra = 0
            if pf and pf[p]:
                B.put(pos[-1] + 3, 'g', pf[p][0]); B.put(pos[-1] + 4, 's', pf[p][1])
            if pf and pf[p ^ 1]: extra = 1
            for (m0, txt), g in zip(dmas(p), pos):
                B.put(g, 'g', txt); B.put(g - 1, 's', m0)
            if b1 == b2:
                B.put(p * T + b1 - 1, 's', "s_waitcnt vmcnt(0) lgkmcnt(0)"); B.put(p * T + b1, 's', "s_barrier")
            else:
                B.put(p * T + b1 - 1, 's', "s_waitcnt lgkmcnt(0)"); B.put(p * T + b1, 's', "s_barrier")
                assert not B.has((p * T + b2) % B.n, 'g')
                B.put(p * T + b2 - 1, 's', f"s_waitcnt vmcnt({extra + sum(1 for g in pos if g < p*T+b2-1)})"); B.put(p * T + b2, 's', "s_barrier")
            for t in adv: s.advpos.append((B.place(pos[-1] + 1, pos[-1] + 12, 'v', t), t))
        s.preload = {0: [], 1: []}
        jobs = []
        for q in range(2):
            for key in [k for k in first if k[1] == q]:
                kind, _, b, st = key
                reg = (xreg if kind == 'x' else yreg)(q, b, st)
                prev = -10**9
                for k2 in last:
                    r2 = (xreg if k2[0] == 'x' else yreg)(k2[1], k2[2], k2[3])
                    if r2.set() & reg.set():
                        t = last[k2]
                        while t >= first[key]: t -= 2 * T
                        prev = max(prev, t)
                lo = max((q - 1) * T + b2 + bskip, prev)
                dl = min(first[key] - lat, q * T + b1 - 1 - lat)
                if kind == 'x':
                    for e in range(2):
                        jobs.append((dl, lo, q, 't', f"ds_read_b64_tr_b16 {reg[2*e:2*e+2]}, {xaddr[b]} offset:{q*xst + st*16384 + e*4096}", reg[2*e:2*e+2], first[key]))
                else:
                    jobs.append((dl, lo, q, 'b', f"ds_read_b128 {reg}, {yaddr[st]} offset:{q*yst + b*2048}", reg, first[key]))
        big = set()
        for q in range(2):
            todo = sorted([j for j in jobs if j[2] == q], key=lambda j: (j[0], j[6]))
            t = (q - 1) * T + b2
            while todo:
                if B.fits(t, 'd') and ((t - 1) % B.n) not in big:
                    c = [j for j in todo if j[1] <= t]
                    if c:
                        j = c[0]; todo.remove(j)
                        if t > j[0] + 5: print(f"  warn: load late by {t-j[0]} gaps: {j[4]}")
                        assert t < q * T + b1 - 1
                        B.put(t, 'd', j[4], j[5]); s.dl.append((q, t - q * T, j[4], j[5]))
                        if j[3] == 'b': big.add(t % B.n)
                        if t < q * T: s.preload[q].append(j[4])
                t += 1
        B.auto_lgkm(look=2, maxcnt=maxcnt)
```

```python
from common import *
from gemm import Gemm
import k2 as AT
from k2 import V_L16, V_KA, V_VA, V_D0, V_D1, TS, LS, NM, V_T0, V_T1, V_T2, V_R, V_T3, P, S, E, C, O, Q, F, fload, set_qk, set_pv, cvts
from k2 import S_KM, S_VM, S_KP, S_VP, S_LEFT, S_THR, S_FLOOR, S_BIG

F_KV, F_CTX, F_PO, F_U, F_Y = (WS_FLAG + x for x in (0, 0x1000, 0x2000, 0x6000, 0x7000))
sX, sI, sH, sROLE, sJJ, sW1K = "s24", "s25", "s26", "s27", "s28", "s29"
pAq, pAk, pAv, pAsh, pAssm, pAD, pX, pC, pWq, pWuk, pWuv, pWo, pOut, pDbg = range(64, 92, 2)
sFKV, sFCTX, sFPO, sIDX = "s92", "s93", "s94", "s95"
STAMPS = ["entry", "kv_go", "kv_end", "q_go", "q_end", "q_stored", "s1_done", "kv_flag", "att_go", "seg1_end", "seg1_fin", "tail_end", "att_fin", "s2_end", "ctx_flag", "p4_go", "p4_loop", "p4_end", "drain"]

class Mega:
    def __init__(m, a, name, diag, **o):
        m.a, m.n, m.st = a, name, Stamps2(diag)
        m.o = dict(b1=40, b2=93, gstep=5, nA=18, L=16, D=6); m.o.update(o)
        m.npoll = 0
    def mark(m, nm): m.st.mark(m.a, STAMPS.index(nm))
    def poll(m, soff, n, va, vd, val=1, dbg=False):
        a = m.a; l = f"{m.n}_poll{m.npoll}"; m.npoll += 1
        a(f"v_and_b32 v{va}, {n-1}, v0", f"v_lshlrev_b32 v{va}, 2, v{va}", "s_mov_b32 s32, 0", f"{l}:")
        a(f"global_load_dword v{vd}, v{va}, s[{pDbg}:{pDbg+1}] offset:{soff} sc1" if dbg else f"buffer_load_dword v{vd}, v{va}, s[12:15], {soff} offen sc1")
        a("s_waitcnt vmcnt(0)", f"v_cmp_ne_u32 vcc, {val}, v{vd}", f"s_cbranch_vccz {l}_ok", "s_sleep 2", "s_add_u32 s32, s32, 1",
          "s_cmp_lt_u32 s32, 0x80000", f"s_cbranch_scc1 {l}", f"{l}_ok:")
    def code_pf_setup(m):
        a, n = m.a, m.n
        a("s_getpc_b64 s[100:101]", f"{n}_pc:", f"s_sub_u32 s100, s100, {n}_pc-{n}_go", "s_subb_u32 s101, s101, 0",
          "s_lshr_b32 s32, s2, 1", "s_and_b32 s32, s32, 12", "s_add_u32 s32, s32, s3", "s_lshl_b32 s32, s32, 13",
          "v_lshlrev_b32 v14, 7, v0", "v_add_u32 v14, s32, v14", f"v_min_u32 v14, {n}_codeend-{n}_go-4, v14", "v_accvgpr_write_b32 a244, v14")
    def code_pf(m, v=14): return f"global_load_dword a243, v{v}, s[100:101]"
    def setflag(m, soff, va, vd):
        m.a(f"v_mov_b32 v{va}, 0", f"v_mov_b32 v{vd}, 1", "s_mov_b64 exec, 1", f"buffer_store_dword v{vd}, v{va}, s[12:15], {soff} offen sc1", "s_mov_b64 exec, -1")
    def publish(m, soff, va, vd, local=False):
        a = m.a; l = f"{m.n}_pub{m.npoll}"; m.npoll += 1
        a("s_waitcnt vmcnt(0)", "s_barrier", "s_cmp_lg_u32 s3, 0", f"s_cbranch_scc1 {l}")
        if local: a("s_cmp_lg_u32 s30, 0", f"s_cbranch_scc1 {l}_x", "buffer_wbl2 sc1", "s_waitcnt vmcnt(0)", f"{l}_x:")
        m.setflag(soff, va, vd)
        a(f"{l}:")

    def proj(m):
        a, name, o = m.a, m.n, m.o
        a("s_load_dwordx16 s[64:79], s[0:1], 0", "s_load_dwordx8 s[80:87], s[0:1], 64", "s_load_dwordx4 s[88:91], s[0:1], 96", "s_load_dwordx2 s[12:13], s[0:1], 112")
        a("v_lshrrev_b32 v1, 6, v0", "v_and_b32 v0, 63, v0", "v_readfirstlane_b32 s3, v1",
          f"s_and_b32 {sX}, s2, 7", f"s_bfe_u32 {sI}, s2, 0x30003", f"s_bfe_u32 {sH}, s2, 0x10006", f"s_lshl_b32 s37, {sX}, 1", f"s_add_u32 {sH}, {sH}, s37",
          f"s_lshr_b32 {sROLE}, s2, 7", f"s_bfe_u32 {sJJ}, s2, 0x40003", f"s_lshl_b32 {sW1K}, s3, 10",
          "s_and_b32 s39, s3, 1", "s_lshr_b32 s40, s3, 1")
        m.st.init(a); m.mark("entry")
        def wrow(j): return 4 * (j & 1) + 16 * ((j >> 1) & 1) + 32 * (j >> 2)
        for j in range(1, 8): a(f"s_mov_b32 s{40+j}, {65536*j}", f"s_mov_b32 s{47+j}, {wrow(j)*8192}")
        ysoff = lambda j: "0" if j == 0 else f"s{40+j}"
        xsoff = lambda j: "0" if j == 0 else f"s{47+j}"
        a("s_lshl_b32 s56, s39, 1", "s_lshl_b32 s57, s40, 3", "s_add_u32 s56, s56, s57")
        VY, VX, VST = 1, 2, 3
        yaddr = [Reg('v', 4, 1), Reg('v', 5, 1)]
        xaddr = [Reg('v', 6 + i, 1) for i in range(8)]
        def act_voff(row0_sgpr, stride):
            a("s_lshl_b32 s58, s3, 3", f"s_add_u32 s58, s58, {row0_sgpr}", "v_lshrrev_b32 v14, 3, v0", "v_add_u32 v14, s58, v14",
              f"v_mul_u32_u24 v14, {stride}, v14",
              "s_lshl_b32 s58, s39, 2", "v_lshrrev_b32 v15, 4, v0", "v_add_u32 v15, s58, v15", "v_xor_b32 v15, v0, v15", "v_and_b32 v15, 7, v15",
              f"v_lshl_add_u32 v{VY}, v15, 4, v14")
        def w_voff():
            a("v_lshrrev_b32 v14, 5, v0", "s_lshl_b32 s58, s3, 1", "v_add_u32 v15, s58, v14",
              "v_lshlrev_b32 v15, 1, v15", "v_xor_b32 v15, v0, v15", "v_and_b32 v15, 31, v15", "v_lshlrev_b32 v15, 4, v15",
              "v_add_u32 v14, s56, v14", "v_lshl_add_u32 v14, v14, 13, v15", f"s_lshl_b32 s58, {sH}, 9", f"v_add_u32 v{VX}, s58, v14")
        def frag_addrs(yrow0, xunit0, nx):
            a("v_and_b32 v14, 15, v0", "v_lshrrev_b32 v15, 4, v0", f"v_lshrrev_b32 {yaddr[1]}, 1, v14", f"v_xor_b32 {yaddr[1]}, {yaddr[1]}, v15",
              f"v_add_u32 v14, {yrow0}, v14", "v_lshlrev_b32 v14, 7, v14", f"v_lshl_add_u32 {yaddr[0]}, {yaddr[1]}, 4, v14", f"v_xor_b32 {yaddr[1]}, 64, {yaddr[0]}")
            a("v_bfe_u32 v14, v0, 2, 3", "v_lshrrev_b32 v15, 5, v0", "v_lshl_add_u32 v13, v15, 4, v14", "v_lshlrev_b32 v13, 9, v13",
              f"v_xor_b32 v14, {xunit0}, v14", "v_lshl_add_u32 v13, v14, 5, v13", "v_and_b32 v14, 3, v0", "v_lshl_add_u32 v13, v14, 3, v13",
              f"v_add_u32 {xaddr[0]}, 0x10000, v13")
            for nb in range(1, nx): a(f"v_xor_b32 {xaddr[nb]}, {nb*32}, {xaddr[0]}")
        a(f"s_lshl_b32 s60, {sI}, 8")
        act_voff("s60", 2048); w_voff()
        a("s_waitcnt lgkmcnt(0)")
        a(f"s_cmp_eq_u32 {sROLE}, 0", f"s_cselect_b32 s8, s{pWuk}, s{pWuv}", f"s_cselect_b32 s9, s{pWuk+1}, s{pWuv+1}", "s_mov_b32 s10, 8388608", "s_mov_b32 s11, 0x20000")
        srd(a, 4, pC, 4194304); a(f"s_mov_b32 s14, {WS_BYTES}", "s_mov_b32 s15, 0x20000")
        def dmas(ny):
            def f(p):
                y = [(f"s_add_u32 m0, {sW1K}, {p*32768 + j*4096}", f"buffer_load_dwordx4 v{VY}, s[4:7], {ysoff(j)} offen lds") for j in range(ny)]
                x = [(f"s_add_u32 m0, {sW1K}, {65536 + p*32768 + j*4096}", f"buffer_load_dwordx4 v{VX}, s[8:11], {xsoff(j)} offen lds") for j in range(8)]
                if ny == 8: return [d for pr in zip(x, y) for d in pr]
                return [x[0], x[1], y[0], x[2], x[3], y[1], x[4], x[5], y[2], x[6], x[7], y[3]]
            return f
        adv = [f"v_add_u32 v{VY}, 128, v{VY}", f"v_add_u32 v{VX}, 0x80000, v{VX}"]
        def issue(dm):
            for m0, t in dm: a(m0, "s_nop 0", t)
            a(*adv)
        issue(dmas(8)(0))
        a(f"s_lshl_b32 s58, {sROLE}, 3", f"s_add_u32 s59, s58, {sI}", "s_lshl_b32 s59, s59, 2", f"s_lshl_b32 {sFKV}, {sH}, 7", f"s_add_u32 {sFKV}, {sFKV}, s59", f"s_add_u32 {sFKV}, {sFKV}, {F_KV}",
          f"s_add_u32 s58, s58, {sX}", f"s_mul_i32 {sIDX}, s58, 14", f"s_add_u32 {sIDX}, {sIDX}, {sJJ}",
          f"s_sub_u32 s63, 15, {sI}", f"s_cmp_eq_u32 {sROLE}, 0", f"s_cselect_b32 s63, {sI}, s63",
          f"s_lshl_b32 {sFCTX}, s63, 7", f"s_lshl_b32 s59, {sH}, 2", f"s_add_u32 {sFCTX}, {sFCTX}, s59", f"s_add_u32 {sFCTX}, {sFCTX}, {F_CTX}",
          f"s_and_b32 {sFPO}, s2, 127", f"s_lshl_b32 {sFPO}, {sFPO}, 7", f"s_add_u32 {sFPO}, {sFPO}, {F_PO}")
        a("s_cmp_lg_u32 s3, 0", f"s_cbranch_scc1 {name}_noclr")
        a(f"s_lshl_b32 s58, {sIDX}, 2", f"s_add_u32 s59, s58, {F_Y}", f"s_add_u32 s58, s58, {F_U}", f"s_lshl_b32 s61, {sROLE}, 2", f"s_add_u32 s61, s61, {sFPO}",
          f"s_cmp_lt_u32 {sJJ}, 14", f"s_cselect_b32 s58, s58, {sFKV}", f"s_cselect_b32 s59, s59, {sFKV}",
          f"v_mov_b32 v14, {sFKV}", f"v_writelane_b32 v14, {sFCTX}, 1", "v_writelane_b32 v14, s61, 2", "v_writelane_b32 v14, s58, 3", "v_writelane_b32 v14, s59, 4",
          "v_mov_b32 v15, 0", "s_mov_b64 exec, 31", "buffer_store_dword v15, v14, s[12:15], 0 offen sc1", "s_mov_b64 exec, -1")
        a(f"{name}_noclr:")
        issue(dmas(8)(1))
        a("s_lshl_b32 s58, s39, 7", "s_lshl_b32 s59, s40, 3")
        frag_addrs("s58", "s59", 8)
        a(f"v_lshlrev_b32 v{VST}, 4, v0")
        def pair(pi): return Reg('v', 16 + 8 * pi, 8) if pi < 30 else Reg('a', 224 + 8 * (pi - 30), 8)
        acck = lambda x, y: pair(y * 4 + x // 2)[4 * (x % 2):4 * (x % 2) + 4]
        accv = lambda x, y: pair((y // 2) * 8 + x)[4 * (y % 2):4 * (y % 2) + 4]
        for i in range(16, 256, 2): a(f"v_mov_b64 v[{i}:{i+1}], 0")
        for i in range(224, 240): a(f"v_accvgpr_write_b32 a{i}, 0")
        xreg = lambda p, x, s_: Reg('a', (x * 2 + s_) * 4, 4)
        yreg = lambda p, y, s_: Reg('a', 64 + (y * 2 + s_) * 4, 4)
        G = [Gemm(8, 8, ac, sw, xreg, yreg, xaddr, yaddr, dmas(8), adv, o['b1'], o['b2'], o['gstep']) for ac, sw in ((acck, False), (accv, True))]
        print("kv pattern:", G[0].B.pattern()); print("over:", G[0].B.report())
        a("s_mov_b32 s61, 0", "s_waitcnt vmcnt(16)", "s_barrier")
        a(*G[0].preload[0])
        a(f"s_mul_i32 s55, {sI}, 6", "s_lshr_b32 s55, s55, 3", "s_cmp_lg_u32 s3, 0", "s_cmov_b32 s55, 64",
          "s_getreg_b32 s58, hwreg(HW_REG_XCC_ID, 0, 3)", "s_and_b32 s59, s58, 3", "s_lshl_b32 s59, s59, 3", "s_lshl_b32 s59, 1, s59",
          "s_and_b32 s58, s58, 4", f"s_lshl_b32 s62, {sX}, 3", "s_add_u32 s58, s58, s62",
          "v_mov_b32 v14, 128", "v_mov_b32 v15, 1", "v_writelane_b32 v14, s58, 0", "v_writelane_b32 v15, s59, 0")
        m.mark("kv_go")
        a(f"s_cmp_eq_u32 {sROLE}, 0", "s_waitcnt lgkmcnt(0)", f"s_cbranch_scc0 {name}_vloop")
        def loop(g, lab, niter, entry=None, side=False):
            B = g.B
            if side:
                k = [i for i in range(4, 40) if not B.pre[i] and not B.vec[i]][0]
                B.put(k, 's', "s_cmp_eq_u32 s61, s55"); B.put(k, 's', f"s_cbranch_scc1 {lab}_side"); B.put(k, 'S', f"{lab}_back:")
            B.put(1, 's', f"s_cmp_eq_u32 s61, {niter-1}"); B.put(1, 's', "s_cmov_b32 s6, 0")
            B.put(B.n - 2, 's', "s_add_u32 s61, s61, 1")
            B.put(B.n - 1, 'S', f"s_cmp_lt_u32 s61, {niter}"); B.put(B.n - 1, 'S', f"s_cbranch_scc1 {lab}")
            a(".p2align 6", f"{lab}:")
            a(*B.lines(0, g.T))
            if entry: a(f"{entry}:")
            a(*B.lines(g.T, B.n))
        loop(G[0], f"{name}_kloop", 8, side=True)
        a(f"s_branch {name}_kvdone")
        for lab in ("kloop", "vloop"):
            a(f"{name}_{lab}_side:", "s_mov_b64 exec, 3", f"global_atomic_add v14, v15, s[{pDbg}:{pDbg+1}] sc1", "s_mov_b64 exec, -1", f"s_branch {name}_{lab}_back")
        loop(G[1], f"{name}_vloop", 8, side=True)
        a(f"{name}_kvdone:")
        m.mark("kv_end")
        a("s_lshl_b32 s60, s63, 7")
        for j in range(1, 4): a(f"s_mov_b32 s{40+j}, {32*896*j}")
        a("s_waitcnt vmcnt(0) lgkmcnt(0)")
        act_voff("s60", 896); w_voff()
        srd(a, 4, pX, 2048 * 896); srd(a, 8, pWq, 448 * 8192)
        a("s_barrier")
        issue(dmas(4)(1)); issue(dmas(4)(0))
        a(f"s_lshl_b32 s58, {sX}, 3", "v_mov_b32 v13, s58", f"global_load_dwordx2 v[14:15], v13, s[{pDbg}:{pDbg+1}] sc1")
        a(f"s_lshl_b32 s58, {sH}, 20", f"s_lshl_b32 s59, {sI}, 17", "s_add_u32 s58, s58, s59", "s_lshl_b32 s59, s39, 16", "s_add_u32 s58, s58, s59",
          "s_lshl_b32 s59, s40, 12", f"s_lshl_b32 s59, s59, {sROLE}", "s_add_u32 s58, s58, s59", f"s_lshl_b32 s59, {sROLE}, 24", "s_add_u32 s58, s58, s59",
          f"s_cmp_eq_u32 {sROLE}, 0", "s_movk_i32 s44, 0x2000", "s_cselect_b32 s45, s44, 0x3000", "s_cselect_b32 s44, s44, 0x1000")
        def pack8(r):
            a(*[f"v_cvt_pk_bf16_f32 {r[i]}, {r[2*i]}, {r[2*i+1]}" for i in range(4)])
            return r[0:4]
        for pi in range(32):
            r = pair(pi)
            if r.kind == 'a':
                t = pair(pi - 30)
                for i in range(8): a(f"v_accvgpr_read_b32 {t[i]}, {r[i]}")
                r = t
            a(f"buffer_store_dwordx4 {pack8(r)}, v{VST}, s[12:15], s58 offen offset:{(pi%4)*1024}")
            if pi % 4 == 3: a(f"s_add_u32 s58, s58, s{44 + (pi//4)%2}")
        m.mark("q_go")
        a("s_waitcnt vmcnt(32)", "v_or_b32 v14, v14, v15", "v_and_b32 v14, 0x20202020, v14", "s_nop 0", "v_readfirstlane_b32 s30, v14")
        a("s_lshl_b32 s59, s3, 2")
        frag_addrs("0", "s59", 4)
        accq = lambda x, y: Reg('v', 128 + 8 * (y * 2 + x // 2) + 4 * (x % 2), 4)
        xq = lambda p, x, s_: Reg('a', p * 32 + (x * 2 + s_) * 4, 4)
        yq = lambda p, y, s_: Reg('a', 64 + p * 64 + (y * 2 + s_) * 4, 4)
        Qg = Gemm(4, 8, accq, False, xq, yq, xaddr, yaddr, dmas(4), adv, 22, 22, 3)
        print("q pattern:", Qg.B.pattern()); print("over:", Qg.B.report())
        for i in range(128, 256, 2): a(f"v_mov_b64 v[{i}:{i+1}], 0")
        a("s_mov_b32 s61, 0", "s_barrier")
        a(*Qg.preload[1]); a("s_waitcnt lgkmcnt(0)", f"s_branch {name}_qentry")
        loop(Qg, f"{name}_qloop", 4, entry=f"{name}_qentry")
        m.mark("q_end")
        cq = fbits(LOG2E / 16)
        a(f"s_mov_b32 s44, {cq}", f"s_mov_b32 s45, {cq}", f"s_lshl_b32 s58, {sH}, 20", "s_lshl_b32 s60, s63, 16", "s_add_u32 s58, s58, s60", "s_lshl_b32 s60, s3, 11",
          "s_add_u32 s58, s58, s60", f"s_add_u32 s58, s58, {WS_Q}", "s_nop 3")
        for y in range(8):
            for sx in range(2):
                r = Reg('v', 128 + 8 * (y * 2 + sx), 8)
                for i in range(4): a(f"v_pk_mul_f32 {r[2*i:2*i+2]}, {r[2*i:2*i+2]}, s[44:45]")
                a(f"buffer_store_dwordx4 {pack8(r)}, v{VST}, s[12:15], s58 offen offset:{sx*1024}")
            a("s_add_u32 s58, s58, 8192")
        m.publish(sFKV, 14, 15, local=True)
        m.mark("q_stored")

    def s1a(m):
        a, name = m.a, m.n
        a(f"s_cmp_ge_u32 {sJJ}, 14", f"s_cbranch_scc1 {name}_s1a")
        a(f"s_and_b32 s33, {sIDX}, 31", f"s_lshr_b32 s34, {sIDX}, 5")
        a("v_lshrrev_b32 v104, 3, v0", "s_lshl_b32 s35, s3, 3", "v_add_u32 v104, s35, v104", "v_lshlrev_b32 v106, 8, v104", "v_lshlrev_b32 v104, 1, v104", "s_lshl_b32 s35, s33, 6", "v_add_u32 v104, s35, v104", "v_mul_u32_u24 v104, 896, v104",
          "v_and_b32 v105, 7, v0", "v_lshl_add_u32 v104, v105, 4, v104", "s_lshl_b32 s35, s34, 7", "v_add_u32 v104, s35, v104",
          "v_lshl_add_u32 v106, v105, 4, v106", "v_add_u32 v106, 0x20000, v106", "v_lshlrev_b32 v105, 6, v105", "s_lshl_b32 s35, s34, 9", "v_add_u32 v105, s35, v105")
        for j in range(3): a(f"v_subrev_u32 v{107+j}, {896*(3-j)}, v104")
        srd(a, 4, pAk, 2048 * 896); srd(a, 8, pAv, 2048 * 896); srd(a, 16, pAsh, 448 * 8)
        KR = lambda j: 16 + 4 * j; VR = lambda j: 36 + 4 * j; WR = 44
        for j in range(3): a(f"buffer_load_dwordx4 v[{KR(j)}:{KR(j)+3}], v{107+j}, s[4:7], 0 offen")
        for j in range(2): a(f"buffer_load_dwordx4 v[{KR(3+j)}:{KR(3+j)+3}], v104, s[4:7], 0 offen offset:{896*j}")
        for j in range(2): a(f"buffer_load_dwordx4 v[{VR(j)}:{VR(j)+3}], v104, s[8:11], 0 offen offset:{896*j}")
        for j in range(4): a(f"buffer_load_dwordx4 v[{WR+4*j}:{WR+4*j+3}], v105, s[16:19], 0 offen offset:{16*j}")
        a(f"{name}_s1a:")
    def s1b(m):
        a, name = m.a, m.n
        a(f"s_cmp_ge_u32 {sJJ}, 14", f"s_cbranch_scc1 {name}_s1b", "s_mov_b32 s36, 0xffff0000")
        KR = lambda j: 16 + 4 * j; VR = lambda j: 36 + 4 * j; WR = 44
        def unpack(dst, src, hi): a(f"v_and_b32 v{dst}, s36, v{src}" if hi else f"v_lshlrev_b32 v{dst}, 16, v{src}")
        for c2 in range(4):
            for j in range(5):
                for h in range(2): unpack(64 + 2 * j + h, KR(j) + c2, h)
            for j in range(2):
                for h in range(2): unpack(74 + 2 * j + h, VR(j) + c2, h)
            for j in range(4):
                for h in range(2): unpack(78 + 2 * j + h, WR + 4 * c2 + 2 * h + j // 2, j % 2)
            pr = lambda r: f"v[{r}:{r+1}]"
            for t in range(2):
                d = pr(86 + 2 * t)
                a(f"v_pk_mul_f32 {d}, {pr(64+2*t)}, {pr(84)}", f"v_pk_fma_f32 {d}, {pr(66+2*t)}, {pr(82)}, {d}", f"v_pk_fma_f32 {d}, {pr(68+2*t)}, {pr(80)}, {d}",
                  f"v_pk_fma_f32 {d}, {pr(70+2*t)}, {pr(78)}, {d}", f"v_pk_mul_f32 {d}, {d}, {pr(74+2*t)}", f"v_cvt_pk_bf16_f32 v{92+4*t+c2}, v{86+2*t}, v{87+2*t}")
        for t in range(2): a(f"ds_write_b128 v106, v[{92+4*t}:{95+4*t}] offset:{128*t}")
        a("v_bfe_u32 v24, v0, 2, 2", "v_bfe_u32 v26, v0, 4, 1", "v_lshl_add_u32 v24, v26, 3, v24", "v_lshlrev_b32 v24, 2, v24", "v_lshrrev_b32 v26, 5, v0", "v_add_u32 v24, v24, v26",
          "v_lshlrev_b32 v24, 7, v24", "v_and_b32 v26, 3, v0", "v_lshl_add_u32 v24, v26, 3, v24", "s_lshl_b32 s35, s3, 5", "s_add_u32 s35, s35, 0x20000", "v_add_u32 v24, s35, v24")
        a("v_and_b32 v25, 15, v0", "v_lshlrev_b32 v25, 12, v25", "v_lshrrev_b32 v26, 4, v0", "v_lshl_add_u32 v25, v26, 4, v25",
          "s_lshl_b32 s35, s34, 2", "s_add_u32 s35, s35, s3", "s_lshl_b32 s35, s35, 16", "s_lshl_b32 s36, s33, 7", "s_add_u32 s35, s35, s36", f"s_add_u32 s35, s35, {WS_U}",
          "s_waitcnt lgkmcnt(0)")
        a(f"{name}_s1b:")
    def s1c(m):
        a, name = m.a, m.n
        a(f"s_cmp_ge_u32 {sJJ}, 14", f"s_cbranch_scc1 {name}_s1c")
        for ph in range(2):
            for e in range(2): a(f"ds_read_b64_tr_b16 v[{16+4*ph+2*e}:{17+4*ph+2*e}], v24 offset:{(16*e + 2*ph)*128}")
        a("s_waitcnt lgkmcnt(0)")
        for ph in range(2): a(f"buffer_store_dwordx4 v[{16+4*ph}:{19+4*ph}], v25, s[12:15], s35 offen offset:{64*ph} sc1")
        a(f"{name}_s1c:")

    def attn(m):
        a, name, o = m.a, m.n, m.o
        nA, L = o['nA'], o['L']
        sNB, sHB, sW8K, sMODE, sQB = "s38", "s49", "s50", "s54", "s51"
        dma = lambda sp, j: AT.dma(sp, j).replace(" lds", " sc1 lds")
        m.s1a()
        a(f"s_lshl_b32 s37, {sH}, 7", f"s_add_u32 s37, s37, {F_KV}", "v_and_b32 v14, 15, v0", "v_lshlrev_b32 v14, 2, v14", "v_mov_b32 v13, 0", "s_mov_b32 s32, 0",
          f"{name}_pollA:", f"global_load_dword v15, v13, s[{pDbg}:{pDbg+1}] offset:128 sc1", "s_add_u32 s32, s32, 1", "s_waitcnt vmcnt(0)", "v_cmp_gt_u32 vcc, 256, v15",
          "s_cmp_lt_u32 s32, 0x80000", "s_cselect_b64 vcc, vcc, 0", f"s_cbranch_vccnz {name}_pollA")
        m.mark("s1_done")
        m.poll("s37", 16, 14, 15)
        m.mark("kv_flag")
        a(f"s_lshl_b32 s37, {sI}, 1", f"s_sub_i32 {sNB}, {32-nA}, s37", f"s_max_i32 {sNB}, {sNB}, 0",
          f"s_lshl_b32 {sHB}, {sH}, 20", f"s_lshl_b32 {sW8K}, s3, 13", f"s_add_u32 {sHB}, {sHB}, {sW8K}", f"s_mov_b32 {sQB}, s63")
        a("s_add_u32 s53, s37, 2", "s_sub_u32 s55, 32, s37", f"s_sub_u32 s55, s55, {sNB}", f"s_cmp_eq_u32 {sROLE}, 0", "s_cselect_b32 s53, s53, s55",
          f"s_cselect_b32 s52, 0, {sNB}", f"s_cselect_b32 {sMODE}, 0, 2")
        a(f"v_lshlrev_b32 v{V_L16}, 4, v0", f"v_add_u32 v{V_D1}, 4096, v{V_L16}")
        a("s_lshl_b32 s55, s52, 15", f"s_add_u32 s{S_KP}, s55, {sHB}", f"s_add_u32 s{S_VP}, s{S_KP}, {WS_V}",
          f"s_mov_b32 s{S_KM}, {sW8K}", f"s_add_u32 s{S_VM}, {sW8K}, 0x10000")
        def issue(sm, sp):
            a(f"s_mov_b32 m0, s{sm}", "s_nop 0")
            for j in range(8):
                if j == 4: a("s_bitset1_b32 m0, 12", "s_nop 0")
                a(dma(sp, j))
            a(f"s_add_u32 s{sp}, s{sp}, 0x8000", f"s_xor_b32 s{sm}, s{sm}, 0x8000")
        def qload(qb, dst):
            a(f"s_lshl_b32 s55, {qb}, 16", f"s_add_u32 s55, s55, {sHB}", f"s_add_u32 s55, s55, {WS_Q}", "s_add_u32 s56, s55, 0x8000")
            for qs in range(2):
                for s in range(8): a(f"buffer_load_dwordx4 a[{dst+(qs*8+s)*4}:{dst+(qs*8+s)*4+3}], v{V_D0 if s < 4 else V_D1}, s[12:15], s{55+qs} offen offset:{(s%4)*1024} sc1")
        issue(S_KM, S_KP); issue(S_KM, S_KP)
        m.s1b()
        a(f"v_and_b32 v{V_R}, 15, v0", f"v_lshrrev_b32 v{V_T0}, 4, v0", f"v_lshlrev_b32 v{V_T0}, 2, v{V_T0}", f"v_sub_u32 v{V_R}, v{V_R}, v{V_T0}",
          "s_lshl_b32 s48, s3, 4", f"v_add_u32 v{V_R}, s48, v{V_R}")
        a(f"v_mov_b32 v{V_KA}, v{V_L16}", f"v_add_u32 v{V_VA}, 0x10000, v{V_L16}")
        for i in range(96, 256, 2): a(f"v_mov_b64 v[{i}:{i+1}], 0")
        for r in LS + NM: a(f"v_mov_b32 {r}, 0")
        BIG = fbits(2.0**24)
        a(f"s_mov_b32 s{S_BIG}, {BIG}", f"s_mov_b32 s{S_THR}, 2", f"s_sub_u32 s{S_LEFT}, s53, 1")
        def mask(qs):
            a(f"v_mov_b32 v{V_T0}, {fbits(-1e30)}")
            for kb in range(4):
                for i in range(4): a(f"v_cmp_gt_i32 s[{16+2*i}:{17+2*i}], {16*kb+i}, v{V_R}")
                for i in range(4): a(f"v_cndmask_b32 {C(kb,qs)[i]}, {NM[qs]}, v{V_T0}, s[{16+2*i}:{17+2*i}]")
        a(f"s_cmp_ge_u32 s{S_LEFT}, 2", f"s_cbranch_scc1 {name}_nomask0")
        mask(0)
        a(f"{name}_nomask0:", f"v_mov_b32 v27, 1", f"s_lshl_b32 s36, {sIDX}, 2", f"s_add_u32 s36, s36, {F_U}", f"s_cmp_lt_u32 {sJJ}, 14", f"s_cselect_b32 s36, s36, {sFKV}",
          f"s_add_u32 s33, {sFPO}, 4", f"s_cmp_eq_u32 {sROLE}, 1", f"s_cselect_b32 s33, s33, {sFKV}", "s_waitcnt vmcnt(8)", "s_barrier")
        m.mark("att_go")
        B0 = Body(64, cyclic=False); set_qk(B0, 0)
        for n in range(8): a(fload(n))
        a("buffer_store_dword v27, off, s[12:15], s33 sc1")
        m.s1c()
        a(f"s_mov_b32 m0, s{S_VM}", "s_waitcnt lgkmcnt(0)")
        for n in range(8, 32): B0.put(2 * n - 16, 'd', fload(n), F(n))
        B0.auto_lgkm(look=2, maxcnt=15)
        for j in range(8):
            B0.put(1 + 4 * j, 'g', dma(S_VP, j))
            if j == 4: B0.put(4 * j, 's', "s_bitset1_b32 m0, 12")
        B0.put(32, 's', f"s_add_u32 s{S_VP}, s{S_VP}, 0x8000"); B0.put(34, 's', f"s_xor_b32 s{S_VM}, s{S_VM}, 0x8000")
        rest = []; te = 0; ta = 0; epos = {}
        els = [(kb, qs, i) for kb in range(4) for qs in range(2) for i in range(4)]
        ex = lambda kb, qs, i: f"v_exp_f32 {E(kb,qs)[i]}, {S(kb,qs)[i]}"
        ad = lambda kb, qs, i: f"v_add_f32 {TS[qs]}, {E(0,qs)[0] if (kb == 0 and i == 1) else TS[qs]}, {E(kb,qs)[i]}"
        for el in els:
            try: te = B0.place(max(te, 16 * el[0] + 8 * el[1] + 13), 64, 'e', ex(*el)); epos[el] = te
            except RuntimeError: te = 64; rest.append(ex(*el))
        rest2 = []
        for el in els:
            if el[0] == 0 and el[2] == 0: continue
            try: ta = B0.place(max(ta + 1, epos.get(el, 64) + 1), 64, 'v', ad(*el))
            except RuntimeError: ta = 64; rest2.append(ad(*el))
        print("first pattern:", B0.pattern(), len(rest), len(rest2))
        a(*B0.lines())
        a(f"v_xor_b32 v{V_KA}, 0x8000, v{V_KA}", "s_waitcnt vmcnt(8)", "s_barrier")
        for n in range(L // 2): a(fload(n))
        a("buffer_store_dword v27, off, s[12:15], s36 sc1")
        a(*rest); a(*rest2)
        a(f"{name}_first:", f"v_add_f32 v{V_T0}, {TS[0]}, {TS[1]}", f"v_min_f32 v{V_T1}, {TS[0]}, {TS[1]}", f"v_cmp_nge_f32 vcc, s{S_BIG}, v{V_T0}",
          f"s_mov_b32 s{S_FLOOR}, 0xff800000", f"s_cbranch_vccnz {name}_slow2", f"v_cmp_gt_f32 vcc, {fbits(2.0**-24)}, v{V_T1}", f"s_cbranch_vccnz {name}_slow2",
          f"s_mov_b32 s{S_FLOOR}, 0", "s_waitcnt lgkmcnt(0)", f"s_branch {name}_ret")
        a(f"{name}_slow:", f"s_cmp_lg_u32 s{S_BIG}, {BIG}", f"s_cbranch_scc1 {name}_switched", "s_nop 5", f"{name}_slow2:")
        for qs in range(2):
            mx, t = f"v{V_T0+qs}", f"v{V_T2}"
            el = [S(kb, qs)[i] for kb in range(4) for i in range(4)]
            a(f"v_max3_f32 {mx}, {el[0]}, {el[1]}, {el[2]}")
            for k in range(3, 15, 2): a(f"v_max3_f32 {mx}, {mx}, {el[k]}, {el[k+1]}")
            a(f"v_max_f32 {mx}, {mx}, {el[15]}")
            for sw in ("v_permlane32_swap_b32", "v_permlane16_swap_b32"):
                a(f"v_mov_b32 {t}, {mx}", "s_nop 1", f"{sw} {mx}, {t}", "s_nop 1", f"v_max_f32 {mx}, {mx}, {t}")
            a(f"v_max_f32 {mx}, s{S_FLOOR}, {mx}", f"v_sub_f32 {NM[qs]}, {NM[qs]}, {mx}")
            for e in el: a(f"v_sub_f32 {e}, {e}, {mx}")
            for kb in range(4):
                for i in range(4): a(f"v_exp_f32 {E(kb,qs)[i]}, {S(kb,qs)[i]}", f"v_mov_b32 {C(kb,qs)[i]}, {NM[qs]}")
            ee = [E(kb, qs)[i] for kb in range(4) for i in range(4)]
            a(f"v_add_f32 {TS[qs]}, {ee[0]}, {ee[1]}")
            for k in range(2, 16): a(f"v_add_f32 {TS[qs]}, {TS[qs]}, {ee[k]}")
        a("s_waitcnt lgkmcnt(0)", f"s_cmp_lg_u32 s{S_FLOOR}, 0", f"s_mov_b32 s{S_FLOOR}, 0", f"s_cbranch_scc1 {name}_ret")
        for qs in range(2):
            f = f"v{V_T0+qs}"
            a(f"v_exp_f32 {f}, -{f}", "s_nop 0", f"v_mul_f32 {LS[qs]}, {LS[qs]}, {f}")
            for db in range(16):
                for i in range(4): a(f"v_mul_f32 {O(db,qs)[i]}, {O(db,qs)[i]}, {f}")
        a(f"s_branch {name}_ret")
        B = AT.main_body(name, L)
        for i in range(B.n): B.vec[i] = [(k, t.replace(" lds", " sc1 lds") if k == 'g' else t, d, s_) for k, t, d, s_ in B.vec[i]]
        print("attn pattern:", B.pattern()); print("over:", B.report())
        a(".p2align 6", f"{name}_loop:")
        a(*B.lines())
        a(f"{name}_ret:", f"s_cmp_gt_u32 s{S_LEFT}, s{S_THR}", f"s_cbranch_scc1 {name}_loop")
        a(f"s_cmp_eq_u32 s{S_LEFT}, 0", f"s_cbranch_scc1 {name}_segend", f"s_cmp_eq_u32 s{S_LEFT}, 1", f"s_cbranch_scc1 {name}_d1")
        mask(0); a("s_nop 0", f"s_branch {name}_loop")
        a(f"{name}_d1:")
        a(f"s_cmp_eq_u32 {sMODE}, 0", f"s_cselect_b32 s57, {sNB}, 0", "s_cmp_lg_u32 s57, 0", f"s_cselect_b32 s{S_KP}, {sHB}, 0xf0000000", f"s_cbranch_scc0 {name}_d1b",
          f"s_sub_u32 s58, 15, {sI}", f"s_add_u32 s33, {sFPO}, 4")
        m.poll("s33", 1, V_T0, V_T1)
        qload("s58", 128)
        a(f"{name}_d1b:")
        mask(1)
        for kb in range(4):
            for i in range(4): a(f"v_mov_b32 {C(kb,0)[i]}, v{V_T0}")
        a("s_nop 0", f"s_branch {name}_loop")
        a(f"{name}_segend:", f"s_cmp_eq_u32 {sMODE}, 0", f"s_cselect_b32 s57, {sNB}, 0", "s_cmp_eq_u32 s57, 0", f"s_cbranch_scc1 {name}_tail")
        for i in range(64): a(f"v_accvgpr_mov_b32 a{i}, a{128+i}")
        for i in range(96, 128, 2): a(f"v_mov_b64 v[{i}:{i+1}], 0")
        a(f"s_add_u32 s{S_VP}, {sHB}, {WS_V}", f"s_mov_b32 s{S_LEFT}, {sNB}", f"s_mov_b32 s{S_THR}, 0", f"s_mov_b32 s{S_BIG}, -1.0", f"s_branch {name}_loop")
        def lsum():
            for qs in range(2):
                l, t = LS[qs], f"v{V_T2}"
                for sw in ("v_permlane32_swap_b32", "v_permlane16_swap_b32"):
                    a(f"v_mov_b32 {t}, {l}", "s_nop 1", f"{sw} {l}, {t}", "s_nop 1", f"v_add_f32 {l}, {l}, {t}")
        def pack(qs, s):
            r = Reg('v', O(2 * s, qs).lo, 8)
            a(*[f"v_cvt_pk_bf16_f32 {r[i]}, {r[2*i]}, {r[2*i+1]}" for i in range(4)])
            return r[0:4]
        def scale_store(fl):
            for qs in range(2):
                sel = "op_sel:[0,0] op_sel_hi:[1,0]" if qs == 0 else "op_sel:[0,1] op_sel_hi:[1,1]"
                for s in range(8):
                    r = Reg('v', O(2 * s, qs).lo, 8)
                    for i in range(4): a(f"v_pk_mul_f32 {r[2*i:2*i+2]}, {r[2*i:2*i+2]}, v[16:17] {sel}")
                    a(f"buffer_store_dwordx4 {pack(qs, s)}, v{V_D0 if s < 4 else V_D1}, s[12:15], s{55+qs} offen offset:{(s%4)*1024}{fl}")
        def ctx_addr():
            a(f"s_lshl_b32 s55, {sQB}, 20", "s_lshl_b32 s57, s3, 17", "s_add_u32 s55, s55, s57", f"s_lshl_b32 s57, {sH}, 13", "s_add_u32 s55, s55, s57",
              f"s_add_u32 s55, s55, {WS_CTX}", "s_add_u32 s56, s55, 0x80000")
        a(f"{name}_switched:")
        m.mark("seg1_end")
        lsum()
        for qs in range(2): a(f"v_rcp_f32 v{16+qs}, {LS[qs]}")
        ctx_addr(); scale_store(" sc1")
        a("s_nop 0")
        for i in range(128, 256, 2): a(f"v_mov_b64 v[{i}:{i+1}], 0")
        for r in LS + NM: a(f"v_mov_b32 {r}, 0")
        a(f"s_mov_b32 s{S_BIG}, {BIG}", f"s_mov_b32 {sMODE}, 1")
        m.publish(sFCTX, V_T0, V_T1)
        m.mark("seg1_fin")
        a(f"s_branch {name}_first")
        a(f"{name}_tail:", "s_waitcnt vmcnt(0) lgkmcnt(0)", "s_barrier")
        for n in range(32, 40): a(fload(n))
        a(*cvts())
        for q in range(2): a(f"v_add_f32 {LS[q]}, {LS[q]}, {TS[q]}")
        a("s_waitcnt lgkmcnt(0)")
        BT = Body(64, cyclic=False); set_pv(BT, 0)
        for n in range(40, 64): BT.put(2 * (n - 32) - 16, 'd', fload(n), F(n))
        BT.auto_lgkm(look=2, maxcnt=15)
        a(*BT.lines())
        m.mark("tail_end")
        lsum()
        for qs in range(2): a(f"v_log_f32 {TS[qs]}, {LS[qs]}", f"v_rcp_f32 v{16+qs}, {LS[qs]}")
        for qs in range(2): a(f"v_sub_f32 {TS[qs]}, {TS[qs]}, {NM[qs]}")
        a(f"s_cmp_eq_u32 {sNB}, 0", f"s_cbranch_scc1 {name}_store")
        a("s_and_b32 s39, s2, 127", "s_lshl_b32 s55, s39, 16", "s_lshl_b32 s57, s3, 14", "s_add_u32 s55, s55, s57", f"s_add_u32 s55, s55, {WS_PO}", "s_add_u32 s56, s55, 0x2000",
          "s_lshl_b32 s57, s39, 2", "s_add_u32 s57, s57, s3", "s_lshl_b32 s57, s57, 9", f"s_add_u32 s57, s57, {WS_PL}", f"v_lshrrev_b32 v{V_T3}, 2, v{V_L16}")
        a(f"s_cmp_eq_u32 {sMODE}, 2", f"s_cbranch_scc1 {name}_merge")
        for qs in range(2): a(f"buffer_store_dword {TS[qs]}, v{V_T3}, s[12:15], s57 offen offset:{256*qs} sc1")
        scale_store(" sc1")
        m.publish(sFPO, V_T0, V_T1)
        a(f"s_branch {name}_attdone")
        a(f"{name}_merge:")
        m.poll(sFPO, 1, V_T0, V_T1)
        for qs in range(2): a(f"buffer_load_dword v{18+qs}, v{V_T3}, s[12:15], s57 offen offset:{256*qs} sc1")
        PB = lambda qs, s: Reg('v', 32 + (qs * 8 + s) * 4, 4)
        for qs in range(2):
            for s in range(8): a(f"buffer_load_dwordx4 {PB(qs,s)}, v{V_D0 if s < 4 else V_D1}, s[12:15], s{55+qs} offen offset:{(s%4)*1024} sc1")
        a("s_waitcnt vmcnt(16)")
        for qs in range(2):
            a(f"v_max_f32 v20, v{18+qs}, {TS[qs]}", f"v_sub_f32 v21, {TS[qs]}, v20", f"v_sub_f32 v22, v{18+qs}, v20",
              "v_exp_f32 v21, v21", "v_exp_f32 v22, v22", "s_nop 0", "v_add_f32 v20, v21, v22", "v_rcp_f32 v20, v20", "s_nop 0",
              "v_mul_f32 v21, v21, v20", f"v_mul_f32 v{18+qs}, v22, v20", f"v_mul_f32 v{16+qs}, v{16+qs}, v21")
        ctx_addr(); a("s_mov_b32 s59, 0xffff0000")
        for qs in range(2):
            sel = "op_sel:[0,0] op_sel_hi:[1,0]" if qs == 0 else "op_sel:[0,1] op_sel_hi:[1,1]"
            sel3 = "op_sel:[0,0,0] op_sel_hi:[1,0,1]" if qs == 0 else "op_sel:[0,1,0] op_sel_hi:[1,1,1]"
            for s in range(8):
                a("s_waitcnt vmcnt(15)")
                r = Reg('v', O(2 * s, qs).lo, 8)
                for k in range(4):
                    pb = PB(qs, s)[k]; t = Reg('v', 24 + 2 * k, 2)
                    a(f"v_lshlrev_b32 {t[0]}, 16, {pb}", f"v_and_b32 {t[1]}, s59, {pb}", f"v_pk_mul_f32 {t}, {t}, v[18:19] {sel}",
                      f"v_pk_fma_f32 {r[2*k:2*k+2]}, {r[2*k:2*k+2]}, v[16:17], {t} {sel3}")
                a(f"buffer_store_dwordx4 {pack(qs, s)}, v{V_D0 if s < 4 else V_D1}, s[12:15], s{55+qs} offen offset:{(s%4)*1024} sc1")
        a(f"s_branch {name}_pubctx")
        a(f"{name}_store:")
        ctx_addr(); scale_store(" sc1")
        a(f"{name}_pubctx:")
        m.publish(sFCTX, V_T0, V_T1)
        a(f"{name}_attdone:")
        m.mark("att_fin")

    def s2(m):
        a, name = m.a, m.n
        a(f"s_cmp_lg_u32 {sROLE}, 0", f"s_cbranch_scc1 {name}_s2end")
        WB = 38912; UB, RB, RS = 0, 4608, 8224; KB = RB + 3 * RS
        a(f"s_lshr_b32 s33, {sIDX}, 4", "s_lshl_b32 s33, s33, 7", f"s_add_u32 s33, s33, {F_U}")
        m.poll("s33", 32, 14, 15)
        a(f"s_lshl_b32 s34, {sIDX}, 2", "s_add_u32 s34, s34, s3", "s_lshl_b32 s35, s34, 12", f"s_add_u32 s36, s35, {WS_U}", f"s_mul_i32 s37, s3, {WB}",
          "s_lshr_b32 s38, s34, 1", "s_lshl_b32 s38, s38, 2", f"s_load_dword s39, s[{pAD}:{pAD+1}], s38")
        srd(a, 4, pAssm, 448 * 4096)
        a("v_lshlrev_b32 v1, 4, v0", "v_lshrrev_b32 v3, 1, v0", "v_lshlrev_b32 v3, 7, v3", "v_and_b32 v4, 1, v0", "v_lshl_add_u32 v3, v4, 4, v3")
        a(f"s_add_u32 m0, s37, {KB + 256}", "s_nop 0")
        for k in range(4): a(f"buffer_load_dwordx4 v1, s[4:7], s35 offen offset:{1024*k} lds")
        for p in range(4): a(f"s_add_u32 m0, s37, {UB + p*1152 + 128 - 32*p}", "s_nop 0", f"buffer_load_dwordx4 v3, s[12:15], s36 offen offset:{32*p} sc1 lds")
        a("v_mov_b32 v8, 0", "v_lshlrev_b32 v5, 2, v0", "v_add_u32 v5, s37, v5", "v_and_b32 v6, 31, v0", "v_lshlrev_b32 v6, 2, v6", "v_add_u32 v6, s37, v6")
        a(f"ds_write_b32 v5, v8 offset:{KB}")
        for p in range(4): a(f"ds_write_b32 v6, v8 offset:{UB + p*1152}")
        for p in (1, 2): a(f"ds_write_b32 v6, v8 offset:{RB + p*RS}")
        a("v_and_b32 v14, 15, v0", "v_lshrrev_b32 v15, 4, v0", "v_lshlrev_b32 v9, 3, v14", "v_lshl_add_u32 v9, v15, 4, v9", "v_add_u32 v9, s37, v9",
          "v_and_b32 v10, 3, v0", "v_bfe_u32 v4, v0, 2, 2", "v_sub_u32 v10, v10, v4", "v_lshlrev_b32 v4, 3, v15", "v_sub_u32 v10, v10, v4", "v_add_u32 v10, 56, v10", "v_lshlrev_b32 v10, 3, v10", "v_add_u32 v10, s37, v10",
          "v_lshl_add_u32 v11, v15, 6, v14", "v_lshlrev_b32 v11, 2, v11", "v_add_u32 v11, s37, v11",
          "v_lshlrev_b32 v12, 5, v0", "v_add_u32 v12, s37, v12")
        a(f"s_add_u32 s42, s35, {WS_Y}", "s_mov_b32 s45, 0xffff0000", "s_waitcnt vmcnt(0) lgkmcnt(0)",
          "s_lshl_b32 s43, s39, 16", "s_and_b32 s44, s39, s45", "s_bitcmp1_b32 s3, 0", "s_cselect_b32 s43, s44, s43")
        X = lambda n: Reg('a', 4 * n, 4); Z = lambda p, d: Reg('a', 64 + 64 * (p % 2) + 4 * d, 4); AC = lambda p, c: Reg('v', 32 + 32 * (p % 2) + 4 * c, 4)
        xl = lambda n, e: f"ds_read_b64_tr_b16 {X(n)[2*e:2*e+2]}, v10 offset:{KB + 256*n + 32*(1-e)}"
        zl = lambda p, d, e: f"ds_read_b64 {Z(p,d)[2*e:2*e+2]}, v9 offset:{UB + p*1152 + 8 + 64*d + 8*e}"
        B = Body(288, cyclic=False)
        n = 0; endc = {}
        for p in range(4):
            for c in range(8):
                for k in range(2 * c + 2):
                    B.set_mfma(n, AC(p, c), Z(p, 2 * c - k + 1), X(k), 0 if k == 0 else AC(p, c)); n += 1
                endc[p, c] = n - 1
        PRE = 8
        for d in range(PRE):
            a(xl(d, 0), xl(d, 1), zl(0, d, 0), zl(0, d, 1))
            if d % 3 == 2: a("s_waitcnt lgkmcnt(4)")
        a("s_waitcnt lgkmcnt(0)")
        t = -1
        for d in range(PRE, 16):
            for tx, r in ((xl(d, 0), X(d)[0:2]), (xl(d, 1), X(d)[2:4]), (zl(0, d, 0), Z(0, d)[0:2]), (zl(0, d, 1), Z(0, d)[2:4])): t = B.place(t + 1, 288, 'd', tx, r)
        for p in range(1, 4):
            t = max(t, 72 * (p - 1) + 30)
            for d in range(16):
                for e in range(2): t = B.place(t + 1, 288, 'd', zl(p, d, e), Z(p, d)[2*e:2*e+2])
        late = []; t = 64
        for p in range(4):
            for c in range(8):
                for r in range(4):
                    tx = f"ds_write_b32 v11, {AC(p,c)[r]} offset:{RB + p*RS + 4*p + 1024*c + 64*r}"
                    try:
                        t = B.place(max(t + 1, endc[p, c] + 9), 288, 'd', tx)
                        assert p >= 2 or t < 72 * (p + 2) + c * (c + 1) - 1, (p, c, t)
                    except RuntimeError: t = 288; late.append(tx)
        B.auto_lgkm(look=2, maxcnt=15)
        print("s2 pattern:", B.pattern(), len(late))
        a(*B.lines()); a("s_nop 7"); a(*late)
        a("s_waitcnt lgkmcnt(0)")
        for q in range(4):
            b = 96 + 40 * (q % 2)
            for p in range(4):
                for h in range(2): a(f"ds_read_b128 v[{b+8*p+4*h}:{b+3+8*p+4*h}], v12 offset:{RB + RS*p + 2048*q + 16*h}")
                a(f"ds_read_b32 v{b+32+p}, v5 offset:{UB + 1152*p + 128 + 256*q}")
            a("s_waitcnt lgkmcnt(0)")
            for k in range(0, 8, 2):
                a(f"v_pk_add_f32 v[{b+k}:{b+k+1}], v[{b+k}:{b+k+1}], v[{b+8+k}:{b+9+k}]", f"v_pk_add_f32 v[{b+16+k}:{b+17+k}], v[{b+16+k}:{b+17+k}], v[{b+24+k}:{b+25+k}]",
                  f"v_pk_add_f32 v[{b+k}:{b+k+1}], v[{b+k}:{b+k+1}], v[{b+16+k}:{b+17+k}]")
            for k in range(8):
                a(f"v_and_b32 v16, s45, v{b+32+k%4}" if k >= 4 else f"v_lshlrev_b32 v16, 16, v{b+32+k%4}", f"v_fmac_f32 v{b+k}, s43, v16")
            for h in range(4): a(f"v_cvt_pk_bf16_f32 v{b+36+h}, v{b+2*h}, v{b+2*h+1}")
            a(f"buffer_store_dwordx4 v[{b+36}:{b+39}], v1, s[12:15], s42 offen offset:{1024*q} sc1")
        a(f"s_lshl_b32 s35, {sIDX}, 2", f"s_add_u32 s35, s35, {F_Y}")
        m.publish("s35", 14, 15)
        m.mark("s2_end")
        a(f"{name}_s2end:")

    def outp(m):
        a, name, D = m.a, m.n, m.o['D']
        a(f"s_lshl_b32 s33, {sX}, 1", f"s_and_b32 s34, {sJJ}, 1", "s_add_u32 s33, s33, s34", f"s_xor_b32 s34, {sROLE}, 1", "s_lshl_b32 s34, s34, 4", "s_add_u32 s33, s33, s34",
          f"s_lshr_b32 s34, {sJJ}, 1")
        a("v_lshlrev_b32 v1, 4, v0")
        a("v_lshrrev_b32 v3, 3, v0", "v_mul_u32_u24 v4, 896, v3", "v_and_b32 v3, 6, v3", "v_xor_b32 v3, v3, v0", "v_and_b32 v3, 7, v3", "v_lshl_add_u32 v3, v3, 4, v4")
        a("v_lshrrev_b32 v8, 2, v0", "v_lshlrev_b32 v4, 7, v8", "v_bfe_u32 v8, v8, 1, 2", "v_lshl_add_u32 v4, v8, 5, v4", "v_and_b32 v8, 3, v0", "v_lshl_add_u32 v4, v8, 3, v4",
          "s_lshl_b32 s35, s3, 15", "v_add_u32 v4, s35, v4")
        for mb in range(1, 4): a(f"v_xor_b32 v{4+mb}, {32*mb}, v4")
        a(f"s_mul_i32 s36, s3, {1024*896}", "s_lshl_b32 s41, s34, 7", "s_add_u32 s36, s36, s41",
          "s_lshl_b32 s37, s33, 19", "s_add_u32 s37, s37, s35", f"s_add_u32 s37, s37, {WS_CTX}")
        for j in range(1, 4): a(f"v_add_u32 v{8+j}, {j*0x20000}, v1", f"v_add_u32 v{12+j}, {j*8*896}, v3")
        cv = [1, 9, 10, 11]; wv = [3, 13, 14, 15]
        srd(a, 4, pWo, 4096 * 896); srd(a, 8, pOut, 2048 * 1792); srd(a, 16, pAq, 2048 * 896)
        NS = 8
        CT = lambda sl, qb: Reg('a', sl * 16 + qb * 4, 4)
        W = lambda b, mb: Reg('v', 32 + b * 16 + mb * 4, 4)
        AC = lambda mb, qb: Reg('v', 64 + (mb * 4 + qb) * 4, 4)
        wl = lambda sl, j: (f"s_add_u32 m0, s35, {sl*4096 + j*1024}", f"buffer_load_dwordx4 v{wv[j]}, s[4:7], s36 offen lds")
        cl = lambda sl, j: (None, f"buffer_load_dwordx4 {CT(sl,j)}, v{cv[j]}, s[12:15], s37 offen sc1")
        loads = lambda sl: [x for j in range(4) for x in (wl(sl, j), cl(sl, j))]
        adv = [f"s_add_u32 s36, s36, {32*896}", "s_add_u32 s37, s37, 1024"]
        for sl in range(D):
            for j in range(4): a(wl(sl, j)[0], "s_nop 0", wl(sl, j)[1])
            a(adv[0])
        for i in range(64, 128, 2): a(f"v_mov_b64 v[{i}:{i+1}], 0")
        a("s_lshr_b32 s44, s33, 1", "s_lshl_b32 s44, s44, 7", f"s_add_u32 s44, s44, {F_CTX}")
        m.poll("s44", 16, 16, 17)
        m.mark("ctx_flag")
        for sl in range(D):
            for j in range(4): a(cl(sl, j)[1])
            a(adv[1])
        def trs(b, sl): return [f"ds_read_b64_tr_b16 {W(b,mb)[2*e:2*e+2]}, v{4+mb} offset:{sl*4096 + e*2048}" for mb in range(4) for e in range(2)]
        a(*trs(0, 0))
        a("s_waitcnt vmcnt(0)")
        m.mark("p4_go")
        a("s_mov_b32 s42, 0", "s_mov_b32 s43, 0xf0000000")
        a(".p2align 6", f"{name}_oloop:")
        for sl in range(NS):
            if sl == NS - D: a("s_cmp_eq_u32 s42, 3", "s_cmov_b32 s36, s43", "s_cmov_b32 s37, s43")
            a(f"s_waitcnt vmcnt({8*(D-2)}) lgkmcnt(0)")
            tr = trs((sl + 1) % 2, (sl + 1) % NS); ld = loads((sl + D) % NS)
            k = 0
            for mb in range(4):
                for qb in range(4):
                    a(mfma(AC(mb, qb), W(sl % 2, mb), CT(sl, qb), AC(mb, qb)))
                    if k % 2 == 0:
                        if ld[k // 2][0]: a(ld[k // 2][0])
                        a(tr[k // 2])
                    else: a(ld[k // 2][1])
                    k += 1
            a(*adv)
        a("s_add_u32 s42, s42, 1", "s_cmp_lt_u32 s42, 4", f"s_cbranch_scc1 {name}_oloop")
        m.mark("p4_loop")
        a("s_lshl_b32 s44, s34, 6", f"s_add_u32 s44, s44, {F_Y}", "s_waitcnt lgkmcnt(0)")
        m.poll("s44", 16, 16, 17)
        a("v_lshrrev_b32 v8, 3, v0", "v_lshlrev_b32 v8, 12, v8", "v_and_b32 v9, 7, v0", "v_lshl_add_u32 v8, v9, 4, v8",
          "s_lshl_b32 s44, s34, 2", "s_add_u32 s44, s44, s3", "s_lshl_b32 s44, s44, 16", "s_lshl_b32 s45, s33, 7", "s_add_u32 s44, s44, s45", f"s_add_u32 s44, s44, {WS_Y}",
          "s_lshl_b32 s45, s3, 11", "s_add_u32 m0, s45, 0x20000", "s_nop 0", "buffer_load_dwordx4 v8, s[12:15], s44 offen sc1 lds",
          "s_add_u32 m0, s45, 0x20400", "s_add_u32 s44, s44, 0x8000", "buffer_load_dwordx4 v8, s[12:15], s44 offen sc1 lds")
        a("s_lshl_b32 s44, s33, 6", "s_lshl_b32 s45, s3, 4", "s_add_u32 s44, s44, s45", "v_and_b32 v9, 15, v0", "v_add_u32 v9, s44, v9", "v_mul_u32_u24 v9, 896, v9",
          "v_lshrrev_b32 v10, 4, v0", "v_lshlrev_b32 v10, 4, v10", "v_add_u32 v10, s41, v10", "v_add_u32 v11, v9, v10", "v_lshl_add_u32 v12, v9, 1, v10")
        for h in range(2): a(f"buffer_load_dwordx4 v[{16+4*h}:{19+4*h}], v11, s[16:19], 0 offen offset:{64*h}")
        a("v_and_b32 v9, 15, v0", "v_mul_u32_u24 v9, 272, v9", "v_lshrrev_b32 v10, 4, v0", "v_lshl_add_u32 v9, v10, 4, v9", "v_add_u32 v9, s35, v9")
        for mb in range(4):
            for qb in range(4): a(f"ds_write_b128 v9, {AC(mb,qb)} offset:{qb*16*272 + mb*64}")
        a("v_lshrrev_b32 v9, 3, v0", "v_add_u32 v9, s45, v9", "v_mul_u32_u24 v13, 272, v9", "v_and_b32 v10, 7, v0", "v_lshl_add_u32 v13, v10, 5, v13", "v_add_u32 v14, 0x10000, v13",
          "s_lshl_b32 s44, s33, 6", "v_add_u32 v9, s44, v9", "v_mul_u32_u24 v9, 1792, v9", "v_lshl_add_u32 v9, v10, 4, v9", "s_add_u32 s46, s41, 896", "s_add_u32 s47, s46, 14336")
        a("v_lshrrev_b32 v10, 4, v0", "v_lshlrev_b32 v10, 3, v10", "v_bfe_u32 v15, v0, 2, 2", "v_add_u32 v10, v10, v15", "v_lshlrev_b32 v10, 7, v10", "v_and_b32 v15, 3, v0", "v_lshl_add_u32 v10, v15, 3, v10",
          "s_lshl_b32 s48, s3, 5", "s_add_u32 s48, s48, 0x20000", "v_add_u32 v10, s48, v10", "s_mov_b32 s49, 0xffff0000")
        a("s_waitcnt vmcnt(0) lgkmcnt(0)", "s_barrier")
        for h in range(2):
            for e in range(2): a(f"ds_read_b64_tr_b16 v[{24+4*h+2*e}:{25+4*h+2*e}], v10 offset:{(32*h + 4*e)*128}")
        for hh in range(2):
            for w in range(4):
                for h in range(2): a(f"ds_read_b128 v[{64+32*hh+8*w+4*h}:{67+32*hh+8*w+4*h}], v{13 + w//2} offset:{(w%2)*32768 + hh*8*272 + 16*h}")
            if hh == 0: a("s_waitcnt lgkmcnt(8)")
        for h in range(2):
            for k in range(4):
                a(f"v_lshlrev_b32 v32, 16, v{16+4*h+k}", f"v_lshlrev_b32 v33, 16, v{24+4*h+k}", f"v_and_b32 v34, s49, v{16+4*h+k}", f"v_and_b32 v35, s49, v{24+4*h+k}",
                  "v_mul_f32 v32, v32, v33", "v_mul_f32 v34, v34, v35", f"v_cvt_pk_bf16_f32 v{40+4*h+k}, v32, v34")
            a(f"buffer_store_dwordx4 v[{40+4*h}:{43+4*h}], v12, s[8:11], 0 offen offset:{64*h}")
        a("s_waitcnt lgkmcnt(0)")
        for hh in range(2):
            b = 64 + 32 * hh
            for k in range(0, 8, 2):
                a(f"v_pk_add_f32 v[{b+k}:{b+k+1}], v[{b+k}:{b+k+1}], v[{b+8+k}:{b+9+k}]", f"v_pk_add_f32 v[{b+16+k}:{b+17+k}], v[{b+16+k}:{b+17+k}], v[{b+24+k}:{b+25+k}]",
                  f"v_pk_add_f32 v[{b+k}:{b+k+1}], v[{b+k}:{b+k+1}], v[{b+16+k}:{b+17+k}]")
            for k in range(4): a(f"v_cvt_pk_bf16_f32 v{48+4*hh+k}, v{b+2*k}, v{b+2*k+1}")
            a(f"buffer_store_dwordx4 v[{48+4*hh}:{51+4*hh}], v9, s[8:11], s{46+hh} offen")
        m.mark("p4_end")

def mega(a, name, diag=False, **o):
    m = Mega(a, name, diag, **o)
    kernel_header(a, name)
    a("s_cmp_lt_u32 s2, 256", f"s_cbranch_scc1 {name}_go", "s_endpgm", f"{name}_go:")
    m.proj(); m.s1(); m.attn()
    a(f"s_cmp_ge_u32 {sJJ}, 14", f"s_cbranch_scc1 {name}_fin")
    m.s2(); m.outp()
    a(f"{name}_fin:")
    if diag:
        a("s_waitcnt vmcnt(0)"); m.mark("drain"); m.st.store(a)
    a("s_endpgm")
    return kernel_desc(name)

def make(diag=False, **o):
    from build import build, NAME
    s = build([(NAME + "_kernel", mega, 256, 163840, o)], diag=diag)
    return s.replace(f"; @launch kernel={NAME}_kernel grid", "; @launch grid").replace(NAME + "_kernel_", "L_")
if __name__ == "__main__":
    import sys, hazard
    s = make(diag=len(sys.argv) > 2)
    print("hazards", hazard.check(s))
    open(sys.argv[1] if len(sys.argv) > 1 else "mega.s", "w").write(s)
```

```python
from mega import *
from gemm import quad_order

class Mega2(Mega):
    def __init__(m, a, name, diag, **o):
        d = dict(NP=4, stfl=" sc1", st0=-84, ststep=12, pubgap=24, LW=13, groups=((0, 1), (2, 3), (4, 5, 6)), wstep=5, pf=1, PD=2, nunits=9, pfdelay=1)
        d.update(o); super().__init__(a, name, diag, **d)

    def proj(m):
        a, name, o = m.a, m.n, m.o
        NP = o['NP']
        a("s_load_dwordx16 s[64:79], s[0:1], 0", "s_load_dwordx8 s[80:87], s[0:1], 64", "s_load_dwordx4 s[88:91], s[0:1], 96", "s_load_dwordx2 s[12:13], s[0:1], 112")
        a("v_lshrrev_b32 v1, 6, v0", "v_and_b32 v0, 63, v0", "v_readfirstlane_b32 s3, v1",
          f"s_and_b32 {sX}, s2, 7", f"s_bfe_u32 {sI}, s2, 0x30003", f"s_bfe_u32 {sH}, s2, 0x10006", f"s_lshl_b32 s37, {sX}, 1", f"s_add_u32 {sH}, {sH}, s37",
          f"s_lshr_b32 {sROLE}, s2, 7", f"s_bfe_u32 {sJJ}, s2, 0x40003", f"s_lshl_b32 {sW1K}, s3, 10",
          "s_and_b32 s39, s3, 1", "s_lshr_b32 s40, s3, 1")
        m.st.init(a); m.mark("entry")
        def wrow(j): return 4 * (j & 1) + 16 * ((j >> 1) & 1) + 32 * (j >> 2)
        for j in range(1, 8): a(f"s_mov_b32 s{40+j}, {65536*j}", f"s_mov_b32 s{47+j}, {wrow(j)*8192}")
        ysoff = lambda j: "0" if j == 0 else f"s{40+j}"
        xsoff = lambda j: "0" if j == 0 else f"s{47+j}"
        a("s_lshl_b32 s56, s39, 1", "s_lshl_b32 s57, s40, 3", "s_add_u32 s56, s56, s57")
        VY, VX, VST, VQ, VXA, VONE = 1, 2, 1, 2, 15, 11
        yaddr = [Reg('v', 4, 1), Reg('v', 5, 1)]
        xaddr = [Reg('v', 6 + i, 1) for i in range(8)]
        a(f"s_lshl_b32 s60, {sI}, 8", "s_lshl_b32 s58, s3, 3", "s_add_u32 s58, s58, s60", "v_lshrrev_b32 v14, 3, v0", "v_add_u32 v14, s58, v14", "v_lshlrev_b32 v14, 11, v14",
          "s_lshl_b32 s58, s39, 2", "v_lshrrev_b32 v15, 4, v0", "v_add_u32 v15, s58, v15", "v_xor_b32 v15, v0, v15", "v_and_b32 v15, 7, v15", f"v_lshl_add_u32 v{VY}, v15, 4, v14")
        a("v_lshrrev_b32 v14, 5, v0", "s_lshl_b32 s58, s3, 1", "v_add_u32 v15, s58, v14",
          "v_lshlrev_b32 v15, 1, v15", "v_xor_b32 v15, v0, v15", "v_and_b32 v15, 31, v15", "v_lshlrev_b32 v15, 4, v15",
          "v_add_u32 v14, s56, v14", "v_lshl_add_u32 v14, v14, 13, v15", f"s_lshl_b32 s58, {sH}, 9", f"v_add_u32 v{VX}, s58, v14")
        a("s_waitcnt lgkmcnt(0)")
        a(f"s_cmp_eq_u32 {sROLE}, 0", f"s_cselect_b32 s8, s{pWuk}, s{pWuv}", f"s_cselect_b32 s9, s{pWuk+1}, s{pWuv+1}", "s_mov_b32 s10, 8388608", "s_mov_b32 s11, 0x20000")
        srd(a, 4, pC, 4194304); a(f"s_mov_b32 s14, {WS_BYTES}", "s_mov_b32 s15, 0x20000")
        def dmas(p):
            y = [(f"s_add_u32 m0, {sW1K}, {p*32768 + j*4096}", f"buffer_load_dwordx4 v{VY}, s[4:7], {ysoff(j)} offen lds") for j in range(8)]
            x = [(f"s_add_u32 m0, {sW1K}, {65536 + p*32768 + j*4096}", f"buffer_load_dwordx4 v{VX}, s[8:11], {xsoff(j)} offen lds") for j in range(8)]
            return [d for pr in zip(x, y) for d in pr]
        adv = [f"v_add_u32 v{VY}, 128, v{VY}", f"v_add_u32 v{VX}, 0x80000, v{VX}"]
        def issue(dm):
            for m0, t in dm: a(m0, "s_nop 0", t)
            a(*adv)
        issue(dmas(0))
        m.code_pf_setup()
        if o['pf']: a(m.code_pf())
        a(f"s_lshl_b32 s58, {sROLE}, 3", f"s_add_u32 s59, s58, {sI}", "s_lshl_b32 s59, s59, 2", f"s_lshl_b32 {sFKV}, {sH}, 7", f"s_add_u32 {sFKV}, {sFKV}, s59", f"s_add_u32 {sFKV}, {sFKV}, {F_KV}",
          f"s_add_u32 s58, s58, {sX}", f"s_mul_i32 {sIDX}, s58, 14", f"s_add_u32 {sIDX}, {sIDX}, {sJJ}",
          f"s_sub_u32 s63, 15, {sI}", f"s_cmp_eq_u32 {sROLE}, 0", f"s_cselect_b32 s63, {sI}, s63",
          f"s_lshl_b32 {sFCTX}, s63, 7", f"s_lshl_b32 s59, {sH}, 2", f"s_add_u32 {sFCTX}, {sFCTX}, s59", f"s_add_u32 {sFCTX}, {sFCTX}, {F_CTX}",
          f"s_and_b32 {sFPO}, s2, 127", f"s_lshl_b32 {sFPO}, {sFPO}, 7", f"s_add_u32 {sFPO}, {sFPO}, {F_PO}")
        a("s_cmp_lg_u32 s3, 0", f"s_cbranch_scc1 {name}_noclr")
        a(f"s_lshl_b32 s58, {sIDX}, 2", f"s_add_u32 s59, s58, {F_Y}", f"s_add_u32 s58, s58, {F_U}", f"s_lshl_b32 s61, {sROLE}, 2", f"s_add_u32 s61, s61, {sFPO}",
          f"s_cmp_lt_u32 {sJJ}, 14", f"s_cselect_b32 s58, s58, {sFKV}", f"s_cselect_b32 s59, s59, {sFKV}",
          f"v_mov_b32 v14, {sFKV}", f"v_writelane_b32 v14, {sFCTX}, 1", "v_writelane_b32 v14, s61, 2", "v_writelane_b32 v14, s58, 3", "v_writelane_b32 v14, s59, 4",
          "v_mov_b32 v15, 0", "s_mov_b64 exec, 31", "buffer_store_dword v15, v14, s[12:15], 0 offen sc1", "s_mov_b64 exec, -1")
        a(f"{name}_noclr:")
        issue(dmas(1))
        a("s_lshl_b32 s58, s39, 7", "s_lshl_b32 s59, s40, 3")
        a("v_and_b32 v14, 15, v0", "v_lshrrev_b32 v15, 4, v0",
          "s_lshl_b32 s60, s63, 7", "s_lshl_b32 s62, s3, 4", "s_add_u32 s60, s60, s62", "v_lshrrev_b32 v13, 3, v0", "v_lshlrev_b32 v13, 1, v13", "v_add_u32 v12, s60, v13", "v_mul_u32_u24 v12, 896, v12", "v_lshrrev_b32 v13, 1, v13", "v_xor_b32 v13, v0, v13", "v_and_b32 v13, 7, v13",
          "v_lshl_add_u32 v13, v13, 4, v12", "v_accvgpr_write_b32 a240, v13",
          "v_lshrrev_b32 v13, 1, v14", "v_xor_b32 v12, v13, v15", "v_lshlrev_b32 v12, 4, v12", "v_lshl_add_u32 v12, v13, 7, v12", "v_and_b32 v13, 1, v14", "v_lshl_add_u32 v12, v13, 10, v12",
          "s_lshl_b32 s33, s3, 13", "s_add_u32 s33, s33, 0x20000", "v_add_u32 v12, s33, v12", "v_accvgpr_write_b32 a242, v12",
          f"v_lshrrev_b32 {yaddr[1]}, 1, v14", f"v_xor_b32 {yaddr[1]}, {yaddr[1]}, v15",
          f"v_add_u32 v14, s58, v14", "v_lshlrev_b32 v14, 7, v14", f"v_lshl_add_u32 {yaddr[0]}, {yaddr[1]}, 4, v14", f"v_xor_b32 {yaddr[1]}, 64, {yaddr[0]}")
        a("v_bfe_u32 v14, v0, 2, 3", "v_lshrrev_b32 v15, 5, v0", "v_lshl_add_u32 v13, v15, 4, v14", "v_lshlrev_b32 v13, 9, v13",
          "v_xor_b32 v14, s59, v14", "v_lshl_add_u32 v13, v14, 5, v13", "v_and_b32 v14, 3, v0", "v_lshl_add_u32 v13, v14, 3, v13",
          f"v_add_u32 {xaddr[0]}, 0x10000, v13")
        for nb in range(1, 8): a(f"v_xor_b32 {xaddr[nb]}, {nb*32}, {xaddr[0]}")
        for i in range(16, 256, 2): a(f"v_mov_b64 v[{i}:{i+1}], 0")
        for i in range(224, 240): a(f"v_accvgpr_write_b32 a{i}, 0")
        srd(a, 16, pWq, 448 * 8192); srd(a, 20, pX, 2048 * 896)
        cq = fbits(LOG2E / 16)
        a(f"s_lshl_b32 s58, {sH}, 20", "s_lshl_b32 s62, s63, 16", "s_add_u32 s62, s62, s58", "s_lshl_b32 s59, s3, 13", "s_add_u32 s62, s62, s59", f"s_add_u32 s62, s62, {WS_Q}",
          f"s_lshl_b32 s59, {sI}, 17", "s_add_u32 s58, s58, s59", "s_lshl_b32 s59, s39, 16", "s_add_u32 s58, s58, s59",
          "s_lshl_b32 s59, s40, 12", f"s_lshl_b32 s59, s59, {sROLE}", "s_add_u32 s58, s58, s59", f"s_lshl_b32 s59, {sROLE}, 24", "s_add_u32 s58, s58, s59",
          f"s_mov_b32 s57, {64*896}", "s_lshl_b32 s60, s40, 8", "s_add_u32 s60, s60, 0x10000", f"s_mov_b32 s34, {cq}", f"s_mov_b32 s35, {cq}")
        niter = (16 - NP) // 2
        a(f"s_mul_i32 s55, {sI}, {niter}", "s_lshr_b32 s55, s55, 3", "s_cmp_lg_u32 s3, 0", "s_cmov_b32 s55, 64", "v_mov_b32 v15, 1")
        PD = o['PD']; units = [pWq, pWq, pX, pAk, pAv, pWo, pWo, pAssm, pAq][:o['nunits']]
        a("s_mul_i32 s36, s2, 7282", "s_lshr_b32 s36, s36, 16", "s_mul_i32 s37, s36, 9", "s_sub_u32 s37, s2, s37", "s_lshl_b32 s38, s36, 16",
          f"s_mov_b64 s[30:31], s[{pWq}:{pWq+1}]")
        for u, pp in list(enumerate(units))[2:]: a(f"s_cmp_eq_u32 s37, {u}", f"s_cmov_b64 s[30:31], s[{pp}:{pp+1}]")
        a("s_add_u32 s32, s38, 1835008", "s_cmp_eq_u32 s37, 1", "s_cmov_b32 s38, s32", "s_cmp_eq_u32 s37, 6", "s_cmov_b32 s38, s32",
          "s_lshl_b32 s32, s39, 15", "s_add_u32 s38, s38, s32",
          f"s_cmp_ge_u32 s37, {len(units)}", "s_cmov_b32 s36, 28", "s_cmp_lt_u32 s36, 28", "s_cselect_b32 s32, 0x8000, 0", "s_cselect_b32 s38, s38, 0",
          "s_add_u32 s36, s30, s38", "s_addc_u32 s37, s31, 0", "s_mov_b32 s38, s32", "s_mov_b32 s39, 0x20000",
          "v_lshlrev_b32 v14, 6, v0", f"s_mov_b32 s56, {(-(o['pfdelay'] + max(PD, 1)) * 0x1000) & 0xffffffff:#x}", "s_movk_i32 s30, 0x1000")
        a("s_cmp_ge_u32 s3, 2", f"s_cbranch_scc1 {name}_pfset", "s_mov_b32 s38, 0")
        if PD:
            a("s_cmp_eq_u32 s3, 1", f"s_cbranch_scc1 {name}_pfc",
              "s_mov_b64 s[36:37], s[8:9]", "s_mov_b32 s38, s10", "s_mov_b32 s30, 0x80000", "s_mov_b32 s56, 0x100000",
              f"s_lshl_b32 s31, {sI}, 16", f"s_lshl_b32 s32, {sH}, 9", "s_add_u32 s31, s31, s32",
              "v_lshrrev_b32 v15, 3, v0", "v_lshlrev_b32 v15, 13, v15", "v_and_b32 v14, 0x1c0, v14", "v_add3_u32 v14, v14, v15, s31", f"s_branch {name}_pfset",
              f"{name}_pfc:", "s_mov_b64 s[36:37], s[4:5]", "s_mov_b32 s38, s6", "s_movk_i32 s30, 128", "s_movk_i32 s56, 256",
              f"s_lshl_b32 s31, {sI}, 2", "s_lshr_b32 s32, s2, 6", "s_add_u32 s31, s31, s32", "s_lshl_b32 s31, s31, 17", "v_lshlrev_b32 v14, 11, v0", "v_add_u32 v14, s31, v14")
        a(f"{name}_pfset:", "v_mov_b32 v15, 1", "v_mov_b32 v3, 0")
        for k in range(max(PD, 1)): a("buffer_load_dword a243, v14, s[36:39], s56 offen", "s_add_u32 s56, s56, s30")
        pfs = [("buffer_load_dword a243, v14, s[36:39], s56 offen", "s_add_u32 s56, s56, s30")] * 2 if o['pf'] else None
        xreg = lambda p, x, s_: Reg('a', (x * 2 + s_) * 4, 4)
        yreg = lambda p, y, s_: Reg('a', 64 + (y * 2 + s_) * 4, 4)
        G = []
        for ty in range(2):
            key = (lambda x, y: (x // 2, y)) if ty == 0 else (lambda x, y: (x, y // 2))
            done = {}
            for n, (x, y, st) in enumerate(quad_order(8, 8, 1)): done[key(x, y)] = n
            order = sorted(done, key=lambda k: done[k])
            preg = {}; nv = 0
            for pi, k in enumerate(order):
                if pi in (2, 3): preg[k] = Reg('a', 224 + 8 * (pi - 2), 8)
                else: preg[k] = Reg('v', 16 + 8 * nv, 8); nv += 1
            half = (lambda x, y: x % 2) if ty == 0 else (lambda x, y: y % 2)
            acc = lambda x, y, preg=preg, key=key, half=half: preg[key(x, y)][4 * half(x, y):4 * half(x, y) + 4]
            g = Gemm(8, 8, acc, ty == 1, xreg, yreg, xaddr, yaddr, dmas, adv, o['b1'], o['b2'], o['gstep'], pf=pfs)
            g.order, g.preg, g.done = order, preg, done
            G.append(g)
        a("s_mov_b32 s61, 0", f"s_waitcnt vmcnt({16+max(PD,1)})", "s_barrier")
        a(*G[0].preload[0])
        m.mark("kv_go")
        a(f"s_cmp_eq_u32 {sROLE}, 0", "s_waitcnt lgkmcnt(0)", f"s_cbranch_scc0 {name}_vloop")

        def tail(g, ty):
            T = 128; H = 256; Z = H + NP * T; N = Z + 448
            b1, b2 = o['b1'], o['b2']
            B = Body(N, cyclic=False)
            for u in range(NP + 2):
                p = u % 2
                for n in range(T): B.m[u * T + n] = g.B.m[p * T + n]
                for q, rel, txt, reg in g.dl:
                    if q == p and u * T + rel >= 0: B.put(u * T + rel, 'd', txt, reg)
                B.put(u * T + b1 - 1, 's', "s_waitcnt lgkmcnt(0)"); B.put(u * T + b1, 's', "s_barrier")
            hi = lambda pi: g.preg[g.order[pi]][4:8]; lo = lambda pi: g.preg[g.order[pi]][0:4]
            qlist = [('hi', 1), ('hi', 5), ('hi', 6), ('hi', 7), ('hi', 0), ('hi', 4)] + [('hi', k) for k in range(8, 32)] + [('lo', 0), ('lo', 1)]
            qacc = lambda db, qs: (hi if qlist[2 * db + qs][0] == 'hi' else lo)(qlist[2 * db + qs][1])
            xf = lambda ks, qs: Reg('a', (128 + (ks * 2 + qs) * 4) if ks < 12 else (112 + ((ks - 12) * 2 + qs) * 4), 4)
            groups = o['groups']; region = [0, 0x10000, 0x8000, 0x18000, 0x20000, 0, 0x10000]
            ring = lambda f: Reg('a', 64 + 4 * (f % 12), 4)
            n = Z; f = 0; LW = o['LW']; gstart = []; qdone = {}; xors = []; na = 0
            for gi, grp in enumerate(groups):
                kss = [2 * t + h for t in grp for h in range(2)]
                gstart.append(Z + 2 * f - LW)
                for db in range(16):
                    for qs in range(2):
                        for j, ks in enumerate(kss):
                            B.set_mfma(n, qacc(db, qs), ring(f + j), xf(ks, qs), 0 if (gi == 0 and j == 0) else qacc(db, qs)); n += 1
                        qdone[db, qs] = n - 1
                    for j, ks in enumerate(kss):
                        if ks % 2 == 0:
                            va = 7 + na % 4; na += 1
                            xors.append((Z + 2 * (f + j) - LW, f"v_xor_b32 v{va}, {db*32 | region[ks//2]}, v6"))
                        for e in range(2):
                            B.put(Z + 2 * (f + j) - LW + e, 'd', f"ds_read_b64_tr_b16 {ring(f+j)[2*e:2*e+2]}, v{va} offset:{(ks%2)*16384 + e*4096}", ring(f + j)[2*e:2*e+2])
                    f += len(kss)
            lastread = Z + 2 * f - LW
            assert NP >= 4
            for u in range(NP + 2):
                kt = 16 - NP - 2 + u; p = u % 2
                if kt + 2 < 16:
                    for (m0, txt), gp in zip(dmas(p), g.gpos[p]): B.putg(gp - p * T + u * T, txt, f"kv{kt+2}", m0)
                    for gp, txt in g.advpos:
                        if gp // T == p: B.put(gp - p * T + u * T, 'v', txt)
            if pfs: B.putg(g.gpos[1][-1] + 3, pfs[1][0], "pf")
            t12 = (NP - 2) * T; xlast = {}
            for rnd in range(4):
                t = t12 + rnd * T + b2 if rnd < 3 else Z
                for tt in range(2 * rnd, min(2 * rnd + 2, 7)):
                    for qs in range(2):
                        for h in range(2):
                            tx = f"ds_read_b128 {xf(2*tt+h, qs)}, v{3 if h else 14} offset:{(tt%2)*4096 + qs*2048}"
                            if rnd == 2 and (t + 1 - b1 - 3) % 5 == 0: t += 1
                            if rnd < 3: t = B.place(t + 1, t + 12, 'd', tx, xf(2 * tt + h, qs))
                            else: t += 2; B.put(t, 'd', tx, xf(2 * tt + h, qs))
                xlast[rnd] = t
            def lgkm_cover(pos, lastpos):
                cnt = sum(1 for k in range(lastpos + 1, pos) for it in B.vec[k] if it[0] == 'd')
                B.put(pos, 's', f"s_waitcnt lgkmcnt({min(cnt, 15)})")
            xstart = {0: t12 + 6}
            for rnd in range(1, 4):
                pos = max(t12 + rnd * T + 2, xlast[rnd - 1] + 8); lgkm_cover(pos, xlast[rnd - 1]); xstart[rnd] = pos + 1
            br4 = xlast[3] + 10; lgkm_cover(br4 - 1, xlast[3]); B.put(br4, 's', "s_barrier")
            bfree = gstart[1] + 10
            B.put(bfree - 1, 's', "s_waitcnt lgkmcnt(9)"); B.put(bfree, 's', "s_barrier")
            B.put(N - 3, 's', "s_waitcnt lgkmcnt(0)"); B.put(N - 2, 's', "s_barrier")
            bars = []
            for u in range(1, NP + 1): bars.append((u * T + b2, [f"kv{16-NP-2+u+1}"] + ([f"x{u-NP+2}"] if u >= NP - 2 else [])))
            for gi, grp in enumerate(groups): bars.append((gstart[gi] - 1, [f"wq{t}" for t in grp] + (["x3"] if gi == 0 else [])))
            for pos, tags in bars: B.vmwait(pos - 1, tags); B.put(pos, 's', "s_barrier")
            B.auto_lgkm(look=3, maxcnt=15)
            def gfree(t): return not B.has(t, 'g') and not any(k in 've' for k, *_ in B.vec[t]) and all(x.startswith("s_waitcnt") for x in B.pre[t]) and len(B.pre[t]) <= 1
            state = dict(last=-1)
            def G1(t, txt, tag, sc=None, mind=2):
                while True:
                    if gfree(t) and not any(B.has(k, 'g') for k in range(max(0, t - mind + 1), min(N, t + mind))) and (sc is None or not B.pre[t - 1] or (not B.pre[t - 2] and not B.has(t - 2, 'g'))): break
                    t += 1
                B.putg(t, txt, tag)
                if sc: B.put(t - 1 if not B.pre[t - 1] else t - 2, 's', sc)
                return t
            for pos, tx in xors: B.place(pos - 3, pos, 'v', tx, back=True)
            B.place((NP + 1) * T + b1, xors[0][0] - 3, 'v', "v_xor_b32 v6, s60, v6")
            wq = lambda t, j: (f"buffer_load_dwordx4 v{VQ}, s[16:19], {xsoff(j)} offen lds", f"wq{t}", f"s_add_u32 m0, {sW1K}, {region[t] + j*4096}")
            B.place(H, H + 5, 'v', f"v_accvgpr_read_b32 v{VXA}, a240")
            if o['pf']:
                tq = B.place(H, H + 5, 'v', "v_accvgpr_read_b32 v14, a244"); tq = G1(tq + 1, m.code_pf(), "pf")
            else: tq = H
            tq = B.place(tq + 1, tq + 20, 'v', "v_accvgpr_read_b32 v14, a242"); B.place(tq + 1, tq + 20, 'v', "v_xor_b32 v3, 64, v14")
            B.place(NP * T, NP * T + 20, 'v', f"v_lshlrev_b32 v{VST}, 4, v0")
            cur = [16]
            def wgroup(t, start, step):
                start = B.place(start - 2, start + 8, 'v', f"v_add_u32 v{VQ}, {((t - cur[0]) * 0x80000) & 0xffffffff:#x}, v{VQ}") + 1; cur[0] = t
                for j in range(8): start = G1(start, *wq(t, j)) + step
                return start
            for rnd in range(4):
                t = xstart[rnd]
                for tt in range(2 * rnd, min(2 * rnd + 2, 7)):
                    for qs in range(2):
                        for h in range(2):
                            im = h * 896 + tt * 128
                            t = G1(t, f"buffer_load_dwordx4 v{VXA}, s[20:23], {'s57' if qs else 0} offen offset:{im} lds", f"x{rnd}", f"s_add_u32 m0, s33, {((tt%2)*4096 + qs*2048 + h*1024 - im) & 0xffffffff:#x}") + 4
                assert t - 4 < t12 + rnd * T + b1 + 12, (rnd, t)
            t = wgroup(0, NP * T + b1 + 3, 5); t = wgroup(1, t, 5)
            t = wgroup(2, (NP + 1) * T + b1 + 3, 5); t = wgroup(3, t, 5)
            t = wgroup(4, max(t, br4 + 3), 6)
            t = wgroup(5, max(t, bfree + 3), o['wstep']); t = wgroup(6, t, o['wstep'])
            def V1(t, txt): return B.place(t, N, 'v', txt)
            soff = (lambda k: k[1] * 8192 + k[0] * 1024) if ty == 0 else (lambda k: k[1] * 16384 + k[0] * 1024)
            base15 = (NP + 1) * T
            tv = 0; ready = {}; packed = {}
            ts = Z + o['st0']; spos = {}
            for pi in (2, 3, 0, 1) + tuple(range(4, 32)):
                r = {2: hi(0), 3: hi(4)}.get(pi) or lo(pi); off = soff(g.order[pi])
                ts = spos[pi] = G1(ts, f"buffer_store_dwordx4 {r}, v{VST}, s[12:15], s59 offen offset:{off % 4096}{o['stfl']}", "st", f"s_add_u32 s59, s58, {off - off % 4096}")
                ts += o['ststep']
            def cv(pi, dst, s0, s1):
                nonlocal tv
                for i, (x, y) in enumerate(((s0[0], s0[1]), (s0[2], s0[3]), (s1[0], s1[1]), (s1[2], s1[3]))): tv = V1(tv, f"v_cvt_pk_bf16_f32 {dst[i]}, {x}, {y}")
                packed[pi] = (dst, tv)
            for pi in (0, 1, 2, 4, 5, 3) + tuple(range(6, 32)):
                k = g.order[pi]; tv = max(tv, base15 + g.done[k] + 8)
                if pi in (2, 3):
                    ta, tb = (hi(0), hi(1)) if pi == 2 else (hi(4), hi(5))
                    for i in range(8): tv = V1(tv, f"v_accvgpr_read_b32 {(ta if i < 4 else tb)[i%4]}, {g.preg[k][i]}")
                    cv(pi, ta, ta, tb); ready['hi', 1 if pi == 2 else 5] = tv
                else:
                    cv(pi, lo(pi), lo(pi), hi(pi)); ready['hi', pi] = tv
            for pi in range(32):
                assert packed[pi][1] < spos[pi], (pi, packed[pi][1], spos[pi])
                ready[{2: ('hi', 0), 3: ('hi', 4)}.get(pi, ('lo', pi))] = spos[pi]
            for idx, kq in enumerate(qlist): assert ready[kq] < Z + 4 * idx - 1, (kq, ready[kq], Z + 4 * idx)
            tp = ts - o['ststep'] + o['pubgap']
            late_pub = tp > N - 12
            if not late_pub:
                while B.pre[tp] or B.pre[tp - 1] or B.has(tp, 'g'): tp += 1
                B.vmwait(tp - 1, ["st"]); B.put(tp, 's', "s_barrier")
                B.place(Z, tp, 'v', f"v_mov_b32 v{VONE}, 1")
                G1(tp + 1, f"buffer_store_dword v{VONE}, off, s[12:15], {sFKV} sc1", "fl", mind=1)
            rest = []; tv = 0
            for s in range(8):
                for qs in range(2):
                    ra, rb = qacc(2 * s, qs), qacc(2 * s + 1, qs)
                    cvs = [f"v_cvt_pk_bf16_f32 {ra[i]}, {x}, {y}" for i, (x, y) in enumerate(((ra[0], ra[1]), (ra[2], ra[3]), (rb[0], rb[1]), (rb[2], rb[3])))]
                    wrs = [f"v_accvgpr_write_b32 {Q(qs,s)[i]}, {ra[i]}" for i in range(4)]
                    off = qs * 0x8000 + s * 1024
                    sto = (f"buffer_store_dwordx4 {ra}, v{VST}, s[12:15], s59 offen offset:{off % 4096} sc1", "qst", f"s_add_u32 s59, s62, {off - off % 4096}")
                    tv = max(tv, qdone[2 * s + 1, qs] + 8)
                    free = sum(1 for k in range(min(tv, N), N - 4) if B.fits(k, 'v'))
                    if free >= 20 and not rest:
                        for r in (ra, rb):
                            for i in range(4): tv = V1(tv, f"v_mul_f32 {r[i]}, s34, {r[i]}")
                        for x in cvs: tv = V1(tv, x)
                        if ty == 1: G1(tv + 1, *sto)
                        for x in wrs: tv = V1(tv, x)
                    else:
                        rest += [f"v_pk_mul_f32 {r[i:i+2]}, {r[i:i+2]}, s[34:35]" for r in (ra, rb) for i in (0, 2)] + cvs + ([sto[2], sto[0]] if ty == 1 else []) + wrs
            B.resolve_vm()
            print(f"tail{ty} pattern:", " ".join(B.pattern().split()[H:])); print("over", len([x for x in B.report() if x[0] >= H]), "rest", len(rest), "late_pub", late_pub)
            a(*B.lines(H, Z)); m.mark("kv_end"); a(*B.lines(Z, N))
            m.mark("q_end")
            a("s_nop 3"); a(*rest)
            if late_pub: a(f"v_mov_b32 v{VONE}, 1", "s_waitcnt vmcnt(0)", "s_barrier", f"buffer_store_dword v{VONE}, off, s[12:15], {sFKV} sc1")

        def loop(g, lab):
            B = g.B
            k = [i for i in range(4, 40) if not B.pre[i] and not B.vec[i]][0]
            pre_k = list(B.pre[k])
            L = B.lines(0, k) + [B.m[k][0], "s_cmp_eq_u32 s61, s55", f"s_cbranch_scc1 {lab}_side", f"{lab}_back:"] + B.lines(k + 1, B.n - 2)
            L += [B.m[B.n-2][0], "s_add_u32 s61, s61, 1"] + B.lines(B.n - 2, B.n - 1)[1:] + B.lines(B.n - 1, B.n) + [f"s_cmp_lt_u32 s61, {niter}", f"s_cbranch_scc1 {lab}"]
            a(".p2align 6", f"{lab}:"); a(*L)
        loop(G[0], f"{name}_kloop"); tail(G[0], 0)
        a(f"s_branch {name}_kvdone")
        for lab in ("kloop", "vloop"):
            a(f"{name}_{lab}_side:", "s_mov_b64 exec, 1", f"global_atomic_add v3, v15, s[{pDbg}:{pDbg+1}] offset:128 sc1", "s_mov_b64 exec, -1", f"s_branch {name}_{lab}_back")
        loop(G[1], f"{name}_vloop"); tail(G[1], 1)
        a(f"{name}_kvdone:")
        m.mark("q_stored")

def mega2(a, name, diag=False, **o):
    m = Mega2(a, name, diag, **o)
    kernel_header(a, name)
    a("s_cmp_lt_u32 s2, 256", f"s_cbranch_scc1 {name}_go", "s_endpgm", f"{name}_go:")
    m.proj(); m.attn()
    a(f"s_cmp_ge_u32 {sJJ}, 14", f"s_cbranch_scc1 {name}_fin")
    m.s2(); m.outp()
    a(f"{name}_fin:")
    if diag:
        a("s_waitcnt vmcnt(0)"); m.mark("drain"); m.st.store(a)
    a("s_endpgm", f"{name}_codeend:")
    return kernel_desc(name)

def make(diag=False, **o):
    from build import build, NAME
    s = build([(NAME + "_kernel", mega2, 256, 163840, o)], diag=diag)
    return s.replace(f"; @launch kernel={NAME}_kernel grid", "; @launch grid").replace(NAME + "_kernel_", "L_")
if __name__ == "__main__":
    import sys, hazard
    s = make(diag=len(sys.argv) > 2)
    print("hazards", hazard.check(s))
    open(sys.argv[1] if len(sys.argv) > 1 else "mega.s", "w").write(s)
```

```python
import re

class Asm:
    def __init__(self):
        self.L = []
    def __call__(self, *lines):
        for s in lines:
            for t in s.split("\n"):
                t = t.strip()
                if t: self.L.append(t)
    def text(self):
        out = []
        for t in self.L:
            if t.endswith(":") or t.startswith(".") or t.startswith(";"): out.append(t)
            else: out.append(" " + t)
        return "\n".join(out) + "\n"

def R(kind, lo, n=1):
    return f"{kind}{lo}" if n == 1 else f"{kind}[{lo}:{lo+n-1}]"

class Reg:
    def __init__(self, kind, lo, n): self.kind, self.lo, self.n = kind, lo, n
    def __str__(self): return R(self.kind, self.lo, self.n)
    def __getitem__(self, i):
        if isinstance(i, slice):
            a, b = i.start or 0, self.n if i.stop is None else i.stop
            return Reg(self.kind, self.lo + a, b - a)
        assert 0 <= i < self.n
        return Reg(self.kind, self.lo + i, 1)
    def set(self): return {(self.kind, self.lo + i) for i in range(self.n)}

def mfma(d, a, b, c):
    return f"v_mfma_f32_16x16x32_bf16 {d}, {a}, {b}, {c}"

class Body:
    COST = dict(d=1, v=1, e=2, g=2)
    def __init__(self, n, cyclic=True):
        self.n = n; self.cyclic = cyclic
        self.m = [None] * n
        self.pre = [[] for _ in range(n)]
        self.vec = [[] for _ in range(n)]
        self.post = [[] for _ in range(n)]
        self.tag = {}
    def set_mfma(self, i, d, a, b, c):
        src = a.set() | b.set() | (c.set() if isinstance(c, Reg) else set())
        self.m[i] = (mfma(d, a, b, c), src, d.set())
    def vcost(self, i): return sum(self.COST[k] for k, *_ in self.vec[i])
    def has(self, i, kind): return any(k == kind for k, *_ in self.vec[i])
    def fits(self, i, kind):
        i %= self.n
        used = self.vcost(i) + max(0, len(self.pre[i]) - 1) + len(self.post[i])
        if kind == 's':
            if self.has(i, 'g'): return False
            return len(self.pre[i]) == 0 or used < 2
        if kind == 'd': return not self.has(i, 'd') and used + 1 <= 2
        if kind == 'g': return used == 0 and all(t.startswith("s_waitcnt") for t in self.pre[i])
        return used + self.COST[kind] <= 2
    def put(self, i, kind, text, dst=None, src=None):
        i %= self.n
        if kind == 's': self.pre[i].append(text); return i
        if kind == 'S': self.post[i].append(text); return i
        item = (kind, text, dst.set() if isinstance(dst, Reg) else (dst or set()), src.set() if isinstance(src, Reg) else (src or set()))
        if kind == 'd': self.vec[i].insert(0, item)
        else: self.vec[i].append(item)
        return i
    def putg(self, i, text, tag, m0=None):
        self.put(i, 'g', text); self.tag[i % self.n, text] = tag
        if m0: self.put(i - 1, 's', m0)
        return i
    def vmwait(self, i, tags):
        self.pre[i % self.n].insert(0, "s_waitcnt vmcnt(@" + ",".join(tags) + "@)")
    def resolve_vm(self, init=()):
        ops = list(init)
        for i in range(self.n):
            for k, t in enumerate(self.pre[i]):
                mm = re.search(r"vmcnt\(@(.*)@\)", t)
                if mm:
                    tags = mm.group(1).split(",")
                    lastidx = max(j for j, tg in enumerate(ops) if tg in tags)
                    cnt = min(63, len(ops) - 1 - lastidx)
                    self.pre[i][k] = t.replace(mm.group(0), f"vmcnt({cnt})")
                    self.vm_seen = getattr(self, "vm_seen", {}); self.vm_seen.update({tg: i for tg in tags})
            for kd, t, *_ in self.vec[i]:
                if kd == 'g':
                    tg = self.tag.get((i, t))
                    assert tg not in getattr(self, "vm_seen", {}), f"op {t} tagged {tg} issued after its wait"
                    ops.append(tg)
        return ops
    def place(self, lo, hi, kind, text, dst=None, src=None, back=False):
        rng = range(hi - 1, lo - 1, -1) if back else range(lo, hi)
        for i in rng:
            if self.fits(i, kind):
                self.put(i, kind, text, dst, src); return i
        raise RuntimeError(f"no slot for {text} in [{lo},{hi})")
    def auto_lgkm(self, look=1, maxcnt=8):
        n = self.n
        waits = {}
        issued = []
        done = 0
        rounds = 3 if self.cyclic else 1
        for r in range(rounds):
            for i in range(n):
                for t in self.pre[i]:
                    mm = re.search(r"lgkmcnt\((\d+)\)", t)
                    if mm: done = max(done, len(issued) - int(mm.group(1)))
                need = -1
                def youngest(src):
                    for k in range(len(issued) - 1, done - 1, -1):
                        if issued[k] & src: return k
                    return -1
                j = i + 1
                if j < n or self.cyclic:
                    need = youngest(self.m[j % n][1])
                    if need >= 0:
                        for q in range(2, look + 1):
                            if i + q < n or self.cyclic:
                                need = max(need, youngest(self.m[(i + q) % n][1]))
                for k, t, dst, src in self.vec[i]:
                    if k != 'd' and src: need = max(need, youngest(src))
                if need >= 0:
                    cnt = min(len(issued) - 1 - need, maxcnt)
                    need = len(issued) - 1 - cnt
                    if r == rounds - 1 or not self.cyclic: waits[i] = min(cnt, waits.get(i, 99))
                    elif r >= 1: waits[i] = min(cnt, waits.get(i, 99))
                    done = need + 1
                for k, t, dst, src in self.vec[i]:
                    if k == 'd':
                        if (j < n or self.cyclic) and dst & self.m[j % n][1]: raise RuntimeError("load right before use")
                        issued.append(dst)
        for i, c in waits.items():
            merged = False
            for k, t in enumerate(self.pre[i]):
                if t.startswith("s_waitcnt") and "lgkmcnt" not in t:
                    self.pre[i][k] = t + f" lgkmcnt({c})"; merged = True; break
            if not merged: self.pre[i].insert(0, f"s_waitcnt lgkmcnt({c})")
        return waits
    def lines(self, lo=0, hi=None):
        out = []
        for i in range(lo, self.n if hi is None else hi):
            out.append(self.m[i][0])
            out += self.pre[i]
            out += [t for k, t, *_ in self.vec[i]]
            out += self.post[i]
        return out
    def report(self):
        over = []
        for i in range(self.n):
            used = self.vcost(i) + max(0, len(self.pre[i]) - 1) + len(self.post[i])
            if used > 2 or (self.has(i, 'g') and any(not t.startswith("s_waitcnt") for t in self.pre[i])): over.append((i, used))
        return over
    def pattern(self):
        return " ".join("".join('w' if t.startswith("s_waitcnt") else 'b' if t.startswith("s_barrier") else 's' for t in self.pre[i]) + "".join(k for k, *_ in self.vec[i]) + "S" * len(self.post[i]) or "." for i in range(self.n))

def kernel_header(a, name):
    a(f".globl {name}", ".p2align 8", f".type {name},@function", f"{name}:")

def kernel_desc(name, vgpr=512, accum=256, sgpr=102, denorm=0):
    return "\n".join([".p2align 6", f".amdhsa_kernel {name}", f"  .amdhsa_next_free_vgpr {vgpr}", f"  .amdhsa_next_free_sgpr {sgpr}",
        f"  .amdhsa_accum_offset {accum}", "  .amdhsa_group_segment_fixed_size 0", "  .amdhsa_kernarg_size 120",
        "  .amdhsa_user_sgpr_count 2", "  .amdhsa_user_sgpr_kernarg_segment_ptr 1", "  .amdhsa_system_sgpr_workgroup_id_x 1", f"  .amdhsa_float_denorm_mode_32 {denorm}",
        ".end_amdhsa_kernel"]) + "\n"

def interleave(a, fill, ops):
    cons = ("s_cselect", "s_cmov", "s_cbranch_scc", "s_addc", "s_subb")
    keep = ("s_mov", "s_movk", "s_mul_i32", "s_getpc", "s_nop", "s_waitcnt", "s_load", "s_getreg", "s_branch")
    n = len(fill); safe = [True] * (n + 1); open_l = set(); ex = False
    for i in range(n + 1):
        if open_l or ex: safe[i] = False
        for t in fill[i:]:
            if t.startswith(cons): safe[i] = False; break
            if t.startswith("s_") and not t.startswith(keep): break
        if i < n:
            t = fill[i]
            if t.startswith(("s_cbranch", "s_branch")): open_l.add(t.split()[1])
            if t.endswith(":"): open_l.discard(t[:-1])
            if t.startswith("s_mov_b64 exec"): ex = not t.endswith("-1")
            if t.startswith("s_getpc"): safe[i + 1] = False
    k = 0
    for i in range(n + 1):
        while k < len(ops) and safe[i] and k * n <= i * len(ops): a(*ops[k]); k += 1
        if i < n: a(fill[i])
    assert k == len(ops)
```

```python
from common import *
import struct
def fbits(x): return f"{struct.unpack('<I', struct.pack('<f', x))[0]:#x}"

V_L16, V_KA, V_VA, V_D0, V_D1 = 1, 2, 3, 1, 4
TS = [Reg('v', 5, 1), Reg('v', 6, 1)]; LS = [Reg('v', 7, 1), Reg('v', 8, 1)]; NM = [Reg('v', 9, 1), Reg('v', 10, 1)]
V_T0, V_T1, V_T2, V_R, V_T3 = 11, 12, 13, 14, 15
P = lambda ks, qs: Reg('v', 16 + (ks * 2 + qs) * 4, 4)
S = lambda kb, qs: Reg('v', 32 + (kb * 2 + qs) * 4, 4)
E = lambda kb, qs: Reg('v', 64 + (kb * 2 + qs) * 4, 4)
C = lambda kb, qs: Reg('v', 96 + (kb * 2 + qs) * 4, 4)
O = lambda db, qs: Reg('v', 128 + (qs * 16 + db) * 4, 4)
Q = lambda qs, s: Reg('a', (qs * 8 + s) * 4, 4)
F = lambda n: Reg('a', 64 + (n % 16) * 4, 4)
def fload(n):
    if n < 32: return f"ds_read_b128 {F(n)}, v{V_KA} offset:{n*1024}"
    db, ks = (n - 32) // 2, (n - 32) % 2
    return f"ds_read_b128 {F(n)}, v{V_VA} offset:{(ks*16+db)*1024}"
def set_qk(B, base):
    for kb in range(4):
        for qs in range(2):
            for s in range(8):
                B.set_mfma(base + 16 * kb + 8 * qs + s, S(kb, qs), F(8 * kb + s), Q(qs, s), C(kb, qs) if s == 0 else S(kb, qs))
def set_pv(B, base):
    for db in range(16):
        for k, (ks, qs) in enumerate(((0, 0), (1, 0), (1, 1), (0, 1))):
            B.set_mfma(base + 4 * db + k, O(db, qs), F(32 + 2 * db + ks), P(ks, qs), O(db, qs))
def cvts():
    return [f"v_cvt_pk_bf16_f32 {P(kb//2, qs)[2*(kb%2)+h]}, {E(kb,qs)[2*h]}, {E(kb,qs)[2*h+1]}" for kb in range(4) for qs in range(2) for h in range(2)]
S_KM, S_VM, S_KP, S_VP, S_LEFT, S_THR, S_FLOOR, S_BIG = 40, 41, 42, 43, 44, 45, 46, 47
def dma(sp, j): return f"buffer_load_dwordx4 v{V_D0 if j < 4 else V_D1}, s[12:15], s{sp} offen offset:{(j%4)*1024} lds"

def main_body(name, L=16, kg=(1, 6), vg=(49, 6), pollslot=None):
    B = Body(128)
    set_qk(B, 0); set_pv(B, 64)
    for n in range(64): B.put(2 * n - L, 'd', fload(n), F(n))
    bv, bk = 64 - L - 1, 128 - L - 1
    for (g0, gs), sm, sp in ((kg, S_KM, S_KP), (vg, S_VM, S_VP)):
        for j in range(8):
            g = g0 + gs * j
            B.put(g, 'g', dma(sp, j))
            if j == 0: B.put(g - 1, 's', f"s_mov_b32 m0, s{sm}")
            if j == 4: B.put(g - 1, 's', "s_bitset1_b32 m0, 12")
        B.put(g + 1, 's', f"s_add_u32 s{sp}, s{sp}, 0x8000"); B.put(g + 2, 's', f"s_xor_b32 s{sm}, s{sm}, 0x8000")
    if pollslot: B.put(pollslot[0], 'g', pollslot[1])
    for b in (bv, bk):
        B.put(b - 1, 's', f"s_waitcnt vmcnt({9 if (pollslot and b == bk) else 8})"); B.put(b, 's', "s_barrier")
    B.auto_lgkm(look=2, maxcnt=15)
    B.place(bv + 1, bk, 'v', f"v_xor_b32 v{V_KA}, 0x8000, v{V_KA}")
    B.place(bk + 1, bk + 16, 'v', f"v_xor_b32 v{V_VA}, 0x8000, v{V_VA}")
    t = 0
    cv = cvts(); cpos = {}
    seq = [cv[0], cv[1], cv[2], cv[3]] + [f"v_add_f32 {LS[q]}, {LS[q]}, {TS[q]}" for q in range(2)] + cv[4:]
    for x in seq:
        while not (B.fits(t, 'v') and (B.has(t, 'd') or t < 12)): t += 1
        B.put(t, 'v', x); cpos[x] = t
    lpos = max(cpos[seq[4]], cpos[seq[5]])
    te = 0; epos = {}
    for kb in range(4):
        for qs in range(2):
            lo = max(16 * kb + 8 * qs + 7 + 5, cpos[cv[(kb * 2 + qs) * 2 + 1]] + 1)
            for i in range(4):
                te = B.place(max(te, lo), 128, 'e', f"v_exp_f32 {E(kb,qs)[i]}, {S(kb,qs)[i]}"); epos[kb, qs, i] = te
    ta = lpos
    for kb in range(4):
        for qs in range(2):
            for i in range(4):
                if kb == 0 and i == 0: continue
                src = E(0, qs)[0] if (kb == 0 and i == 1) else TS[qs]
                ta = B.place(max(ta + 1, epos[kb, qs, i] + 1), 128, 'v', f"v_add_f32 {TS[qs]}, {src}, {E(kb,qs)[i]}")
    ta = B.place(ta + 1, 128, 'v', f"v_add_f32 v{V_T0}, {TS[0]}, {TS[1]}")
    ta = B.place(ta + 1, 127, 'v', f"v_cmp_nge_f32 vcc, s{S_BIG}, v{V_T0}")
    B.place(120, 126, 's', f"s_sub_u32 s{S_LEFT}, s{S_LEFT}, 1")
    B.put(127, 'S', f"s_cbranch_vccnz {name}_slow")
    return B

def k2(a, name, diag=False, nA=18, L=16):
    st = Stamps(diag, 1)
    kernel_header(a, name)
    a("s_cmp_ge_u32 s2, 256", f"s_cbranch_scc1 {name}_end")
    st.mark(a)
    a("s_load_dwordx2 s[30:31], s[0:1], 112")
    a("v_lshrrev_b32 v2, 6, v0", "v_and_b32 v0, 63, v0", "v_readfirstlane_b32 s3, v2",
      "s_and_b32 s33, s2, 7", "s_bfe_u32 s34, s2, 0x30003",
      "s_bfe_u32 s35, s2, 0x10006", "s_lshl_b32 s33, s33, 1", "s_add_u32 s35, s35, s33",
      "s_lshr_b32 s36, s2, 7",
      "s_lshl_b32 s37, s34, 1", f"s_sub_u32 s38, {32-nA}, s37",
      "s_and_b32 s39, s2, 127",
      f"s_mov_b32 s{S_BIG}, {fbits(2.0**24)}")
    a(f"v_lshlrev_b32 v{V_L16}, 4, v0", f"v_add_u32 v{V_D1}, 4096, v{V_L16}")
    a(f"v_and_b32 v{V_R}, 15, v0", f"v_lshrrev_b32 v{V_T0}, 4, v0", f"v_lshlrev_b32 v{V_T0}, 2, v{V_T0}", f"v_sub_u32 v{V_R}, v{V_R}, v{V_T0}",
      "s_lshl_b32 s48, s3, 4", f"v_add_u32 v{V_R}, s48, v{V_R}")
    a("s_lshl_b32 s49, s35, 20", "s_lshl_b32 s50, s3, 13")
    a("s_waitcnt lgkmcnt(0)")
    srd(a, 12, 30, WS_BYTES)
    a("s_sub_u32 s51, 15, s34", "s_cmp_eq_u32 s36, 0", f"s_cbranch_scc1 {name}_roleB")
    a("s_mov_b32 s52, s38", f"s_mov_b32 s53, {nA}", "s_cmp_eq_u32 s38, 0", "s_cselect_b32 s54, 1, 2", f"s_branch {name}_seg")
    a(f"{name}_roleB:", "s_mov_b32 s52, 0", "s_mov_b32 s53, s38", "s_mov_b32 s54, 0", "s_cmp_lg_u32 s38, 0", f"s_cbranch_scc1 {name}_seg")
    a(f"{name}_seg2:", "s_mov_b32 s51, s34", "s_mov_b32 s52, 0", "s_add_u32 s53, s37, 2", "s_mov_b32 s54, 1")
    a(f"{name}_seg:")
    a("s_lshl_b32 s55, s52, 15", "s_add_u32 s55, s55, s49", f"s_add_u32 s{S_KP}, s55, s50", f"s_add_u32 s{S_VP}, s{S_KP}, {WS_V}",
      f"s_mov_b32 s{S_KM}, s50", f"s_add_u32 s{S_VM}, s50, 0x10000",
      "s_lshl_b32 s55, s51, 16", "s_add_u32 s55, s55, s49", "s_add_u32 s55, s55, s50", f"s_add_u32 s55, s55, {WS_Q}", "s_add_u32 s56, s55, 0x8000")
    def issue(sm, sp):
        a(f"s_mov_b32 m0, s{sm}", "s_nop 0")
        for j in range(8):
            if j == 4: a("s_bitset1_b32 m0, 12", "s_nop 0")
            a(dma(sp, j))
        a(f"s_add_u32 s{sp}, s{sp}, 0x8000", f"s_xor_b32 s{sm}, s{sm}, 0x8000")
    issue(S_KM, S_KP)
    for qs in range(2):
        for s in range(8): a(f"buffer_load_dwordx4 {Q(qs,s)}, v{V_D0 if s < 4 else V_D1}, s[12:15], s{55+qs} offen offset:{(s%4)*1024}")
    issue(S_KM, S_KP); issue(S_VM, S_VP)
    a(f"v_mov_b32 v{V_KA}, v{V_L16}", f"v_add_u32 v{V_VA}, 0x10000, v{V_L16}")
    for i in range(96, 256): a(f"v_mov_b32 v{i}, 0")
    for r in LS + NM: a(f"v_mov_b32 {r}, 0")
    a(f"s_mov_b32 s{S_FLOOR}, 0xff800000", "s_cmp_eq_u32 s54, 0", f"s_cselect_b32 s{S_THR}, 0, 2", f"s_sub_u32 s{S_LEFT}, s53, 1")
    def mask(qs):
        a(f"v_mov_b32 v{V_T0}, {fbits(-1e30)}")
        for kb in range(4):
            for i in range(4): a(f"v_cmp_gt_i32 s[{16+2*i}:{17+2*i}], {16*kb+i}, v{V_R}")
            for i in range(4): a(f"v_cndmask_b32 {C(kb,qs)[i]}, {NM[qs]}, v{V_T0}, s[{16+2*i}:{17+2*i}]")
    a(f"s_cmp_ge_u32 s{S_LEFT}, s{S_THR}", f"s_cbranch_scc1 {name}_nomask0")
    mask(0)
    a(f"{name}_nomask0:")
    a("s_waitcnt vmcnt(16)", "s_barrier")
    if diag:
        a("s_cmp_eq_u32 s54, 0", f"s_cbranch_scc1 {name}_st1"); st.mark(a); a(f"{name}_st1:")
    B0 = Body(64, cyclic=False); set_qk(B0, 0)
    for n in range(8): a(fload(n))
    a("s_waitcnt lgkmcnt(0)")
    for n in range(8, 32): B0.put(2 * n - 16, 'd', fload(n), F(n))
    B0.auto_lgkm(look=2, maxcnt=15)
    a(*B0.lines())
    a(f"v_xor_b32 v{V_KA}, 0x8000, v{V_KA}", "s_waitcnt vmcnt(8)", "s_barrier")
    for n in range(L // 2): a(fload(n))
    a(f"{name}_slow:", "s_nop 7")
    for qs in range(2):
        mx, t = f"v{V_T0+qs}", f"v{V_T2}"
        el = [S(kb, qs)[i] for kb in range(4) for i in range(4)]
        a(f"v_max3_f32 {mx}, {el[0]}, {el[1]}, {el[2]}")
        for k in range(3, 15, 2): a(f"v_max3_f32 {mx}, {mx}, {el[k]}, {el[k+1]}")
        a(f"v_max_f32 {mx}, {mx}, {el[15]}")
        for sw in ("v_permlane32_swap_b32", "v_permlane16_swap_b32"):
            a(f"v_mov_b32 {t}, {mx}", "s_nop 1", f"{sw} {mx}, {t}", "s_nop 1", f"v_max_f32 {mx}, {mx}, {t}")
        a(f"v_max_f32 {mx}, s{S_FLOOR}, {mx}", f"v_sub_f32 {NM[qs]}, {NM[qs]}, {mx}")
        for e in el: a(f"v_sub_f32 {e}, {e}, {mx}")
        for kb in range(4):
            for i in range(4): a(f"v_exp_f32 {E(kb,qs)[i]}, {S(kb,qs)[i]}", f"v_mov_b32 {C(kb,qs)[i]}, {NM[qs]}")
        ee = [E(kb, qs)[i] for kb in range(4) for i in range(4)]
        a(f"v_add_f32 {TS[qs]}, {ee[0]}, {ee[1]}")
        for k in range(2, 16): a(f"v_add_f32 {TS[qs]}, {TS[qs]}, {ee[k]}")
    a("s_waitcnt lgkmcnt(0)", f"s_cmp_lg_u32 s{S_FLOOR}, 0", f"s_mov_b32 s{S_FLOOR}, 0", f"s_cbranch_scc1 {name}_ret")
    for qs in range(2):
        f = f"v{V_T0+qs}"
        a(f"v_exp_f32 {f}, -{f}", "s_nop 0", f"v_mul_f32 {LS[qs]}, {LS[qs]}, {f}")
        for db in range(16):
            for i in range(4): a(f"v_mul_f32 {O(db,qs)[i]}, {O(db,qs)[i]}, {f}")
    a(f"s_branch {name}_ret")
    B = main_body(name, L)
    print("attn pattern:", B.pattern()); print("over:", B.report())
    a(".p2align 6", f"{name}_loop:")
    a(*B.lines())
    a(f"{name}_ret:", f"s_cmp_gt_u32 s{S_LEFT}, s{S_THR}", f"s_cbranch_scc1 {name}_loop")
    a(f"s_cmp_eq_u32 s{S_LEFT}, 0", f"s_cbranch_scc1 {name}_tail", f"s_cmp_eq_u32 s{S_LEFT}, 1", f"s_cbranch_scc1 {name}_d1")
    mask(0); a("s_nop 0", f"s_branch {name}_loop")
    a(f"{name}_d1:")
    mask(1)
    for kb in range(4):
        for i in range(4): a(f"v_mov_b32 {C(kb,0)[i]}, v{V_T0}")
    a("s_nop 0", f"s_branch {name}_loop")
    a(f"{name}_tail:", "s_waitcnt vmcnt(0) lgkmcnt(0)", "s_barrier")
    for n in range(32, 40): a(fload(n))
    a(*cvts())
    for q in range(2): a(f"v_add_f32 {LS[q]}, {LS[q]}, {TS[q]}")
    a("s_waitcnt lgkmcnt(0)")
    BT = Body(64, cyclic=False); set_pv(BT, 0)
    for n in range(40, 64): BT.put(2 * (n - 32) - 16, 'd', fload(n), F(n))
    BT.auto_lgkm(look=2, maxcnt=15)
    a(*BT.lines())
    if diag:
        a("s_cmp_eq_u32 s54, 0", f"s_cbranch_scc1 {name}_st2"); st.mark(a); a(f"{name}_st2:")
    for qs in range(2):
        l, t = LS[qs], f"v{V_T2}"
        for sw in ("v_permlane32_swap_b32", "v_permlane16_swap_b32"):
            a(f"v_mov_b32 {t}, {l}", "s_nop 1", f"{sw} {l}, {t}", "s_nop 1", f"v_add_f32 {l}, {l}, {t}")
    for qs in range(2): a(f"v_log_f32 {TS[qs]}, {LS[qs]}", f"v_rcp_f32 v{V_T0+qs}, {LS[qs]}")
    for qs in range(2): a(f"v_sub_f32 {TS[qs]}, {TS[qs]}, {NM[qs]}")
    a("s_lshl_b32 s55, s39, 16", "s_lshl_b32 s57, s3, 14", "s_add_u32 s55, s55, s57", f"s_add_u32 s55, s55, {WS_PO}", "s_add_u32 s56, s55, 0x2000",
      "s_lshl_b32 s57, s39, 2", "s_add_u32 s57, s57, s3", "s_lshl_b32 s57, s57, 9", f"s_add_u32 s57, s57, {WS_PL}",
      "s_lshl_b32 s58, s39, 7", f"s_add_u32 s58, s58, {WS_FLAG}", f"v_lshrrev_b32 v{V_T3}, 2, v{V_L16}")
    def pack(qs, s):
        ra, rb = O(2 * s, qs), O(2 * s + 1, qs)
        a(f"v_cvt_pk_bf16_f32 {ra[0]}, {ra[0]}, {ra[1]}", f"v_cvt_pk_bf16_f32 {ra[1]}, {ra[2]}, {ra[3]}",
          f"v_cvt_pk_bf16_f32 {ra[2]}, {rb[0]}, {rb[1]}", f"v_cvt_pk_bf16_f32 {ra[3]}, {rb[2]}, {rb[3]}")
        return ra
    def scale_store(fl):
        for qs in range(2):
            for s in range(8):
                for db in (2 * s, 2 * s + 1):
                    for i in range(4): a(f"v_mul_f32 {O(db,qs)[i]}, {O(db,qs)[i]}, v{V_T0+qs}")
                r = pack(qs, s)
                a(f"buffer_store_dwordx4 {r}, v{V_D0 if s < 4 else V_D1}, s[12:15], s{55+qs} offen offset:{(s%4)*1024}{fl}")
    a("s_cmp_lg_u32 s54, 0", f"s_cbranch_scc1 {name}_final")
    for qs in range(2): a(f"buffer_store_dword {TS[qs]}, v{V_T3}, s[12:15], s57 offen offset:{256*qs} sc1")
    scale_store(" sc1")
    a("s_waitcnt vmcnt(0)", "s_barrier", "s_cmp_lg_u32 s3, 0", f"s_cbranch_scc1 {name}_seg2",
      f"v_mov_b32 v{V_T0}, 1", f"v_mov_b32 v{V_T1}, 0", "s_mov_b64 s[60:61], exec", "s_mov_b64 exec, 1",
      f"buffer_store_dword v{V_T0}, v{V_T1}, s[12:15], s58 offen sc1", "s_mov_b64 exec, s[60:61]", f"s_branch {name}_seg2")
    a(f"{name}_final:", "s_cmp_eq_u32 s54, 1", f"s_cbranch_scc1 {name}_store")
    a(f"v_mov_b32 v{V_T2}, 0", f"{name}_poll:", f"buffer_load_dword v16, v{V_T2}, s[12:15], s58 offen sc1", "s_waitcnt vmcnt(0)",
      "v_readfirstlane_b32 s59, v16", "s_cmp_eq_u32 s59, 1", f"s_cbranch_scc1 {name}_got", "s_sleep 4", f"s_branch {name}_poll", f"{name}_got:")
    for qs in range(2): a(f"buffer_load_dword v{16+qs}, v{V_T3}, s[12:15], s57 offen offset:{256*qs} sc1")
    PB = lambda qs, s: Reg('v', 32 + (qs * 8 + s) * 4, 4)
    for qs in range(2):
        for s in range(8): a(f"buffer_load_dwordx4 {PB(qs,s)}, v{V_D0 if s < 4 else V_D1}, s[12:15], s{55+qs} offen offset:{(s%4)*1024} sc1")
    a("s_waitcnt vmcnt(16)")
    for qs in range(2):
        a(f"v_max_f32 v18, v{16+qs}, {TS[qs]}", f"v_sub_f32 v19, {TS[qs]}, v18", f"v_sub_f32 v20, v{16+qs}, v18",
          "v_exp_f32 v19, v19", "v_exp_f32 v20, v20", "s_nop 0", "v_add_f32 v18, v19, v20", "v_rcp_f32 v18, v18", "s_nop 0",
          "v_mul_f32 v19, v19, v18", f"v_mul_f32 v{22+qs}, v20, v18", f"v_mul_f32 v{V_T0+qs}, v{V_T0+qs}, v19")
    a("s_lshl_b32 s55, s51, 20", "s_lshl_b32 s57, s3, 17", "s_add_u32 s55, s55, s57", "s_lshl_b32 s57, s35, 13", "s_add_u32 s55, s55, s57",
      f"s_add_u32 s55, s55, {WS_CTX}", "s_add_u32 s56, s55, 0x80000", "s_mov_b32 s59, 0xffff0000")
    for qs in range(2):
        for s in range(8):
            a(f"s_waitcnt vmcnt({15})")
            for k in range(8):
                o = O(2 * s + k // 4, qs)[k % 4]; pb = PB(qs, s)[k // 2]
                a(f"v_lshlrev_b32 v24, 16, {pb}" if k % 2 == 0 else f"v_and_b32 v24, s59, {pb}", f"v_mul_f32 v24, v24, v{22+qs}", f"v_fma_f32 {o}, {o}, v{V_T0+qs}, v24")
            r = pack(qs, s)
            a(f"buffer_store_dwordx4 {r}, v{V_D0 if s < 4 else V_D1}, s[12:15], s{55+qs} offen offset:{(s%4)*1024}")
    a(f"s_branch {name}_done")
    a(f"{name}_store:")
    a("s_lshl_b32 s55, s51, 20", "s_lshl_b32 s57, s3, 17", "s_add_u32 s55, s55, s57", "s_lshl_b32 s57, s35, 13", "s_add_u32 s55, s55, s57",
      f"s_add_u32 s55, s55, {WS_CTX}", "s_add_u32 s56, s55, 0x80000")
    scale_store("")
    a(f"{name}_done:")
    if diag:
        st.mark(a); a("s_waitcnt vmcnt(0)"); st.mark(a); st.store(a, "s[12:15]", "s3")
    a(f"{name}_end:", "s_endpgm")
    return kernel_desc(name)
```

```python
from common import *
from gemm import Gemm, quad_order
import k2 as AT
from k2 import V_L16, V_KA, V_VA, V_D0, V_D1, TS, LS, NM, V_T0, V_T1, V_T2, V_R, V_T3, P, S, E, C, O, Q, F, fload, set_qk, set_pv, cvts
from k2 import S_KM, S_VM, S_KP, S_VP, S_LEFT, S_THR, S_FLOOR, S_BIG

F_KV, F_CTX, F_PO, F_U, F_Y = (WS_FLAG + x for x in (0, 0x1000, 0x2000, 0x6000, 0x7000))
sX, sI, sH, sROLE, sJJ, sW1K = "s24", "s25", "s26", "s27", "s28", "s29"
pAq, pAk, pAv, pAsh, pAssm, pAD, pX, pC, pWq, pWuk, pWuv, pWo, pOut, pDbg = range(64, 92, 2)
sFKV, sFCTX, sFPO, sIDX = "s92", "s93", "s94", "s95"
STAMPS = ["entry", "e_args", "e_t0", "e_t1", "e_wait", "e_land", "kv_go", "kv_end", "q_end", "q_stored", "s1_done", "kv_flag", "att_go", "seg1_end", "seg1_fin", "tail_go", "tail_end", "po_flag", "att_fin", "op_go", "op_end", "s2_go", "s2_end", "pub", "flag1", "mid_end", "ctx_flag", "p4_loop", "p4_end", "drain"]

class Mega:
    def __init__(m, a, name, diag, **o):
        m.a, m.n, m.st = a, name, Stamps2(diag)
        m.o = dict(b1=40, b2=93, gstep=5, nA=19, L=16, NP=4, stfl=' sc1', st0=-84, ststep=8, pubgap=90, LW=13, groups=((0, 1), (2, 3), (4, 5, 6)),
                   wstep=5, pf=1, PD=2, nunits=9, pfdelay=1, DW=7, C0=4, s2pub=16, sleep=8, pgap=109, oppub=8, LO=14, epf=0, ehalf=190, s1g=340, qlate=0, latepos=0, opw=5); m.o.update(o)
        m.npoll = 0
    def mark(m, nm): m.st.mark(m.a, STAMPS.index(nm))
    def poll(m, soff, n, va, vd, val=0, dbg=False):
        a = m.a; l = f"{m.n}_poll{m.npoll}"; m.npoll += 1
        a(f"v_and_b32 v{va}, {n-1}, v0", f"v_lshlrev_b32 v{va}, 2, v{va}", "s_mov_b32 s32, 0", f"{l}:")
        a(f"global_load_dword v{vd}, v{va}, s[{pDbg}:{pDbg+1}] offset:{soff} sc1" if dbg else f"buffer_load_dword v{vd}, v{va}, s[12:15], {soff} offen sc1")
        a("s_waitcnt vmcnt(0)", f"v_cmp_ne_u32 vcc, {val}, v{vd}", f"s_cbranch_vccz {l}_ok", f"s_sleep {m.o['sleep']}", "s_add_u32 s32, s32, 1",
          "s_cmp_lt_u32 s32, 0x80000", f"s_cbranch_scc1 {l}", f"{l}_ok:")
    def apoll(m, soff, n, areg, va):
        m.a(f"v_and_b32 v{va}, {n-1}, v0", f"v_lshlrev_b32 v{va}, 2, v{va}", f"buffer_load_dword a{areg}, v{va}, s[12:15], {soff} offen sc1")
    def acheck(m, soff, n, areg, va, vd):
        l = f"{m.n}_poll{m.npoll}_ok"
        m.a(f"v_accvgpr_read_b32 v{vd}, a{areg}", f"v_cmp_ne_u32 vcc, 0, v{vd}", f"s_cbranch_vccz {l}")
        m.poll(soff, n, va, vd)
    def code_pf_setup(m):
        a, n = m.a, m.n
        a("s_getpc_b64 s[100:101]", f"{n}_pc:", f"s_sub_u32 s100, s100, {n}_pc-{n}_go", "s_subb_u32 s101, s101, 0",
          "s_lshr_b32 s32, s2, 1", "s_and_b32 s32, s32, 12", "s_add_u32 s32, s32, s3", "s_lshl_b32 s32, s32, 13",
          "v_lshlrev_b32 v14, 7, v0", "v_add_u32 v14, s32, v14", f"v_min_u32 v14, {n}_codeend-{n}_go-4, v14", "v_accvgpr_write_b32 a244, v14")
    def code_pf(m, v=14): return f"global_load_dword a243, v{v}, s[100:101]"
    def setflag(m, soff, va, vd):
        m.a(f"v_mov_b32 v{va}, 0", "s_mov_b64 exec, 1", f"buffer_store_dword v{va}, v{va}, s[12:15], {soff} offen sc1", "s_mov_b64 exec, -1")
    def publish(m, soff, va, vd, local=False):
        a = m.a; l = f"{m.n}_pub{m.npoll}"; m.npoll += 1
        a("s_waitcnt vmcnt(0)", "s_barrier", "s_cmp_lg_u32 s3, 0", f"s_cbranch_scc1 {l}")
        if local: a("s_cmp_lg_u32 s30, 0", f"s_cbranch_scc1 {l}_x", "buffer_wbl2 sc1", "s_waitcnt vmcnt(0)", f"{l}_x:")
        m.setflag(soff, va, vd)
        a(f"{l}:")

    def proj(m):
        a, name, o = m.a, m.n, m.o
        NP = o['NP']
        if m.st.on: a("v_mov_b32 v1, v0"); m.st.init(a); m.mark("entry"); a("v_mov_b32 v0, v1")
        a("s_load_dwordx16 s[64:79], s[0:1], 0", "s_load_dwordx8 s[80:87], s[0:1], 64", "s_load_dwordx4 s[88:91], s[0:1], 96", "s_load_dwordx2 s[12:13], s[0:1], 112")
        a("v_lshrrev_b32 v1, 6, v0", "v_and_b32 v0, 63, v0", "v_readfirstlane_b32 s3, v1",
          f"s_and_b32 {sX}, s2, 7", f"s_bfe_u32 {sI}, s2, 0x30003", f"s_bfe_u32 {sH}, s2, 0x10006", f"s_lshl_b32 s37, {sX}, 1", f"s_add_u32 {sH}, {sH}, s37",
          f"s_lshr_b32 {sROLE}, s2, 7", f"s_bfe_u32 {sJJ}, s2, 0x40003", f"s_lshl_b32 {sW1K}, s3, 10",
          "s_and_b32 s39, s3, 1", "s_lshr_b32 s40, s3, 1")
        m.code_pf_setup()
        if o['pf']: a(m.code_pf())
        def wrow(j): return 4 * (j & 1) + 16 * ((j >> 1) & 1) + 32 * (j >> 2)
        for j in range(1, 8): a(f"s_mov_b32 s{40+j}, {65536*j}", f"s_mov_b32 s{47+j}, {wrow(j)*8192}")
        ysoff = lambda j: "0" if j == 0 else f"s{40+j}"
        xsoff = lambda j: "0" if j == 0 else f"s{47+j}"
        a("s_lshl_b32 s56, s39, 1", "s_lshl_b32 s57, s40, 3", "s_add_u32 s56, s56, s57")
        VY, VX, VST, VQ, VXA, VONE = 1, 2, 1, 2, 15, 11
        yaddr = [Reg('v', 4, 1), Reg('v', 5, 1)]
        xaddr = [Reg('v', 6 + i, 1) for i in range(8)]
        a(f"s_lshl_b32 s60, {sI}, 8", "s_lshl_b32 s58, s3, 3", "s_add_u32 s58, s58, s60", "v_lshrrev_b32 v14, 3, v0", "v_add_u32 v14, s58, v14", "v_lshlrev_b32 v14, 11, v14",
          "s_lshl_b32 s58, s39, 2", "v_lshrrev_b32 v15, 4, v0", "v_add_u32 v15, s58, v15", "v_xor_b32 v15, v0, v15", "v_and_b32 v15, 7, v15", f"v_lshl_add_u32 v{VY}, v15, 4, v14")
        a("v_lshrrev_b32 v14, 5, v0", "s_lshl_b32 s58, s3, 1", "v_add_u32 v15, s58, v14",
          "v_lshlrev_b32 v15, 1, v15", "v_xor_b32 v15, v0, v15", "v_and_b32 v15, 31, v15", "v_lshlrev_b32 v15, 4, v15",
          "v_add_u32 v14, s56, v14", "v_lshl_add_u32 v14, v14, 13, v15", f"s_lshl_b32 s58, {sH}, 9", f"v_add_u32 v{VX}, s58, v14")
        a(f"s_lshl_b32 s31, {sI}, 16", "s_add_u32 s31, s31, s58", "v_lshrrev_b32 v15, 3, v0", "v_lshlrev_b32 v15, 13, v15", "v_and_b32 v14, 7, v0", "v_lshlrev_b32 v14, 6, v14", "v_add3_u32 v16, v14, v15, s31",
          f"s_lshl_b32 s31, {sI}, 2", "s_lshr_b32 s32, s2, 6", "s_add_u32 s31, s31, s32", "s_lshl_b32 s31, s31, 17", "v_lshlrev_b32 v17, 11, v0", "v_add_u32 v17, s31, v17",
          "s_cmp_eq_u32 s3, 0", "s_cselect_b32 s30, 0x80000, 2.0", "s_cmp_eq_u32 s3, 1", "s_cselect_b32 s31, 128, 2.0")
        a("s_waitcnt lgkmcnt(0)")
        m.mark("e_args")
        a(f"s_cmp_eq_u32 {sROLE}, 0", f"s_cselect_b32 s8, s{pWuk}, s{pWuv}", f"s_cselect_b32 s9, s{pWuk+1}, s{pWuv+1}", "s_mov_b32 s10, 8388608", "s_mov_b32 s11, 0x20000")
        srd(a, 4, pC, 4194304); a(f"s_mov_b32 s14, {WS_BYTES}", "s_mov_b32 s15, 0x20000")
        def dmas(p):
            y = [(f"s_add_u32 m0, {sW1K}, {p*32768 + j*4096}", f"buffer_load_dwordx4 v{VY}, s[4:7], {ysoff(j)} offen lds") for j in range(8)]
            x = [(f"s_add_u32 m0, {sW1K}, {65536 + p*32768 + j*4096}", f"buffer_load_dwordx4 v{VX}, s[8:11], {xsoff(j)} offen lds") for j in range(8)]
            return [d for pr in zip(x, y) for d in pr]
        adv = [f"v_add_u32 v{VY}, 128, v{VY}", f"v_add_u32 v{VX}, 0x80000, v{VX}"]
        if o['epf']: a("buffer_load_dword a243, v16, s[8:11], s30 offen", "buffer_load_dword a243, v17, s[4:7], s31 offen")
        real = a; a = Asm()
        a(f"s_lshl_b32 s58, {sROLE}, 3", f"s_add_u32 s59, s58, {sI}", "s_lshl_b32 s59, s59, 2", f"s_lshl_b32 {sFKV}, {sH}, 7", f"s_add_u32 {sFKV}, {sFKV}, s59", f"s_add_u32 {sFKV}, {sFKV}, {F_KV}",
          f"s_add_u32 s58, s58, {sX}", f"s_mul_i32 {sIDX}, s58, 14", f"s_add_u32 {sIDX}, {sIDX}, {sJJ}",
          f"s_sub_u32 s63, 15, {sI}", f"s_cmp_eq_u32 {sROLE}, 0", f"s_cselect_b32 s63, {sI}, s63",
          f"s_lshl_b32 {sFCTX}, s63, 7", f"s_lshl_b32 s59, {sH}, 2", f"s_add_u32 {sFCTX}, {sFCTX}, s59", f"s_add_u32 {sFCTX}, {sFCTX}, {F_CTX}",
          f"s_and_b32 {sFPO}, s2, 127", f"s_lshl_b32 {sFPO}, {sFPO}, 7", f"s_add_u32 {sFPO}, {sFPO}, {F_PO}")
        a("s_cmp_lg_u32 s3, 0", f"s_cbranch_scc1 {name}_noclr")
        a(f"s_lshl_b32 s58, {sIDX}, 2", f"s_add_u32 s59, s58, {F_Y}", f"s_add_u32 s58, s58, {F_U}", f"s_lshl_b32 s61, {sROLE}, 2", f"s_add_u32 s61, s61, {sFPO}",
          f"s_cmp_lt_u32 {sJJ}, 14", f"s_cselect_b32 s58, s58, {sFKV}", f"s_cselect_b32 s59, s59, {sFKV}",
          f"v_mov_b32 v14, {sFKV}", f"v_writelane_b32 v14, {sFCTX}, 1", "v_writelane_b32 v14, s61, 2", "v_writelane_b32 v14, s58, 3", "v_writelane_b32 v14, s59, 4",
            "v_mov_b32 v15, 1", "s_mov_b64 exec, 31", "buffer_store_dword v15, v14, s[12:15], 0 offen sc1", "s_mov_b64 exec, -1")
        a(f"{name}_noclr:")
        a("s_cmp_eq_u32 s3, 0", "s_cselect_b32 s58, 0, 0x80000000", "v_bfrev_b32 v14, 1", "v_writelane_b32 v14, s58, 0", "v_accvgpr_write_b32 a245, v14")
        a("s_lshl_b32 s58, s39, 7", "s_lshl_b32 s59, s40, 3")
        a("v_and_b32 v14, 15, v0", "v_lshrrev_b32 v15, 4, v0",
          "s_lshl_b32 s60, s63, 7", "s_lshl_b32 s62, s3, 4", "s_add_u32 s60, s60, s62", "v_lshrrev_b32 v13, 3, v0", "v_lshlrev_b32 v13, 1, v13", "v_add_u32 v12, s60, v13", "v_mul_u32_u24 v12, 896, v12", "v_lshrrev_b32 v13, 1, v13", "v_xor_b32 v13, v0, v13", "v_and_b32 v13, 7, v13",
          "v_lshl_add_u32 v13, v13, 4, v12", "v_accvgpr_write_b32 a240, v13",
          "v_lshrrev_b32 v13, 1, v14", "v_xor_b32 v12, v13, v15", "v_lshlrev_b32 v12, 4, v12", "v_lshl_add_u32 v12, v13, 7, v12", "v_and_b32 v13, 1, v14", "v_lshl_add_u32 v12, v13, 10, v12",
          "s_lshl_b32 s33, s3, 13", "s_add_u32 s33, s33, 0x20000", "v_add_u32 v12, s33, v12", "v_accvgpr_write_b32 a242, v12",
          f"v_lshrrev_b32 {yaddr[1]}, 1, v14", f"v_xor_b32 {yaddr[1]}, {yaddr[1]}, v15",
          f"v_add_u32 v14, s58, v14", "v_lshlrev_b32 v14, 7, v14", f"v_lshl_add_u32 {yaddr[0]}, {yaddr[1]}, 4, v14", f"v_xor_b32 {yaddr[1]}, 64, {yaddr[0]}")
        a("v_bfe_u32 v14, v0, 2, 3", "v_lshrrev_b32 v15, 5, v0", "v_lshl_add_u32 v13, v15, 4, v14", "v_lshlrev_b32 v13, 9, v13",
          "v_xor_b32 v14, s59, v14", "v_lshl_add_u32 v13, v14, 5, v13", "v_and_b32 v14, 3, v0", "v_lshl_add_u32 v13, v14, 3, v13",
          f"v_add_u32 {xaddr[0]}, 0x10000, v13")
        for nb in range(1, 8): a(f"v_xor_b32 {xaddr[nb]}, {nb*32}, {xaddr[0]}")
        srd(a, 16, pWq, 448 * 8192); srd(a, 20, pX, 2048 * 896)
        cq = fbits(LOG2E / 16)
        a(f"s_lshl_b32 s58, {sH}, 20", "s_lshl_b32 s62, s63, 16", "s_add_u32 s62, s62, s58", "s_lshl_b32 s59, s3, 13", "s_add_u32 s62, s62, s59", f"s_add_u32 s62, s62, {WS_Q}",
          f"s_lshl_b32 s59, {sI}, 17", "s_add_u32 s58, s58, s59", "s_lshl_b32 s59, s39, 16", "s_add_u32 s58, s58, s59",
          "s_lshl_b32 s59, s40, 12", f"s_lshl_b32 s59, s59, {sROLE}", "s_add_u32 s58, s58, s59", f"s_lshl_b32 s59, {sROLE}, 24", "s_add_u32 s58, s58, s59",
          f"s_mov_b32 s57, {64*896}", "s_lshl_b32 s60, s40, 8", "s_add_u32 s60, s60, 0x10000", f"s_mov_b32 s34, {cq}", f"s_mov_b32 s35, {cq}")
        niter = (16 - NP) // 2
        a(f"s_mul_i32 s55, {sI}, {niter}", "s_lshr_b32 s55, s55, 3", "s_cmp_lg_u32 s3, 0", "s_cmov_b32 s55, 64", "v_mov_b32 v15, 1")
        PD = o['PD']; units = [pWq, pWq, pX, pAk, pAv, pWo, pWo, pAssm, pAq][:o['nunits']]
        a("s_mul_i32 s36, s2, 7282", "s_lshr_b32 s36, s36, 16", "s_mul_i32 s37, s36, 9", "s_sub_u32 s37, s2, s37", "s_lshl_b32 s38, s36, 16",
          f"s_mov_b64 s[30:31], s[{pWq}:{pWq+1}]")
        for u, pp in list(enumerate(units))[2:]: a(f"s_cmp_eq_u32 s37, {u}", f"s_cmov_b64 s[30:31], s[{pp}:{pp+1}]")
        a("s_add_u32 s32, s38, 1835008", "s_cmp_eq_u32 s37, 1", "s_cmov_b32 s38, s32", "s_cmp_eq_u32 s37, 6", "s_cmov_b32 s38, s32",
          "s_lshl_b32 s32, s39, 15", "s_add_u32 s38, s38, s32",
          f"s_cmp_ge_u32 s37, {len(units)}", "s_cmov_b32 s36, 28", "s_cmp_lt_u32 s36, 28", "s_cselect_b32 s32, 0x8000, 0", "s_cselect_b32 s38, s38, 0",
          "s_add_u32 s36, s30, s38", "s_addc_u32 s37, s31, 0", "s_mov_b32 s38, s32", "s_mov_b32 s39, 0x20000",
          "v_lshlrev_b32 v14, 6, v0", f"s_mov_b32 s56, {(-(o['pfdelay'] + max(PD, 1)) * 0x1000) & 0xffffffff:#x}", "s_movk_i32 s30, 0x1000")
        a("s_cmp_ge_u32 s3, 2", f"s_cbranch_scc1 {name}_pfset", "s_mov_b32 s38, 0")
        if PD:
            a("s_cmp_eq_u32 s3, 0", "s_cselect_b64 s[36:37], s[8:9], s[4:5]", "s_cselect_b32 s38, s10, s6", "s_movk_i32 s30, 128", "s_cmov_b32 s30, 0x80000", "s_cselect_b64 vcc, -1, 0",
              "s_lshl_b32 s56, s30, 1", "v_cndmask_b32 v14, v17, v16, vcc")
        a(f"{name}_pfset:", "v_mov_b32 v15, 1", "v_mov_b32 v3, 0")
        for i in range(16, 256, 2): a(f"v_mov_b64 v[{i}:{i+1}], 0")
        for i in range(224, 240): a(f"v_accvgpr_write_b32 a{i}, 0")
        fill = a.L; a = real
        half = o['ehalf']; assert fill.index(f"{name}_noclr:") < half
        while fill[half].startswith("s_") or fill[half - 1].startswith("s_"): half += 1
        print("prologue fill", len(fill), half)
        grp = lambda p: [[m0, "s_nop 0", t] for m0, t in dmas(p)]
        interleave(a, fill[:half], grp(0)); a(*adv); m.mark("e_t0")
        interleave(a, fill[half:], grp(1)); a(*adv); m.mark("e_t1")
        for k in range(max(PD, 1)): a("buffer_load_dword a243, v14, s[36:39], s56 offen", "s_add_u32 s56, s56, s30")
        pfs = [("buffer_load_dword a243, v14, s[36:39], s56 offen", "s_add_u32 s56, s56, s30")] * 2 if o['pf'] else None
        xreg = lambda p, x, s_: Reg('a', (x * 2 + s_) * 4, 4)
        yreg = lambda p, y, s_: Reg('a', 64 + (y * 2 + s_) * 4, 4)
        G = []
        for ty in range(2):
            key = (lambda x, y: (x // 2, y)) if ty == 0 else (lambda x, y: (x, y // 2))
            done = {}
            for n, (x, y, st) in enumerate(quad_order(8, 8, 1)): done[key(x, y)] = n
            order = sorted(done, key=lambda k: done[k])
            preg = {}; nv = 0
            for pi, k in enumerate(order):
                if pi in (2, 3): preg[k] = Reg('a', 224 + 8 * (pi - 2), 8)
                else: preg[k] = Reg('v', 16 + 8 * nv, 8); nv += 1
            half = (lambda x, y: x % 2) if ty == 0 else (lambda x, y: y % 2)
            acc = lambda x, y, preg=preg, key=key, half=half: preg[key(x, y)][4 * half(x, y):4 * half(x, y) + 4]
            g = Gemm(8, 8, acc, ty == 1, xreg, yreg, xaddr, yaddr, dmas, adv, o['b1'], o['b2'], o['gstep'], pf=pfs)
            g.order, g.preg, g.done = order, preg, done
            G.append(g)
        m.mark("e_wait")
        a("s_mov_b32 s61, 0", f"s_waitcnt vmcnt({16+max(PD,1)})"); m.mark("e_land"); a("s_barrier")
        a(*G[0].preload[0])
        m.mark("kv_go")
        a(f"s_cmp_eq_u32 {sROLE}, 0", "s_waitcnt lgkmcnt(0)", f"s_cbranch_scc0 {name}_vloop")

        def tail(g, ty):
            T = 128; H = 256; Z = H + NP * T; N = Z + 448
            b1, b2 = o['b1'], o['b2']
            B = Body(N, cyclic=False)
            for u in range(NP + 2):
                p = u % 2
                for n in range(T): B.m[u * T + n] = g.B.m[p * T + n]
                for q, rel, txt, reg in g.dl:
                    if q == p and u * T + rel >= 0: B.put(u * T + rel, 'd', txt, reg)
                B.put(u * T + b1 - 1, 's', "s_waitcnt lgkmcnt(0)"); B.put(u * T + b1, 's', "s_barrier")
            hi = lambda pi: g.preg[g.order[pi]][4:8]; lo = lambda pi: g.preg[g.order[pi]][0:4]
            qlist = [('hi', 1), ('hi', 5), ('hi', 6), ('hi', 7), ('hi', 0), ('hi', 4)] + [('hi', k) for k in range(8, 32)] + [('lo', 0), ('lo', 1)]
            qacc = lambda db, qs: (hi if qlist[2 * db + qs][0] == 'hi' else lo)(qlist[2 * db + qs][1])
            xf = lambda ks, qs: Reg('a', (128 + (ks * 2 + qs) * 4) if ks < 12 else (112 + ((ks - 12) * 2 + qs) * 4), 4)
            groups = o['groups']; region = [0, 0x10000, 0x8000, 0x18000, 0x20000, 0, 0x10000]
            ring = lambda f: Reg('a', 64 + 4 * (f % 12), 4)
            n = Z; f = 0; LW = o['LW']; gstart = []; qdone = {}; xors = []; na = 0
            for gi, grp in enumerate(groups):
                kss = [2 * t + h for t in grp for h in range(2)]
                gstart.append(Z + 2 * f - LW)
                for db in range(16):
                    for qs in range(2):
                        for j, ks in enumerate(kss):
                            B.set_mfma(n, qacc(db, qs), ring(f + j), xf(ks, qs), 0 if (gi == 0 and j == 0) else qacc(db, qs)); n += 1
                        qdone[db, qs] = n - 1
                    for j, ks in enumerate(kss):
                        if ks % 2 == 0:
                            va = 7 + na % 4; na += 1
                            xors.append((Z + 2 * (f + j) - LW, f"v_xor_b32 v{va}, {db*32 | region[ks//2]}, v6"))
                        for e in range(2):
                            B.put(Z + 2 * (f + j) - LW + e, 'd', f"ds_read_b64_tr_b16 {ring(f+j)[2*e:2*e+2]}, v{va} offset:{(ks%2)*16384 + e*4096}", ring(f + j)[2*e:2*e+2])
                    f += len(kss)
            lastread = Z + 2 * f - LW
            assert NP >= 4
            for u in range(NP + 2):
                kt = 16 - NP - 2 + u; p = u % 2
                if kt + 2 < 16:
                    for (m0, txt), gp in zip(dmas(p), g.gpos[p]): B.putg(gp - p * T + u * T, txt, f"kv{kt+2}", m0)
                    for gp, txt in g.advpos:
                        if gp // T == p: B.put(gp - p * T + u * T, 'v', txt)
            if pfs: B.putg(g.gpos[1][-1] + 3, pfs[1][0], "pf")
            t12 = (NP - 2) * T; xlast = {}
            for rnd in range(4):
                t = t12 + rnd * T + b2 if rnd < 3 else Z
                for tt in range(2 * rnd, min(2 * rnd + 2, 7)):
                    for qs in range(2):
                        for h in range(2):
                            tx = f"ds_read_b128 {xf(2*tt+h, qs)}, v{3 if h else 14} offset:{(tt%2)*4096 + qs*2048}"
                            if rnd == 2 and (t + 1 - b1 - 3) % 5 == 0: t += 1
                            if rnd < 3: t = B.place(t + 1, t + 12, 'd', tx, xf(2 * tt + h, qs))
                            else: t += 2; B.put(t, 'd', tx, xf(2 * tt + h, qs))
                xlast[rnd] = t
            def lgkm_cover(pos, lastpos):
                cnt = sum(1 for k in range(lastpos + 1, pos) for it in B.vec[k] if it[0] == 'd')
                B.put(pos, 's', f"s_waitcnt lgkmcnt({min(cnt, 15)})")
            xstart = {0: t12 + 6}
            for rnd in range(1, 4):
                pos = max(t12 + rnd * T + 2, xlast[rnd - 1] + 8); lgkm_cover(pos, xlast[rnd - 1]); xstart[rnd] = pos + 1
            br4 = xlast[3] + 10; lgkm_cover(br4 - 1, xlast[3]); B.put(br4, 's', "s_barrier")
            bfree = gstart[1] + 10
            B.put(bfree - 1, 's', "s_waitcnt lgkmcnt(9)"); B.put(bfree, 's', "s_barrier")
            B.put(N - 3, 's', "s_waitcnt lgkmcnt(0)"); B.put(N - 2, 's', "s_barrier")
            bars = []
            for u in range(1, NP + 1): bars.append((u * T + b2, [f"kv{16-NP-2+u+1}"] + ([f"x{u-NP+2}"] if u >= NP - 2 else [])))
            for gi, grp in enumerate(groups): bars.append((gstart[gi] - 1, [f"wq{t}" for t in grp] + (["x3"] if gi == 0 else [])))
            for pos, tags in bars: B.vmwait(pos - 1, tags); B.put(pos, 's', "s_barrier")
            B.auto_lgkm(look=3, maxcnt=15)
            def gfree(t): return not B.has(t, 'g') and not any(k in 've' for k, *_ in B.vec[t]) and all(x.startswith("s_waitcnt") for x in B.pre[t]) and len(B.pre[t]) <= 1
            state = dict(last=-1)
            def G1(t, txt, tag, sc=None, mind=2):
                while True:
                    if gfree(t) and not any(B.has(k, 'g') for k in range(max(0, t - mind + 1), min(N, t + mind))) and (sc is None or not B.pre[t - 1] or (not B.pre[t - 2] and not B.has(t - 2, 'g'))): break
                    t += 1
                B.putg(t, txt, tag)
                if sc: B.put(t - 1 if not B.pre[t - 1] else t - 2, 's', sc)
                return t
            for pos, tx in xors: B.place(pos - 3, pos, 'v', tx, back=True)
            B.place((NP + 1) * T + b1, xors[0][0] - 3, 'v', "v_xor_b32 v6, s60, v6")
            wq = lambda t, j: (f"buffer_load_dwordx4 v{VQ}, s[16:19], {xsoff(j)} offen lds", f"wq{t}", f"s_add_u32 m0, {sW1K}, {region[t] + j*4096}")
            B.place(H, H + 5, 'v', f"v_accvgpr_read_b32 v{VXA}, a240")
            if o['pf']:
                tq = B.place(H, H + 5, 'v', "v_accvgpr_read_b32 v14, a244"); tq = G1(tq + 1, m.code_pf(), "pf")
            else: tq = H
            tq = B.place(tq + 1, tq + 20, 'v', "v_accvgpr_read_b32 v14, a242"); B.place(tq + 1, tq + 20, 'v', "v_xor_b32 v3, 64, v14")
            B.place(NP * T, NP * T + 20, 'v', f"v_lshlrev_b32 v{VST}, 4, v0")
            cur = [16]
            def wgroup(t, start, step):
                start = B.place(start - 2, start + 8, 'v', f"v_add_u32 v{VQ}, {((t - cur[0]) * 0x80000) & 0xffffffff:#x}, v{VQ}") + 1; cur[0] = t
                for j in range(8): start = G1(start, *wq(t, j)) + step
                return start
            for rnd in range(4):
                t = xstart[rnd]
                for tt in range(2 * rnd, min(2 * rnd + 2, 7)):
                    for qs in range(2):
                        for h in range(2):
                            im = h * 896 + tt * 128
                            t = G1(t, f"buffer_load_dwordx4 v{VXA}, s[20:23], {'s57' if qs else 0} offen offset:{im} lds", f"x{rnd}", f"s_add_u32 m0, s33, {((tt%2)*4096 + qs*2048 + h*1024 - im) & 0xffffffff:#x}") + 4
                assert t - 4 < t12 + rnd * T + b1 + 12, (rnd, t)
            t = wgroup(0, NP * T + b1 + 3, 5); t = wgroup(1, t, 5)
            t = wgroup(2, (NP + 1) * T + b1 + 3, 5); t = wgroup(3, t, 5)
            t = wgroup(4, max(t, br4 + 3), 6)
            t = wgroup(5, max(t, bfree + 3), o['wstep']); t = wgroup(6, t, o['wstep'])
            def V1(t, txt): return B.place(t, N, 'v', txt)
            soff = (lambda k: k[1] * 8192 + k[0] * 1024) if ty == 0 else (lambda k: k[1] * 16384 + k[0] * 1024)
            base15 = (NP + 1) * T
            tv = 0; ready = {}; packed = {}
            ts = Z + o['st0']; spos = {}
            for pi in (2, 3, 0, 1) + tuple(range(4, 32)):
                r = {2: hi(0), 3: hi(4)}.get(pi) or lo(pi); off = soff(g.order[pi])
                ts = spos[pi] = G1(ts, f"buffer_store_dwordx4 {r}, v{VST}, s[12:15], s59 offen offset:{off % 4096}{o['stfl']}", "st", f"s_add_u32 s59, s58, {off - off % 4096}")
                ts += o['ststep']
            def cv(pi, dst, s0, s1):
                nonlocal tv
                for i, (x, y) in enumerate(((s0[0], s0[1]), (s0[2], s0[3]), (s1[0], s1[1]), (s1[2], s1[3]))): tv = V1(tv, f"v_cvt_pk_bf16_f32 {dst[i]}, {x}, {y}")
                packed[pi] = (dst, tv)
            for pi in (0, 1, 2, 4, 5, 3) + tuple(range(6, 32)):
                k = g.order[pi]; tv = max(tv, base15 + g.done[k] + 8)
                if pi in (2, 3):
                    ta, tb = (hi(0), hi(1)) if pi == 2 else (hi(4), hi(5))
                    for i in range(8): tv = V1(tv, f"v_accvgpr_read_b32 {(ta if i < 4 else tb)[i%4]}, {g.preg[k][i]}")
                    cv(pi, ta, ta, tb); ready['hi', 1 if pi == 2 else 5] = tv
                else:
                    cv(pi, lo(pi), lo(pi), hi(pi)); ready['hi', pi] = tv
            for pi in range(32):
                assert packed[pi][1] < spos[pi], (pi, packed[pi][1], spos[pi])
                ready[{2: ('hi', 0), 3: ('hi', 4)}.get(pi, ('lo', pi))] = spos[pi]
            for idx, kq in enumerate(qlist): assert ready[kq] < Z + 4 * idx - 1, (kq, ready[kq], Z + 4 * idx)
            tp = ts - o['ststep'] + o['pubgap']
            late_pub = tp > N - 12
            if not late_pub:
                while B.pre[tp] or B.pre[tp - 1] or B.has(tp, 'g'): tp += 1
                B.vmwait(tp - 1, ["st"]); B.put(tp, 's', "s_barrier")
                B.place(Z, tp, 'v', f"v_accvgpr_read_b32 v{VONE}, a245")
                G1(tp + 1, f"buffer_store_dword v{VONE}, v{VONE}, s[12:15], {sFKV} offen sc1", "fl", mind=1)
            tz = B.place(Z + 20, N, 'v', "v_mov_b32 v12, 0"); tz = G1(tz + 1, f"global_load_dword a248, v12, s[{pDbg}:{pDbg+1}] offset:128 sc1", "arm")
            tz = B.place(tz + 1, N, 'v', "v_and_b32 v12, 15, v0"); B.place(tz + 1, N, 'v', "v_lshlrev_b32 v12, 2, v12")
            sc, ve, vm = m.s1a_ops(); tz = Z + 40
            for x in sc:
                tz += 1
                while B.pre[tz] or B.has(tz, 'g'): tz += 1
                B.put(tz, 's', x)
            tz = max(tz, spos[16])
            for x in ve: tz = B.place(tz + 1, N, 'v', x)
            tz = max(tz + 1, Z + o['s1g'])
            for x in vm: tz = G1(tz, x, "s1") + 4
            rest = []; tv = 0
            for s in range(8):
                for qs in range(2):
                    ra, rb = qacc(2 * s, qs), qacc(2 * s + 1, qs)
                    cvs = [f"v_cvt_pk_bf16_f32 {ra[i]}, {x}, {y}" for i, (x, y) in enumerate(((ra[0], ra[1]), (ra[2], ra[3]), (rb[0], rb[1]), (rb[2], rb[3])))]
                    wrs = [f"v_accvgpr_write_b32 {Q(qs,s)[i]}, {ra[i]}" for i in range(4)]
                    off = qs * 0x8000 + s * 1024
                    sto = (f"buffer_store_dwordx4 {ra}, v{VST}, s[12:15], s59 offen offset:{off % 4096} sc1", "qst", f"s_add_u32 s59, s62, {off - off % 4096}")
                    tv = max(tv, qdone[2 * s + 1, qs] + 8)
                    free = sum(1 for k in range(min(tv, N), N - 4) if B.fits(k, 'v'))
                    if free >= 20 and not rest:
                        for r in (ra, rb):
                            for i in range(4): tv = V1(tv, f"v_mul_f32 {r[i]}, s34, {r[i]}")
                        for x in cvs: tv = V1(tv, x)
                        if ty == 1 and not o['qlate']: G1(tv + 1, *sto)
                        for x in wrs: tv = V1(tv, x)
                    else:
                        rest += [f"v_pk_mul_f32 {r[i:i+2]}, {r[i:i+2]}, s[34:35]" for r in (ra, rb) for i in (0, 2)] + cvs + ([sto[2], sto[0]] if ty == 1 and not o['qlate'] else []) + wrs
            vops = B.resolve_vm()
            print(f"tail{ty} pattern:", " ".join(B.pattern().split()[H:])); print("over", len([x for x in B.report() if x[0] >= H]), "rest", len(rest), "late_pub", late_pub)
            a(*B.lines(H, Z)); m.mark("kv_end"); a(*B.lines(Z, N))
            m.mark("q_end")
            a("s_nop 3"); a(*rest)
            a(f"s_waitcnt vmcnt({len(vops) - 1 - max(i for i, x in enumerate(vops) if x == 's1') + sum(1 for x in rest if x.startswith('buffer_'))})")
            nq = len(vops) - 1 - max(i for i, x in enumerate(vops) if x == 'st') + sum(1 for x in rest if x.startswith('buffer_'))
            m.late = [f"v_accvgpr_read_b32 v{VONE}, a245", "s_waitcnt vmcnt(0)", "s_barrier", f"buffer_store_dword v{VONE}, v{VONE}, s[12:15], {sFKV} offen sc1"] if late_pub else []
            if late_pub and not o['latepos']: a(m.late[0], f"s_waitcnt vmcnt({nq})", *m.late[2:])

        def loop(g, lab):
            B = g.B
            k = [i for i in range(4, 40) if not B.pre[i] and not B.vec[i]][0]
            pre_k = list(B.pre[k])
            L = B.lines(0, k) + [B.m[k][0], "s_cmp_eq_u32 s61, s55", f"s_cbranch_scc1 {lab}_side", f"{lab}_back:"] + B.lines(k + 1, B.n - 2)
            L += [B.m[B.n-2][0], "s_add_u32 s61, s61, 1"] + B.lines(B.n - 2, B.n - 1)[1:] + B.lines(B.n - 1, B.n) + [f"s_cmp_lt_u32 s61, {niter}", f"s_cbranch_scc1 {lab}"]
            a(".p2align 6", f"{lab}:"); a(*L)
            if o.get('rerun'):
                a("s_add_u32 s97, s97, 1", f"s_cmp_gt_u32 s97, {o['rerun']}", f"s_cbranch_scc1 {lab}_norerun", "s_waitcnt vmcnt(0) lgkmcnt(0)", "s_barrier",
                  "s_lshl_b32 s58, s3, 6", "v_add_u32 v0, s58, v0", f"s_branch {name}_go", f"{lab}_norerun:")
        loop(G[0], f"{name}_kloop"); tail(G[0], 0)
        a(f"s_branch {name}_kvdone")
        for lab in ("kloop", "vloop"):
            a(f"{name}_{lab}_side:", "s_mov_b64 exec, 1", f"global_atomic_add v3, v15, s[{pDbg}:{pDbg+1}] offset:128 sc1", "s_mov_b64 exec, -1", f"s_branch {name}_{lab}_back")
        loop(G[1], f"{name}_vloop"); tail(G[1], 1)
        a(f"{name}_kvdone:")
        m.mark("q_stored")

    S1K = lambda m, j: 32 + 8 * j
    S1V = lambda m, j: 72 + 8 * j
    S1W = lambda m, j: 88 + 8 * j
    def s1a_ops(m):
        sc = [f"s_and_b32 s36, {sIDX}, 31", f"s_lshr_b32 s37, {sIDX}, 5", "s_lshl_b32 s38, s3, 4", "s_lshl_b32 s39, s36, 6", "s_add_u32 s38, s38, s39", "s_mul_i32 s38, s38, 896",
              "s_lshl_b32 s39, s37, 7", "s_add_u32 s38, s38, s39", "s_lshl_b32 s39, s37, 9"]
        t = Asm(); srd(t, 4, pAk, 2048 * 896); srd(t, 8, pAv, 2048 * 896); srd(t, 20, pAsh, 448 * 8); sc += t.L
        ve = ["v_lshrrev_b32 v120, 3, v0", "v_mul_u32_u24 v120, 1792, v120", "v_and_b32 v121, 7, v0", "v_lshl_add_u32 v120, v121, 4, v120", "v_add_u32 v120, s38, v120", "v_lshlrev_b32 v121, 6, v121",
              f"v_subrev_u32 v122, {896*3}, v120", f"v_subrev_u32 v123, {896*2}, v120", f"v_subrev_u32 v128, 896, v120"]
        q = lambda r: f"v[{r}:{r+3}]"
        vm = [f"buffer_load_dwordx4 {q(m.S1K(j))}, v{(122,123,128)[j]}, s[4:7], 0 offen" for j in range(3)]
        vm += [f"buffer_load_dwordx4 {q(m.S1K(3+j))}, v120, s[4:7], 0 offen offset:{896*j}" for j in range(2)]
        vm += [f"buffer_load_dwordx4 {q(m.S1V(j))}, v120, s[8:11], 0 offen offset:{896*j}" for j in range(2)]
        vm += [f"buffer_load_dwordx4 {q(m.S1W(j))}, v121, s[20:23], s39 offen offset:{16*j}" for j in range(4)]
        return sc, ve, vm
    def s1b(m):
        a, name = m.a, m.n
        a(f"s_cmp_ge_u32 {sJJ}, 14", f"s_cbranch_scc1 {name}_s1b", "s_mov_b32 s36, 0xffff0000", f"s_and_b32 s33, {sIDX}, 31", f"s_lshr_b32 s34, {sIDX}, 5")
        def unpack(dst, src, hi): a(f"v_and_b32 v{dst}, s36, v{src}" if hi else f"v_lshlrev_b32 v{dst}, 16, v{src}")
        T = 128
        for c2 in range(4):
            for j in range(5):
                for h in range(2): unpack(T + 2 * j + h, m.S1K(j) + c2, h)
            for j in range(2):
                for h in range(2): unpack(T + 10 + 2 * j + h, m.S1V(j) + c2, h)
            for j in range(4):
                for h in range(2): unpack(T + 14 + 2 * j + h, m.S1W(c2) + 2 * h + j // 2, j % 2)
            pr = lambda r: f"v[{T+r}:{T+r+1}]"
            for t in range(2):
                d = pr(22 + 2 * t)
                a(f"v_pk_mul_f32 {d}, {pr(2*t)}, {pr(20)}", f"v_pk_fma_f32 {d}, {pr(2+2*t)}, {pr(18)}, {d}", f"v_pk_fma_f32 {d}, {pr(4+2*t)}, {pr(16)}, {d}",
                  f"v_pk_fma_f32 {d}, {pr(6+2*t)}, {pr(14)}, {d}", f"v_pk_mul_f32 {d}, {d}, {pr(10+2*t)}", f"v_cvt_pk_bf16_f32 v{16+4*t+c2}, v{T+22+2*t}, v{T+23+2*t}")
        a("v_lshrrev_b32 v26, 3, v0", "v_lshlrev_b32 v26, 8, v26", "v_and_b32 v25, 7, v0", "v_lshl_add_u32 v26, v25, 4, v26", "s_lshl_b32 s35, s3, 11", "s_add_u32 s35, s35, 0x20000", "v_add_u32 v26, s35, v26")
        for t in range(2): a(f"ds_write_b128 v26, v[{16+4*t}:{19+4*t}] offset:{128*t}")
        a("v_bfe_u32 v24, v0, 2, 2", "v_bfe_u32 v28, v0, 4, 1", "v_lshl_add_u32 v24, v28, 3, v24", "v_lshlrev_b32 v24, 2, v24", "v_lshrrev_b32 v28, 5, v0", "v_add_u32 v24, v24, v28",
          "v_lshlrev_b32 v24, 7, v24", "v_and_b32 v28, 3, v0", "v_lshl_add_u32 v24, v28, 3, v24", "s_lshl_b32 s35, s3, 5", "s_add_u32 s35, s35, 0x20000", "v_add_u32 v24, s35, v24")
        a("v_and_b32 v25, 15, v0", "v_lshlrev_b32 v25, 12, v25", "v_lshrrev_b32 v28, 4, v0", "v_lshl_add_u32 v25, v28, 4, v25",
          "s_lshl_b32 s35, s34, 2", "s_add_u32 s35, s35, s3", "s_lshl_b32 s35, s35, 16", "s_lshl_b32 s36, s33, 7", "s_add_u32 s35, s35, s36", f"s_add_u32 s35, s35, {WS_U}")
        a(f"{name}_s1b:")
    def s1c(m):
        a, name = m.a, m.n
        a(f"s_cmp_ge_u32 {sJJ}, 14", f"s_cbranch_scc1 {name}_s1c")
        for ph in range(2):
            for e in range(2): a(f"ds_read_b64_tr_b16 v[{16+4*ph+2*e}:{17+4*ph+2*e}], v24 offset:{(16*e + 2*ph)*128}")
        a("s_waitcnt lgkmcnt(0)")
        for ph in range(2): a(f"buffer_store_dwordx4 v[{16+4*ph}:{19+4*ph}], v25, s[12:15], s35 offen offset:{64*ph} sc1")
        a(f"{name}_s1c:")

    def attn(m):
        a, name, o = m.a, m.n, m.o
        nA, L = o['nA'], o['L']
        sNB, sHB, sW8K, sMODE, sQB = "s38", "s49", "s50", "s54", "s51"
        dma = lambda sp, j: AT.dma(sp, j).replace(" lds", " sc1 lds")
        m.s1b()
        if o['latepos']: a(*m.late)
        m.mark("s1_done")
        a(f"s_and_b32 s59, {sFKV}, ~127", "s_mov_b32 s58, s62", "buffer_load_dword a249, v12, s[12:15], s59 offen sc1")
        a(f"s_lshl_b32 s37, {sI}, 1", f"s_sub_i32 {sNB}, {32-nA}, s37", f"s_max_i32 {sNB}, {sNB}, 0",
          f"s_lshl_b32 {sHB}, {sH}, 20", f"s_lshl_b32 {sW8K}, s3, 13", f"s_add_u32 {sHB}, {sHB}, {sW8K}", f"s_mov_b32 {sQB}, s63")
        a("s_add_u32 s53, s37, 2", "s_sub_u32 s55, 32, s37", f"s_sub_u32 s55, s55, {sNB}", f"s_cmp_eq_u32 {sROLE}, 0", "s_cselect_b32 s53, s53, s55",
          f"s_cselect_b32 s52, 0, {sNB}", f"s_cselect_b32 {sMODE}, 0, 2")
        a(f"v_lshlrev_b32 v{V_L16}, 4, v0", f"v_add_u32 v{V_D1}, 4096, v{V_L16}")
        a("s_lshl_b32 s55, s52, 15", f"s_add_u32 s{S_KP}, s55, {sHB}", f"s_add_u32 s{S_VP}, s{S_KP}, {WS_V}",
          f"s_mov_b32 s{S_KM}, {sW8K}", f"s_add_u32 s{S_VM}, {sW8K}, 0x10000")
        def issue(sm, sp):
            a(f"s_mov_b32 m0, s{sm}", "s_nop 0")
            for j in range(8):
                if j == 4: a("s_bitset1_b32 m0, 12", "s_nop 0")
                a(dma(sp, j))
            a(f"s_add_u32 s{sp}, s{sp}, 0x8000", f"s_xor_b32 s{sm}, s{sm}, 0x8000")
        def qload(qb, dst):
            a(f"s_lshl_b32 s55, {qb}, 16", f"s_add_u32 s55, s55, {sHB}", f"s_add_u32 s55, s55, {WS_Q}", "s_add_u32 s56, s55, 0x8000")
            for qs in range(2):
                for s in range(8): a(f"buffer_load_dwordx4 a[{dst+(qs*8+s)*4}:{dst+(qs*8+s)*4+3}], v{V_D0 if s < 4 else V_D1}, s[12:15], s{55+qs} offen offset:{(s%4)*1024} sc1")
        a(f"v_and_b32 v{V_R}, 15, v0", f"v_lshrrev_b32 v{V_T0}, 4, v0", f"v_lshlrev_b32 v{V_T0}, 2, v{V_T0}", f"v_sub_u32 v{V_R}, v{V_R}, v{V_T0}",
          "s_lshl_b32 s48, s3, 4", f"v_add_u32 v{V_R}, s48, v{V_R}")
        a(f"v_mov_b32 v{V_KA}, v{V_L16}", f"v_add_u32 v{V_VA}, 0x10000, v{V_L16}")
        for i in range(96, 256, 2): a(f"v_mov_b64 v[{i}:{i+1}], 0")
        for r in LS + NM: a(f"v_mov_b32 {r}, 0")
        BIG = fbits(2.0**24)
        sFQ, sFU, sSSM = "s60", "s61", "s62"
        a("v_accvgpr_write_b32 a246, 1", "v_accvgpr_write_b32 a247, 1", f"s_xor_b32 {sFQ}, {sROLE}, 1", f"s_lshl_b32 {sFQ}, {sFQ}, 2", f"s_add_u32 {sFQ}, {sFQ}, {sFPO}", f"s_lshr_b32 {sFU}, {sIDX}, 4", f"s_lshl_b32 {sFU}, {sFU}, 7", f"s_add_u32 {sFU}, {sFU}, {F_U}",
          f"s_cmp_lt_u32 {sJJ}, 14", f"s_cselect_b32 {sSSM}, 1, 0", f"s_andn2_b32 {sSSM}, {sSSM}, {sROLE}",
          f"s_lshl_b32 s30, {sIDX}, 1", "s_lshr_b32 s31, s3, 1", "s_add_u32 s30, s30, s31", "s_min_u32 s30, s30, 223", "s_lshl_b32 s30, s30, 2", f"s_load_dword s31, s[{pAD}:{pAD+1}], s30")
        a(f"s_mov_b32 s{S_BIG}, {BIG}", f"s_mov_b32 s{S_THR}, 2", f"s_sub_u32 s{S_LEFT}, s53, 1")
        def mask(qs, a=a):
            a(f"v_mov_b32 v{V_T0}, {fbits(-1e30)}")
            for kb in range(4):
                for i in range(4): a(f"v_cmp_gt_i32 s[{16+2*i}:{17+2*i}], {16*kb+i}, v{V_R}")
                for i in range(4): a(f"v_cndmask_b32 {C(kb,qs)[i]}, {NM[qs]}, v{V_T0}, s[{16+2*i}:{17+2*i}]")
        a(f"s_cmp_ge_u32 s{S_LEFT}, 2", f"s_cbranch_scc1 {name}_nomask0")
        mask(0)
        a(f"{name}_nomask0:", "v_accvgpr_read_b32 v27, a245", f"s_lshl_b32 s36, {sIDX}, 2", f"s_add_u32 s36, s36, {F_U}", f"s_cmp_lt_u32 {sJJ}, 14", "s_cselect_b32 s36, s36, 2.0",
          f"s_add_u32 s33, {sFPO}, 4", f"s_cmp_eq_u32 {sROLE}, 1", "s_cselect_b32 s33, s33, 2.0", "s_waitcnt vmcnt(0)")
        a("v_accvgpr_read_b32 v28, a248", "v_mov_b32 v29, 0", "v_cmp_gt_u32 vcc, 256, v28", f"s_cbranch_vccz {name}_armed", "s_mov_b32 s32, 0", "v_accvgpr_write_b32 a249, 1",
          f"{name}_pollA:", f"global_load_dword v28, v29, s[{pDbg}:{pDbg+1}] offset:128 sc1", "s_add_u32 s32, s32, 1", "s_waitcnt vmcnt(0)", "v_cmp_gt_u32 vcc, 256, v28",
          "s_cmp_lt_u32 s32, 0x80000", "s_cselect_b64 vcc, vcc, 0", f"s_cbranch_vccnz {name}_pollA", f"{name}_armed:")
        m.acheck("s59", 16, 249, 28, 29)
        m.mark("kv_flag")
        issue(S_KM, S_KP); issue(S_KM, S_KP)
        if o['qlate']:
            a(f"s_cmp_eq_u32 {sROLE}, 0", f"s_cbranch_scc1 {name}_noqst", "s_add_u32 s59, s58, 0x8000")
            for qs in range(2):
                for s in range(8): a(f"buffer_store_dwordx4 {Q(qs,s)}, v{V_D0 if s < 4 else V_D1}, s[12:15], s{58+qs} offen offset:{(s%4)*1024} sc1")
            a("s_waitcnt vmcnt(24)", f"s_branch {name}_qst", f"{name}_noqst:", "s_waitcnt vmcnt(8)", f"{name}_qst:", "s_waitcnt lgkmcnt(0)", "s_barrier")
        else: a("s_waitcnt vmcnt(8) lgkmcnt(0)", "s_barrier")
        m.mark("att_go")
        B0 = Body(64, cyclic=False); set_qk(B0, 0)
        for n in range(8): a(fload(n))
        if not o['qlate']: a("buffer_store_dword v27, v27, s[12:15], s33 offen sc1")
        m.s1c()
        a(f"s_mov_b32 m0, s{S_VM}", "s_waitcnt lgkmcnt(0)")
        for n in range(8, 32): B0.put(2 * n - 16, 'd', fload(n), F(n))
        B0.auto_lgkm(look=2, maxcnt=15)
        for j in range(8):
            B0.put(1 + 4 * j, 'g', dma(S_VP, j))
            if j == 4: B0.put(4 * j, 's', "s_bitset1_b32 m0, 12")
        B0.put(32, 's', f"s_add_u32 s{S_VP}, s{S_VP}, 0x8000"); B0.put(34, 's', f"s_xor_b32 s{S_VM}, s{S_VM}, 0x8000")
        rest = []; te = 0; ta = 0; epos = {}
        els = [(kb, qs, i) for kb in range(4) for qs in range(2) for i in range(4)]
        ex = lambda kb, qs, i: f"v_exp_f32 {E(kb,qs)[i]}, {S(kb,qs)[i]}"
        ad = lambda kb, qs, i: f"v_add_f32 {TS[qs]}, {E(0,qs)[0] if (kb == 0 and i == 1) else TS[qs]}, {E(kb,qs)[i]}"
        for el in els:
            try: te = B0.place(max(te, 16 * el[0] + 8 * el[1] + 13), 64, 'e', ex(*el)); epos[el] = te
            except RuntimeError: te = 64; rest.append(ex(*el))
        rest2 = []
        for el in els:
            if el[0] == 0 and el[2] == 0: continue
            try: ta = B0.place(max(ta + 1, epos.get(el, 64) + 1), 64, 'v', ad(*el))
            except RuntimeError: ta = 64; rest2.append(ad(*el))
        print("first pattern:", B0.pattern(), len(rest), len(rest2))
        a(*B0.lines())
        a(f"v_xor_b32 v{V_KA}, 0x8000, v{V_KA}", "s_waitcnt vmcnt(8)", "s_barrier")
        for n in range(L // 2): a(fload(n))
        if o['qlate']: a("buffer_store_dword v27, v27, s[12:15], s33 offen sc1")
        a("buffer_store_dword v27, v27, s[12:15], s36 offen sc1")
        a(*rest); a(*rest2)
        a(f"{name}_first:", f"v_add_f32 v{V_T0}, {TS[0]}, {TS[1]}", f"v_min_f32 v{V_T1}, {TS[0]}, {TS[1]}", f"v_cmp_nge_f32 vcc, s{S_BIG}, v{V_T0}",
          f"s_mov_b32 s{S_FLOOR}, 0xff800000", f"s_cbranch_vccnz {name}_slow2", f"v_cmp_gt_f32 vcc, {fbits(2.0**-24)}, v{V_T1}", f"s_cbranch_vccnz {name}_slow2",
          f"s_mov_b32 s{S_FLOOR}, 0", "s_waitcnt lgkmcnt(0)", f"s_branch {name}_ret")
        a(f"{name}_slow:", f"s_cmp_lg_u32 s{S_BIG}, {BIG}", f"s_cbranch_scc1 {name}_switched", "s_nop 5", f"{name}_slow2:")
        for qs in range(2):
            mx, t = f"v{V_T0+qs}", f"v{V_T2}"
            el = [S(kb, qs)[i] for kb in range(4) for i in range(4)]
            a(f"v_max3_f32 {mx}, {el[0]}, {el[1]}, {el[2]}")
            for k in range(3, 15, 2): a(f"v_max3_f32 {mx}, {mx}, {el[k]}, {el[k+1]}")
            a(f"v_max_f32 {mx}, {mx}, {el[15]}")
            for sw in ("v_permlane32_swap_b32", "v_permlane16_swap_b32"):
                a(f"v_mov_b32 {t}, {mx}", "s_nop 1", f"{sw} {mx}, {t}", "s_nop 1", f"v_max_f32 {mx}, {mx}, {t}")
            a(f"v_max_f32 {mx}, s{S_FLOOR}, {mx}", f"v_sub_f32 {NM[qs]}, {NM[qs]}, {mx}")
            for e in el: a(f"v_sub_f32 {e}, {e}, {mx}")
            for kb in range(4):
                for i in range(4): a(f"v_exp_f32 {E(kb,qs)[i]}, {S(kb,qs)[i]}", f"v_mov_b32 {C(kb,qs)[i]}, {NM[qs]}")
            ee = [E(kb, qs)[i] for kb in range(4) for i in range(4)]
            a(f"v_add_f32 {TS[qs]}, {ee[0]}, {ee[1]}")
            for k in range(2, 16): a(f"v_add_f32 {TS[qs]}, {TS[qs]}, {ee[k]}")
        a("s_waitcnt lgkmcnt(0)", f"s_cmp_lg_u32 s{S_FLOOR}, 0", f"s_mov_b32 s{S_FLOOR}, 0", f"s_cbranch_scc1 {name}_ret")
        for qs in range(2):
            f = f"v{V_T0+qs}"
            a(f"v_exp_f32 {f}, -{f}", "s_nop 0", f"v_mul_f32 {LS[qs]}, {LS[qs]}, {f}")
            for db in range(16):
                for i in range(4): a(f"v_mul_f32 {O(db,qs)[i]}, {O(db,qs)[i]}, {f}")
        a(f"s_branch {name}_ret")
        B = AT.main_body(name, L, pollslot=(o['pgap'], f"buffer_load_dword a246, off, s[12:15], {sFQ} sc1"))
        for i in range(B.n): B.vec[i] = [(k, t.replace(" lds", " sc1 lds") if k == 'g' else t, d, s_) for k, t, d, s_ in B.vec[i]]
        print("attn pattern:", B.pattern()); print("over:", B.report())
        a(".p2align 6", f"{name}_loop:")
        a(*B.lines())
        a(f"{name}_ret:", f"s_cmp_gt_u32 s{S_LEFT}, s{S_THR}", f"s_cbranch_scc1 {name}_loop")
        a(f"s_cmp_eq_u32 s{S_LEFT}, 0", f"s_cbranch_scc1 {name}_segend", f"s_cmp_eq_u32 s{S_LEFT}, 1", f"s_cbranch_scc1 {name}_d1")
        mask(0); a("s_nop 0", f"s_branch {name}_loop")
        a(f"{name}_d1:")
        a(f"s_cmp_eq_u32 {sMODE}, 0", f"s_cselect_b32 s57, {sNB}, 0", "s_cmp_lg_u32 s57, 0", f"s_cselect_b32 s{S_KP}, {sHB}, 0xf0000000", f"s_cbranch_scc0 {name}_d1b",
          f"s_sub_u32 s58, 15, {sI}")
        a("s_waitcnt vmcnt(0)")
        m.acheck(sFQ, 1, 246, V_T0, V_T1)
        qload("s58", 128)
        a(f"{name}_d1b:")
        m.apoll(sFU, 32, 247, V_T0)
        if o['pf']: a(f"v_accvgpr_read_b32 v{V_T1}, a244", m.code_pf(V_T1))
        m.op_setup(V_T2, V_T1)
        real = a; a = Asm(); mask(1, a)
        for kb in range(4):
            for i in range(4): a(f"v_mov_b32 {C(kb,0)[i]}, v{V_T0}")
        fill = a.L; a = real
        interleave(a, fill, [[m.wo(0, j)[0], "s_nop 0", m.wo(0, j, V_T2)[1]] for j in range(8)])
        a(f"v_add_u32 v{V_T2}, 128, v{V_T2}", f"v_accvgpr_write_b32 a252, v{V_T2}", f"s_branch {name}_loop")
        a(f"{name}_segend:", f"s_cmp_eq_u32 {sMODE}, 0", f"s_cselect_b32 s57, {sNB}, 0", "s_cmp_eq_u32 s57, 0", f"s_cbranch_scc1 {name}_tail")
        for i in range(64): a(f"v_accvgpr_mov_b32 a{i}, a{128+i}")
        for i in range(96, 128, 2): a(f"v_mov_b64 v[{i}:{i+1}], 0")
        a(f"s_add_u32 s{S_VP}, {sHB}, {WS_V}", f"s_mov_b32 s{S_LEFT}, {sNB}", f"s_mov_b32 s{S_THR}, 0", f"s_mov_b32 s{S_BIG}, -1.0", f"s_branch {name}_loop")
        def lsum_ops(t):
            out = []
            for sw in ("v_permlane32_swap_b32", "v_permlane16_swap_b32"):
                out.append([f"v_mov_b32 v{t+qs}, {LS[qs]}" for qs in range(2)])
                out.append([f"{sw} {LS[qs]}, v{t+qs}" for qs in range(2)])
                out.append([f"v_add_f32 {LS[qs]}, {LS[qs]}, v{t+qs}" for qs in range(2)])
            return out
        sel = lambda qs: "op_sel:[0,0] op_sel_hi:[1,0]" if qs == 0 else "op_sel:[0,1] op_sel_hi:[1,1]"
        def pack(qs, s):
            r = Reg('v', O(2 * s, qs).lo, 8)
            a(*[f"v_cvt_pk_bf16_f32 {r[i]}, {r[2*i]}, {r[2*i+1]}" for i in range(4)])
            return r[0:4]
        def scale(fr, after):
            for qs in range(2):
                for s in range(8):
                    r = Reg('v', O(2 * s, qs).lo, 8)
                    for i in range(4): a(f"v_pk_mul_f32 {r[2*i:2*i+2]}, {r[2*i:2*i+2]}, v[{fr}:{fr+1}] {sel(qs)}")
                    after(qs, s, pack(qs, s))
        cv = lambda qs, s: [f"v_cvt_pk_bf16_f32 v{O(2*s,qs).lo+i}, v{O(2*s,qs).lo+2*i}, v{O(2*s,qs).lo+2*i+1}" for i in range(4)]
        a(f"{name}_switched:")
        m.mark("seg1_end")
        for grp in lsum_ops(18): a(*grp); a("s_nop 0")
        for qs in range(2): a(f"v_rcp_f32 v{16+qs}, {LS[qs]}")
        a(f"s_mov_b32 s{S_BIG}, {BIG}", f"s_mov_b32 {sMODE}, 1")
        for qs in range(2):
            a(f"v_accvgpr_write_b32 a{250+qs}, v{16+qs}")
            for s in range(8): a(*cv(qs, s)); a(*[f"v_accvgpr_write_b32 a{128+(qs*8+s)*4+i}, {O(2*s,qs)[i]}" for i in range(4)])
        for i in range(128, 256, 2): a(f"v_mov_b64 v[{i}:{i+1}], 0")
        for r in LS + NM: a(f"v_mov_b32 {r}, 0")
        m.apoll(sFU, 32, 247, V_T0)
        m.mark("seg1_fin")
        a(f"s_branch {name}_first")
        a(f"{name}_tail:"); m.mark("tail_go")
        a("s_and_b32 s39, s2, 127", "s_lshl_b32 s57, s39, 2", "s_add_u32 s57, s57, s3", "s_lshl_b32 s55, s57, 14", f"s_add_u32 s55, s55, {WS_PO}",
          "s_lshl_b32 s57, s57, 10", f"s_add_u32 s57, s57, {WS_PL}", "v_accvgpr_read_b32 v2, a252")
        a(*cvts())
        for q in range(2): a(f"v_add_f32 {LS[q]}, {LS[q]}, {TS[q]}")
        a("s_waitcnt vmcnt(0) lgkmcnt(0)", "s_barrier")
        for n in range(32, 40): a(fload(n))
        RL = 64; ST = Reg('v', 68, 4)
        def tail_body():
            BT = Body(64, cyclic=False); set_pv(BT, 0)
            for n in range(40, 64): BT.put(2 * (n - 32) - 16, 'd', fload(n), F(n))
            BT.auto_lgkm(look=2, maxcnt=15)
            return BT
        def put_lsum(BT):
            t = 3
            for grp in lsum_ops(72):
                for x in grp: BT.put(t, 'v', x)
                t += 4
            return t
        poa = lambda qs, s: f"v{V_D0 if s < 4 else V_D1}, s[12:15], s{55+qs} offen offset:{(s%4)*1024} sc1"
        a(f"s_cmp_lg_u32 {sNB}, 0", f"s_cselect_b32 s58, {sMODE}, 0", "s_cmp_eq_u32 s58, 2", f"s_cbranch_scc1 {name}_tail2")
        a(f"s_cmp_eq_u32 {sSSM}, 0", f"s_cbranch_scc1 {name}_nou")
        m.acheck(sFU, 32, 247, V_T0, V_T1)
        a(f"{name}_nou:", f"s_cmp_eq_u32 {sMODE}, 1", "s_cselect_b32 s55, s55, 2.0", "s_cselect_b32 s57, s57, 2.0", f"s_cselect_b32 s59, {sFPO}, 2.0", "s_add_u32 s56, s55, 0x2000", "s_waitcnt lgkmcnt(0)")
        BT = tail_body()
        for j in range(8): m0, tx = m.wo(1, j); BT.put(4 * j + 1, 'g', tx); BT.put(4 * j, 's', m0)
        BT.put(30, 'v', m.woadv)
        put_lsum(BT)
        rest = []; tv = 0; tg = 33
        for s in range(8):
            for qs in range(2):
                tv = max(tv, 8 * s + 15); sto = f"buffer_store_dwordx4 {O(2*s,qs)}, {poa(qs,s)}"
                slots = [k for k in range(min(tv, 64), 64) if k % 4 != 1 for _ in range(2 - BT.vcost(k))]
                if len(slots) >= 4 and not any(x.startswith("v_") for x in rest):
                    for x, k in zip(cv(qs, s), slots): BT.put(k, 'v', x); tv = k
                    while tg <= tv: tg += 4
                    if tg < 64: BT.put(tg, 'g', sto); tg += 4
                    else: rest.append(sto)
                else: rest += cv(qs, s) + [sto]
        print("tail1pv pattern:", BT.pattern(), len(rest))
        a(*BT.lines())
        m.mark("tail_end")
        a(f"v_mov_b32 {ST[0]}, {LS[0]}", f"v_mov_b32 {ST[1]}, {LS[1]}", f"v_mov_b32 {ST[2]}, {NM[0]}", f"v_mov_b32 {ST[3]}, {NM[1]}", f"buffer_store_dwordx4 {ST}, v{V_L16}, s[12:15], s57 offen sc1")
        for qs in range(2): a(f"v_rcp_f32 v{RL+qs}, {LS[qs]}")
        a(*rest)
        a(f"s_cmp_lg_u32 {sMODE}, 1", f"s_cbranch_scc1 {name}_t1done")
        for qs in range(2): a(f"v_accvgpr_read_b32 v{RL+qs}, a{250+qs}")
        for s in range(8):
            for qs in range(2): a(*[f"v_accvgpr_read_b32 {O(2*s,qs)[i]}, a{128+(qs*8+s)*4+i}" for i in range(4)])
        a(f"{name}_t1done:", "s_waitcnt vmcnt(17)", f"s_branch {name}_attdone")
        PB = lambda qs, s: Reg('v', (96 if qs else 32) + s * 4, 4)
        pol = [f"buffer_load_dwordx4 {ST}, v{V_L16}, s[12:15], s57 offen sc1"] + [f"buffer_load_dwordx4 {PB(qs,s)}, {poa(qs,s)}" for s in range(8) for qs in range(2)]
        a(f"{name}_tail2:", f"v_accvgpr_read_b32 v{V_T0}, a246", "s_mov_b32 s52, s55", "s_mov_b32 s53, s57", f"v_readfirstlane_b32 s58, v{V_T0}", "s_mov_b32 s59, 2.0", "s_nop 1",
          "s_cmp_eq_u32 s58, 0", "s_cselect_b32 s55, s55, 2.0", "s_cselect_b32 s57, s57, 2.0", "s_add_u32 s56, s55, 0x2000", pol[0], "s_waitcnt lgkmcnt(0)")
        BT = tail_body()
        for k in range(16): BT.put(max(4 * k - 3, 0) if k else 63, 'g', pol[k if k else 16])
        t = put_lsum(BT)
        for x in ["v_mov_b32 v76, 0", "v_mov_b32 v77, 0", "v_mov_b32 v80, 0", "v_mov_b32 v81, 0", "v_and_b32 v82, 1, v0", "v_lshlrev_b32 v82, 4, v82", "v_mov_b32 v83, 0x3f80", "v_lshlrev_b32 v82, v82, v83",
                  "v_bfe_u32 v83, v0, 1, 3", "v_lshrrev_b32 v84, 4, v0", "v_lshlrev_b32 v84, 1, v84", "v_sub_u32 v83, v83, v84", "v_cmp_eq_u32 s[20:21], 0, v83", "v_cmp_eq_u32 s[22:23], 1, v83"]:
            t = BT.place(t, 64, 'v', x)
        for x in ["v_cndmask_b32 v78, 0, v82, s[20:21]", "v_cndmask_b32 v79, 0, v82, s[22:23]"]: t = BT.place(t + 2, 64, 'v', x)
        print("tail2pv pattern:", BT.pattern())
        a(*BT.lines())
        m.mark("tail_end")
        a("s_cmp_eq_u32 s58, 0", f"s_cbranch_scc1 {name}_merge2")
        m.poll(sFPO, 1, V_T0, V_T1)
        m.mark("po_flag")
        a("s_mov_b32 s55, s52", "s_mov_b32 s57, s53", "s_add_u32 s56, s55, 0x2000"); a(*pol)
        a(f"{name}_merge2:", "s_waitcnt vmcnt(14)", f"v_cmp_neq_f32 vcc, {ST[2]}, {NM[0]}", f"v_cmp_neq_f32 s[20:21], {ST[3]}, {NM[1]}", "s_or_b64 vcc, vcc, s[20:21]", f"s_cbranch_vccnz {name}_mslow")
        BM = Body(32, cyclic=False); SEL = [Reg('v', 78, 4), Reg('v', 76, 4)]
        for s in range(8):
            for qs in range(2):
                for e in range(2): BM.set_mfma(4 * s + 2 * qs + e, O(2 * s + e, qs), SEL[e], PB(qs, s), O(2 * s + e, qs))
        for j in range(8):
            m0, tx = m.wo(1, j); BM.put(4 * j + 1, 'g', tx); BM.put(4 * j, 's', m0)
            if j < 7: BM.put(4 * j + 3, 's', f"s_waitcnt vmcnt({14 - 2*(j+1) + j + 1})")
        for qs in range(2): BM.put(0, 'v', f"v_add_f32 {LS[qs]}, {LS[qs]}, {ST[qs]}"); BM.put(2 + qs, 'e', f"v_rcp_f32 v{RL+qs}, {LS[qs]}")
        rest = []; tv = 0
        for s in range(8):
            for qs in range(2):
                tv = max(tv, 4 * s + 2 * qs + 6)
                for x in cv(qs, s):
                    try:
                        if rest: raise RuntimeError
                        tv = BM.place(tv, 32, 'v', x)
                    except RuntimeError: rest.append(x)
        print("merge pattern:", BM.pattern(), len(rest))
        a(*BM.lines()); a(m.woadv); a(*rest)
        a("s_waitcnt vmcnt(0)", f"s_branch {name}_attdone")
        a(f"{name}_mslow:")
        for j in range(8): a(m.wo(1, j)[0], "s_nop 0", m.wo(1, j)[1])
        a(m.woadv, "s_mov_b32 s58, 0xffff0000", "s_waitcnt vmcnt(0)")
        for qs in range(2):
            a(f"v_min_f32 v20, {ST[2+qs]}, {NM[qs]}", f"v_sub_f32 v21, v20, {NM[qs]}", f"v_sub_f32 v22, v20, {ST[2+qs]}", f"v_exp_f32 v{16+qs}, v21", f"v_exp_f32 v{18+qs}, v22", "s_nop 0",
              f"v_mul_f32 {LS[qs]}, {LS[qs]}, v{16+qs}", f"v_fmac_f32 {LS[qs]}, {ST[qs]}, v{18+qs}", f"v_rcp_f32 v{RL+qs}, {LS[qs]}")
        for qs in range(2):
            sel3 = "op_sel:[0,0,0] op_sel_hi:[1,0,1]" if qs == 0 else "op_sel:[0,1,0] op_sel_hi:[1,1,1]"
            for s in range(8):
                r = Reg('v', O(2 * s, qs).lo, 8)
                for k in range(4):
                    pb = PB(qs, s)[k]; t = Reg('v', 24 + 2 * k, 2)
                    a(f"v_lshlrev_b32 {t[0]}, 16, {pb}", f"v_and_b32 {t[1]}, s58, {pb}", f"v_pk_mul_f32 {t}, {t}, v[18:19] {sel(qs)}",
                      f"v_pk_fma_f32 {r[2*k:2*k+2]}, {r[2*k:2*k+2]}, v[16:17], {t} {sel3}")
                a(*cv(qs, s))
        a(f"{name}_attdone:")
        m.mark("att_fin")

    OPR = [0x20000, 0, 0x8000, 0x10000, 0x18000, 0x20000, 0]
    def op_setup(m, v, t):
        a = m.a
        a(f"v_lshrrev_b32 v{t}, 3, v0", "s_lshl_b32 s78, s3, 3", f"v_add_u32 v{v}, s78, v{t}", f"v_mul_u32_u24 v{v}, 896, v{v}", f"v_and_b32 v{t}, 6, v{t}", f"v_xor_b32 v{t}, v{t}, v0", f"v_and_b32 v{t}, 7, v{t}",
          f"v_lshl_add_u32 v{v}, v{t}, 4, v{v}", f"s_mul_i32 s78, {sH}, {256*896}")
        for j in range(1, 8): a(f"s_add_u32 s{78+j}, s78, {32*896*j}")
        srd(a, 8, pWo, 4096 * 896)
    def wo(m, c, j, v=2): return (f"s_add_u32 m0, {sW1K}, {m.OPR[c] + j*4096}", f"buffer_load_dwordx4 v{v}, s[8:11], s{78+j} offen lds")
    woadv = "v_add_u32 v2, 128, v2"
    def oproj(m):
        a, name, o = m.a, m.n, m.o
        LO = o['LO']; VFL = 9
        a("v_lshrrev_b32 v8, 2, v0", "v_lshlrev_b32 v4, 7, v8", "v_bfe_u32 v8, v8, 1, 2", "v_lshl_add_u32 v4, v8, 5, v4", "v_and_b32 v8, 3, v0", "v_lshl_add_u32 v4, v8, 3, v4", f"v_add_u32 v4, {m.OPR[0]}, v4")
        for mb in range(1, 4): a(f"v_xor_b32 v{4+mb}, {32*mb}, v4")
        a("s_barrier")
        ring = lambda f: Reg('a', 4 * (f % 16), 4)
        CF = lambda qs, s: O(2 * s, qs)
        AC = lambda mb, qs: Reg('v', 72 + ((mb // 2) % 3) * 16 + qs * 8 + (mb % 2) * 4, 4)
        H = 16; N = H + 448; B = Body(N, cyclic=False)
        for k in range(H): B.m[k] = ("s_nop 0", set(), set())
        n = H; done = {}
        for mb in range(28):
            for qs in range(2):
                for s in range(8): B.set_mfma(n, AC(mb, qs), ring(8 * mb + s), CF(qs, s), 0 if s == 0 else AC(mb, qs)); n += 1
                done[mb, qs] = n - 1
            c = mb // 4
            for s in range(8):
                for e in range(2):
                    B.put(H + 2 * (8 * mb + s) - LO + e, 'd', f"ds_read_b64_tr_b16 {ring(8*mb+s)[2*e:2*e+2]}, v{4 + mb%4} offset:{(m.OPR[c] & 0x8000) + s*4096 + e*2048}", ring(8 * mb + s)[2*e:2*e+2])
        cs = lambda c: H + 64 * c - LO
        def bar(pos, tags=None, lg=None):
            if tags: B.vmwait(pos - 1, tags)
            if lg is not None: B.put(pos - 1, 's', f"s_waitcnt lgkmcnt({lg})")
            B.put(pos, 's', "s_barrier")
        pub = H + o['oppub']
        bar(pub, ["old"]); bar(cs(2) - 1, ["w2"]); bar(cs(2) + 10, lg=9); bar(cs(3) - 1, ["w3", "w4"]); bar(cs(5) - 1, ["w5", "w6"]); bar(cs(5) + 10, lg=9)
        B.auto_lgkm(look=3, maxcnt=15)
        def gfree(t): return not B.has(t, 'g') and not any(k in 've' for k, *_ in B.vec[t]) and all(x.startswith("s_waitcnt") for x in B.pre[t]) and len(B.pre[t]) <= 1
        def G1(t, txt, tag, sc=None):
            while not (gfree(t) and not B.has(t - 1, 'g') and not (t + 1 < N and B.has(t + 1, 'g')) and (sc is None or not B.pre[t - 1] or (not B.pre[t - 2] and not B.has(t - 2, 'g')))): t += 1
            B.putg(t, txt, tag)
            if sc: B.put(t - 1 if not B.pre[t - 1] else t - 2, 's', sc)
            return t
        for c in range(1, 7):
            dx = (m.OPR[c] ^ m.OPR[c - 1]) & ~0x8000
            if dx:
                for mb in range(4): B.place(cs(c) + 16 * mb - 12, cs(c) + 16 * mb, 'v', f"v_xor_b32 v{4+mb}, {dx:#x}, v{4+mb}", back=True)
        G1(pub + 1, f"buffer_store_dword v{VFL}, v{VFL}, s[12:15], s59 offen sc1", "fl")
        t = H + 1
        for c in (2, 3, 4):
            for j in range(8): m0, tx = m.wo(c, j); t = G1(t, tx, f"w{c}", m0) + o['opw']
            t = max(t, B.place(t - 4, N, 'v', m.woadv) + 1)
        t = max(t, cs(2) + 12)
        for c in (5, 6):
            for j in range(8): m0, tx = m.wo(c, j); t = G1(t, tx, f"w{c}", m0) + o['opw']
            t = max(t, B.place(t - 4, N, 'v', m.woadv) + 1)
        t = cs(5) + 12
        for m0, tx in m.s2_dmas(): t = G1(t, tx, "u", m0) + o['opw']
        rest = []
        for mp in range(14):
            for qs in range(2):
                r = Reg('v', AC(2 * mp, qs).lo, 8)
                cv = [f"v_mul_f32 {r[i]}, {r[i]}, v{64+qs}" for i in range(4, 8)] + [f"v_cvt_pk_bf16_f32 {r[i]}, {r[2*i]}, {r[2*i+1]}" for i in range(4)]
                t = done[2 * mp, qs] + 5
                for i in range(4): t = B.place(t, N, 'v', f"v_mul_f32 {r[i]}, {r[i]}, v{64+qs}")
                sto = (f"buffer_store_dwordx4 {r[0:4]}, v1, s[12:15], s58 offen sc1", "st", f"s_add_u32 s58, s48, {qs*4*14*16384 + mp*16384}")
                t = max(t, done[2 * mp + 1, qs] + 5)
                if t + 12 < N:
                    for x in cv: t = B.place(t, N, 'v', x)
                    t = G1(t + 1, *sto); assert mp >= 11 or t < done[2 * mp + 6, qs] - 8
                else: rest += cv + [sto[2], sto[0]]
        for k, tx in enumerate(m.s2_pads()): B.put(N - LO + 1 + k, 'd', tx)
        ops = B.resolve_vm(["old"])
        m.after_u = len(ops) - 1 - max(i for i, x in enumerate(ops) if x == "u") + sum(1 for x in rest if x.startswith("buffer_"))
        print("op pattern:", B.pattern(), len(B.report()), len(rest))
        for k in range(H): a(*[x[1] for x in B.vec[k]])
        m.s2_setup()
        a(f"v_accvgpr_read_b32 v{VFL}, a245", "s_lshl_b32 s48, s63, 3", "s_add_u32 s48, s48, s3", f"s_mul_i32 s48, s48, {14*16384}", f"s_lshl_b32 s58, {sH}, 10", "s_add_u32 s48, s48, s58", f"s_add_u32 s48, s48, {WS_PP}")
        for k in range(H): a(*B.pre[k])
        m.mark("op_go")
        a(*B.lines(H, N)); a("s_nop 4"); a(*rest)
        m.mark("op_end")

    S2W, S2K = 8736, 4608
    def s2_setup(m):
        a = m.a
        a(f"s_lshl_b32 s34, {sIDX}, 2", "s_add_u32 s34, s34, s3", "s_lshl_b32 s34, s34, 12", "s_cmp_eq_u32 s62, 0", "s_cmov_b32 s34, 2.0", f"s_add_u32 s35, s34, {WS_U}",
          f"s_mul_i32 s33, s3, {m.S2W}", "s_add_u32 s33, s33, 0x10000")
        srd(a, 4, pAssm, 448 * 4096)
        a("v_lshrrev_b32 v10, 1, v0", "v_lshlrev_b32 v10, 7, v10", "v_and_b32 v11, 1, v0", "v_lshl_add_u32 v10, v11, 4, v10",
          "v_and_b32 v11, 31, v0", "v_lshl_add_u32 v11, v11, 2, s33", "v_and_b32 v12, 7, v0", "v_lshl_add_u32 v12, v12, 2, s33", "v_mov_b32 v13, 0")
    def s2_dmas(m):
        return [(f"s_add_u32 m0, s33, {m.S2K + 32}" if k == 0 else None, f"buffer_load_dwordx4 v1, s[4:7], s34 offen offset:{1024*k} lds") for k in range(4)] + \
               [(f"s_add_u32 m0, s33, {p*1152 + 128 - 32*p}", f"buffer_load_dwordx4 v10, s[12:15], s35 offen offset:{32*p} sc1 lds") for p in range(4)]
    def s2_pads(m): return [f"ds_write_b32 v11, v13 offset:{p*1152}" for p in range(4)] + [f"ds_write_b32 v12, v13 offset:{m.S2K}"]
    def s2(m):
        a, name, o = m.a, m.n, m.o
        KB = m.S2K + 32
        VZ, VXX, VU, VB, VY_, VONE = 16, 17, 18, 19, 20, 21
        a("v_and_b32 v22, 15, v0", "v_lshrrev_b32 v23, 4, v0", f"v_lshl_add_u32 v{VU}, v22, 3, s33", f"v_lshl_add_u32 v{VZ}, v23, 4, v{VU}", f"v_lshl_add_u32 v{VU}, v23, 1, v{VU}",
          f"v_and_b32 v{VXX}, 3, v0", "v_bfe_u32 v24, v0, 2, 2", f"v_sub_u32 v{VXX}, v{VXX}, v24", "v_lshlrev_b32 v24, 3, v23", f"v_sub_u32 v{VXX}, v{VXX}, v24", f"v_add_u32 v{VXX}, 32, v{VXX}",
          f"v_lshl_add_u32 v{VXX}, v{VXX}, 3, s33",
          f"v_lshlrev_b32 v{VY_}, 5, v22", f"v_lshl_add_u32 v{VY_}, v23, 3, v{VY_}",
          "v_add_u32 v24, -1, v0", "v_and_b32 v24, 15, v24", "v_add_u32 v24, 48, v24", f"v_add_u32 v{VB}, -16, v0", "v_cmp_gt_u32 vcc, 16, v0", f"v_accvgpr_read_b32 v{VONE}, a245", f"s_add_u32 s34, s34, {WS_Y}",
          f"v_cndmask_b32 v{VB}, v{VB}, v24, vcc", f"v_lshlrev_b32 v{VB}, 2, v{VB}", "v_cmp_eq_u32 vcc, 63, v0",
          "s_lshl_b32 s30, s31, 16", "s_and_b32 s31, s31, 0xffff0000", "s_bitcmp1_b32 s3, 0", "s_cselect_b32 s31, s31, s30")
        X = lambda n: Reg('v', 160 + 4 * n, 4)
        Z = lambda p, d: Reg('v', 28, 4) if (p, d) == (3, 15) else Reg('a', (p * 16 + d) * 4, 4)
        AC = lambda c, p: Reg('v', 32 + 16 * c + 4 * p, 4)
        T = lambda c, j: Reg('v', 224 + 8 * (c % 4) + j, 1); U = lambda c, r: Reg('v', 228 + 8 * (c % 4) + r, 1)
        for i in range(224, 256, 2): a(f"v_mov_b64 v[{i}:{i+1}], 0")
        lds = []
        for d in range(16):
            lds += [(f"ds_read_b64_tr_b16 {X(d)[2*e:2*e+2]}, v{VXX} offset:{KB - 64 + 256*d + 32*(1-e)}", X(d)[2*e:2*e+2]) for e in range(2)]
            if d % 2 == 1:
                lds += [(f"ds_read_b64 {Z(p,dd)[2*e:2*e+2]}, v{VZ} offset:{p*1152 + 8 + 64*dd + 8*e}", Z(p, dd)[2*e:2*e+2]) for p in range(4) for dd in (d, d - 1) for e in range(2)]
        N = 288; B = Body(N, cyclic=False)
        n = 0; endc = {}
        for c in range(8):
            for p in range(4):
                for k in range(2 * c + 2):
                    B.set_mfma(n, AC(c, p), X(k), Z(p, 2 * c - k + 1), 0 if k == 0 else AC(c, p)); n += 1
            endc[c] = n - 1
        PRE = 44
        a(f"s_waitcnt vmcnt({m.after_u}) lgkmcnt(0)")
        for k, (tx, r) in enumerate(lds[:PRE]):
            a(tx)
            if k % 8 == 7: a("s_waitcnt lgkmcnt(6)")
        a("s_waitcnt lgkmcnt(0)")
        m.mark("s2_go")
        for k, (tx, r) in enumerate(lds[PRE:]): B.put(k, 'd', tx, r)
        pub = o['s2pub']
        B.put(pub - 1, 's', "s_waitcnt vmcnt(0)"); B.put(pub, 's', "s_barrier"); B.putg(pub + 1, f"buffer_store_dword v{VONE}, v{VONE}, s[12:15], {sFCTX} offen sc1", "fl")
        rest = []; tv = len(lds) - PRE - 30; td = len(lds) - PRE - 1
        for c in range(8):
            A0, A1, A2, A3 = (AC(c, p) for p in range(4))
            st1 = [f"v_add_f32 {A1[3]}, {A1[3]}, {A2[2]}", f"v_add_f32 {A2[3]}, {A2[3]}, {A3[2]}", f"v_add_f32 {A1[3]}, {A1[3]}, {A3[1]}"]
            st1 += [f"v_cndmask_b32_e64 {T(c,j)}, {AC(c,j+1)[3]}, {AC(c-1,j+1)[3] if c else 0}, vcc" for j in range(3)]
            ds = [(f"ds_bpermute_b32 {T(c,j)}, v{VB}, {T(c,j)}", T(c, j)) for j in range(3)] + [(f"ds_read_u16_d16_hi {U(c,r)}, v{VU} offset:{r*1152 + 128 + 128*c}", U(c, r)) for r in range(4)]
            st2 = [f"v_add_f32 {A0[1]}, {A0[1]}, {A1[0]}", f"v_add_f32 {A0[2]}, {A0[2]}, {A1[1]}", f"v_add_f32 {A0[3]}, {A0[3]}, {A1[2]}",
                   f"v_add_f32 {A0[2]}, {A0[2]}, {A2[0]}", f"v_add_f32 {A0[3]}, {A0[3]}, {A2[1]}", f"v_add_f32 {A0[3]}, {A0[3]}, {A3[0]}"]
            st3 = [(f"v_add_f32 {A0[j]}, {A0[j]}, {T(c,j)}", T(c, j)) for j in range(3)] + [(f"v_fmac_f32 {A0[r]}, s31, {U(c,r)}", U(c, r)) for r in range(4)]
            st4 = [f"v_cvt_pk_bf16_f32 {A0[0]}, {A0[0]}, {A0[1]}", f"v_cvt_pk_bf16_f32 {A0[1]}, {A0[2]}, {A0[3]}"]
            sto = f"buffer_store_dwordx2 {A0[0:2]}, v{VY_}, s[12:15], s34 offen offset:{512*c} sc1"
            if c < 7:
                tv = max(tv, endc[c] + 8)
                for x in st1: tv = B.place(tv, N, 'v', x)
                td = max(td, tv)
                for x, r in ds: td = B.place(td + 1, N, 'd', x, r)
                for x in st2: tv = B.place(tv, N, 'v', x)
                t3 = max(tv, td + 6)
                for x, r in st3: t3 = B.place(t3, N, 'v', x, None, r)
                for x in st4: t3 = B.place(t3, N, 'v', x)
                t3 = B.place(t3 + 1, N, 'g', sto)
                done3 = getattr(m, '_d3', {}); done3[c] = t3; m._d3 = done3
                if c >= 3: tv = max(tv, done3[c - 3])
            else: rest = ["s_nop 7"] + st1 + [x for x, r in ds] + st2 + ["s_waitcnt lgkmcnt(0)"] + [x for x, r in st3] + st4 + [sto]
        B.auto_lgkm(look=2, maxcnt=15)
        print("s2 pattern:", B.pattern(), len(B.report()))
        a(*B.lines()); a(*rest)
        m.mark("s2_end")

    def red_setup(m):
        a = m.a
        a(f"s_lshl_b32 s44, {sX}, 7", f"s_add_u32 s44, s44, {F_CTX}")
        m.apoll("s44", 16, 246, 17)
        a(f"s_lshl_b32 s40, {sX}, 1", f"s_and_b32 s41, {sJJ}, 1", "s_add_u32 s40, s40, s41", f"s_lshr_b32 s41, {sJJ}, 1", "s_add_u32 s45, s44, 1024",
          "s_lshl_b32 s42, s40, 2", "s_add_u32 s42, s42, s3", f"s_mul_i32 s37, s42, {14*16384}", "s_lshl_b32 s43, s41, 15", "s_add_u32 s37, s37, s43", f"s_add_u32 s37, s37, {WS_PP}",
          f"s_lshl_b32 s43, {sROLE}, 14", "s_add_u32 s37, s37, s43", f"s_add_u32 s38, s37, {64*14*16384}",
          "s_lshl_b32 s42, s42, 4", "s_lshl_b32 s39, s41, 7", f"s_lshl_b32 s43, {sROLE}, 6", "s_add_u32 s36, s39, s43", "s_add_u32 s36, s36, 896", f"s_add_u32 s35, s36, {1024*1792}",
          "s_lshl_b32 s43, s41, 6", f"s_add_u32 s43, s43, {F_Y}")
        srd(a, 8, pOut, 2048 * 1792)
        a("v_and_b32 v2, 15, v0", "v_add_u32 v2, s42, v2", "v_mul_u32_u24 v7, 896, v2", "v_lshrrev_b32 v3, 4, v0", "v_lshlrev_b32 v8, 4, v3", "v_lshl_add_u32 v2, v7, 1, v8", "v_add_u32 v7, v7, v8")
        a("v_and_b32 v4, 1, v0", "v_lshlrev_b32 v4, 4, v4", "v_mov_b32 v5, 0x3f80", "v_lshlrev_b32 v4, v4, v5",
          "v_bfe_u32 v5, v0, 3, 1", "v_bfe_u32 v6, v0, 1, 1", "v_lshl_add_u32 v5, v5, 1, v6",
          "v_bfe_u32 v6, v0, 2, 1", "v_lshlrev_b32 v6, 1, v6", "v_sub_u32 v6, v3, v6", "v_lshl_add_u32 v5, v6, 2, v5")
        for h in range(2):
            for k in range(4): a(f"v_cmp_eq_u32 s[{46+2*k}:{47+2*k}], {4*h+k}, v5")
            for k in range(4): a(f"v_cndmask_b32 v{24+4*h+k}, 0, v4, s[{46+2*k}:{47+2*k}]")
        srd(a, 16, pAq, 2048 * 896)
        a(f"s_mul_i32 s54, {sROLE}, {1024*896}", "s_lshl_b32 s55, s54, 1", "s_add_u32 s54, s54, s39", "s_add_u32 s55, s55, s39",
          "v_lshrrev_b32 v8, 1, v0", "v_lshlrev_b32 v8, 12, v8", "v_and_b32 v9, 1, v0", "v_lshl_add_u32 v8, v9, 4, v8",
          f"s_lshl_b32 s57, {sROLE}, 10", "s_add_u32 s56, s42, s57", "s_lshl_b32 s56, s56, 1", "s_lshl_b32 s57, s41, 18", "s_add_u32 s56, s56, s57", f"s_add_u32 s56, s56, {WS_Y}", "s_add_u32 s57, s56, 0x20000", "s_lshl_b32 s58, s3, 11",
          "v_lshlrev_b32 v10, 3, v3", "v_bfe_u32 v15, v0, 2, 2", "v_add_u32 v10, v10, v15", "v_lshlrev_b32 v10, 5, v10", "v_and_b32 v15, 3, v0", "v_lshl_add_u32 v10, v15, 3, v10",
          "v_add_u32 v10, s58, v10", "s_mov_b32 s59, 0xffff0000")
    def red_loads(m, sp):
        for k in range(16):
            m.a(f"buffer_load_dwordx4 a[{4*k}:{4*k+3}], v1, s[12:15], {sp} offen offset:{(k%4)*1024} sc1")
            if k % 4 == 3: m.a(f"s_add_u32 {sp}, {sp}, 4096")
    def red_sum(m, so, younger, acc):
        a = m.a
        for h in range(16):
            a(f"s_waitcnt vmcnt({15 - h + younger})")
            for f in range(2): a(mfma(Reg('v', acc + 4 * f, 4), Reg('v', 24 + 4 * f, 4), Reg('a', 4 * h, 4), Reg('v', acc + 4 * f, 4) if h else 0))
        a("s_nop 7")
        for i in range(4): a(f"v_cvt_pk_bf16_f32 v{acc+i}, v{acc+2*i}, v{acc+2*i+1}")
        a(f"buffer_store_dwordx4 v[{acc}:{acc+3}], v2, s[8:11], {so} offen")
    def y_loads(m):
        for k in range(2): m.a(f"s_add_u32 m0, s58, {1024*k}", "s_nop 0", f"buffer_load_dwordx4 v8, s[12:15], s{56+k} offen sc1 lds")
    def gate(m):
        a = m.a
        for k in range(2):
            for e in range(2): a(f"ds_read_b64_tr_b16 v[{56+4*k+2*e}:{57+4*k+2*e}], v10 offset:{1024*k + 128*e}")
        a("s_waitcnt lgkmcnt(0)")
        for k in range(2):
            for i in range(4):
                q, y = 48 + 4 * k + i, 56 + 4 * k + i
                a(f"v_lshlrev_b32 v16, 16, v{q}", f"v_and_b32 v17, s59, v{q}", f"v_lshlrev_b32 v18, 16, v{y}", f"v_and_b32 v19, s59, v{y}",
                  "v_pk_mul_f32 v[16:17], v[16:17], v[18:19]", f"v_cvt_pk_bf16_f32 v{q}, v16, v17")
            a(f"buffer_store_dwordx4 v[{48+4*k}:{51+4*k}], v2, s[8:11], s55 offen offset:{64*k}")

    def endgame(m):
        a, name, o = m.a, m.n, m.o
        m.oproj()
        a(f"s_cmp_lt_u32 {sJJ}, 14", f"s_cbranch_scc1 {name}_tile")
        m.publish(sFCTX, V_T0, V_T1)
        a(f"s_branch {name}_fin", f"{name}_tile:", "v_mov_b32 v21, v9", f"s_cmp_lg_u32 {sROLE}, 0", f"s_cbranch_scc1 {name}_noconv")
        m.s2()
        a(f"s_lshl_b32 {sFCTX}, {sIDX}, 2", f"s_add_u32 {sFCTX}, {sFCTX}, {F_Y}", f"{name}_noconv:")
        m.red_setup()
        a("s_waitcnt vmcnt(0)", "s_barrier", f"buffer_store_dword v21, v21, s[12:15], {sFCTX} offen sc1")
        m.mark("pub")
        m.acheck("s44", 16, 246, 16, 17)
        m.mark("flag1")
        m.red_loads("s37")
        for k in range(2): a(f"buffer_load_dwordx4 v[{48+4*k}:{51+4*k}], v7, s[16:19], s54 offen offset:{64*k}")
        m.apoll("s45", 16, 246, 17)
        m.red_sum("s36", 3, 32)
        a("s_waitcnt vmcnt(1)")
        m.mark("mid_end")
        m.acheck("s45", 16, 246, 16, 17)
        m.mark("ctx_flag")
        m.apoll("s43", 16, 247, 17)
        m.red_loads("s38")
        a("s_waitcnt vmcnt(16)", "v_accvgpr_read_b32 v16, a247", "s_mov_b64 s[52:53], s[56:57]", "v_cmp_ne_u32 vcc, 0, v16", "s_cmp_eq_u64 vcc, 0", "s_cselect_b32 s51, 1, 0",
          "s_cselect_b32 s56, s56, 2.0", "s_cselect_b32 s57, s57, 2.0")
        m.y_loads()
        m.red_sum("s35", 2, 40)
        m.mark("p4_loop")
        a("s_cmp_eq_u32 s51, 1", f"s_cbranch_scc1 {name}_gate")
        m.poll("s43", 16, 16, 17)
        a("s_mov_b64 s[56:57], s[52:53]")
        m.y_loads()
        a("s_waitcnt vmcnt(0)", f"{name}_gate:", "s_waitcnt vmcnt(1)")
        m.gate()
        m.mark("p4_end")

def mega5(a, name, diag=False, **o):
    m = Mega(a, name, diag, **o)
    kernel_header(a, name)
    if o.get('rerun'): a("s_mov_b32 s97, 0")
    a("s_cmp_lt_u32 s2, 256", f"s_cbranch_scc1 {name}_go", "s_endpgm", f"{name}_go:")
    m.proj(); m.attn()
    m.endgame()
    a(f"{name}_fin:")
    if diag:
        a("s_waitcnt vmcnt(0)"); m.mark("drain"); m.st.store(a)
        if o.get('dbgout') is not None:
            a(f"s_cmp_lg_u32 s2, {o['dbgout']}", f"s_cbranch_scc1 {name}_nodbg", "s_cmp_lg_u32 s3, 0", f"s_cbranch_scc1 {name}_nodbg", "v_accvgpr_read_b32 v2, a255", "v_mov_b32 v4, 0", "s_nop 1",
              "v_readlane_b32 s40, v2, 0", "v_readlane_b32 s41, v2, 1")
            for k, nm in enumerate(["kv_go", "kv_end", "q_end", "att_go", "tail_end", "op_go", "op_end", "drain"]):
                i = STAMPS.index(nm)
                a(f"v_readlane_b32 s42, v2, {2*i}", f"v_readlane_b32 s43, v2, {2*i+1}", "s_nop 3", "s_sub_u32 s42, s42, s40", "s_sub_u32 s43, s43, s41",
                  f"v_writelane_b32 v4, s42, {2*k}", f"v_writelane_b32 v4, s43, {2*k+1}")
            a("s_mov_b64 exec, 0xffff", f"global_store_dword v1, v4, s[{pDbg}:{pDbg+1}]", f"{name}_nodbg:")
    a("s_endpgm", f"{name}_codeend:")
    return kernel_desc(name)

def make(diag=False, **o):
    from build import build, NAME
    s = build([(NAME + "_kernel", mega5, 256, 163840, o)], diag=diag)
    return s.replace(f"; @launch kernel={NAME}_kernel grid", "; @launch grid").replace(NAME + "_kernel_", "L_")
if __name__ == "__main__":
    import sys, hazard
    s = make(diag=len(sys.argv) > 2)
    print("hazards", hazard.check(s))
    open(sys.argv[1] if len(sys.argv) > 1 else "mega.s", "w").write(s)
```

```python
from common import *
import struct
def fbits(x): return f"{struct.unpack('<I', struct.pack('<f', x))[0]:#x}"

V_L16, V_KA, V_VA, V_D0, V_D1 = 1, 2, 3, 1, 4
TS = [Reg('v', 5, 1), Reg('v', 6, 1)]; LS = [Reg('v', 7, 1), Reg('v', 8, 1)]; NM = [Reg('v', 9, 1), Reg('v', 10, 1)]
V_T0, V_T1, V_T2, V_R, V_T3 = 11, 12, 13, 14, 15
P = lambda ks, qs: Reg('v', 16 + (ks * 2 + qs) * 4, 4)
S = lambda kb, qs: Reg('v', 32 + (kb * 2 + qs) * 4, 4)
E = lambda kb, qs: Reg('v', 64 + (kb * 2 + qs) * 4, 4)
C = lambda kb, qs: Reg('v', 96 + (kb * 2 + qs) * 4, 4)
O = lambda db, qs: Reg('v', 128 + (qs * 16 + db) * 4, 4)
Q = lambda qs, s: Reg('a', (qs * 8 + s) * 4, 4)
F = lambda n: Reg('a', 64 + (n % 16) * 4, 4)
def fload(n):
    if n < 32: return f"ds_read_b128 {F(n)}, v{V_KA} offset:{n*1024}"
    db, ks = (n - 32) // 2, (n - 32) % 2
    return f"ds_read_b128 {F(n)}, v{V_VA} offset:{(ks*16+db)*1024}"
def set_qk(B, base):
    for kb in range(4):
        for qs in range(2):
            for s in range(8):
                B.set_mfma(base + 16 * kb + 8 * qs + s, S(kb, qs), F(8 * kb + s), Q(qs, s), C(kb, qs) if s == 0 else S(kb, qs))
def set_pv(B, base):
    for db in range(16):
        for k, (ks, qs) in enumerate(((0, 0), (1, 0), (1, 1), (0, 1))):
            B.set_mfma(base + 4 * db + k, O(db, qs), F(32 + 2 * db + ks), P(ks, qs), O(db, qs))
def cvts():
    return [f"v_cvt_pk_bf16_f32 {P(kb//2, qs)[2*(kb%2)+h]}, {E(kb,qs)[2*h]}, {E(kb,qs)[2*h+1]}" for kb in range(4) for qs in range(2) for h in range(2)]
S_KM, S_VM, S_KP, S_VP, S_LEFT, S_THR, S_FLOOR, S_BIG = 40, 41, 42, 43, 44, 45, 46, 47
def dma(sp, j): return f"buffer_load_dwordx4 v{V_D0 if j < 4 else V_D1}, s[12:15], s{sp} offen offset:{(j%4)*1024} lds"

def main_body(name, L=16, kg=(1, 6), vg=(49, 6), pollslot=None, look=2, rot=None, pfslot=None, down=None, kgen=None, tstride=0x8000):
    B = Body(128)
    set_qk(B, 0); set_pv(B, 64)
    for n in range(64): B.put(2 * n - L, 'd', fload(n), F(n))
    bv, bk = 64 - L - 1, 128 - L - 1
    jumps = []
    for (g0, gs), sm, sp in ((kg, S_KM, S_KP), (vg, S_VM, S_VP)):
        for j in range(8):
            g = g0 + gs * j
            if kgen and sp == S_KP:
                vk, st, d, d4 = kgen
                B.put(g, 'g', f"buffer_load_dwordx4 v{vk}, s[8:11], s{st if j else sp} offen offset:{(j%4)*1024} lds")
                if j: B.put(g - 3, 's', f"s_add_u32 s{st}, s{st if j > 1 else sp}, s{d4 if j == 4 else d}")
            else: B.put(g, 'g', dma(sp, j))
            if j == 0: B.put(g - 1, 's', f"s_mov_b32 m0, s{sm}")
            if j == 4: B.put(g - 1, 's', "s_bitset1_b32 m0, 12")
        B.put(g + 1, 's', f"s_add_u32 s{sp}, s{sp}, {'s%d' % down[len(jumps)][2] if down else '0x8000'}"); B.put(g - 1, 's', f"s_xor_b32 s{sm}, s{sm}, 0x8000")
        jumps.append((g + 3, sp))
    if pollslot: B.put(pollslot[0], 'g', pollslot[1])
    if pfslot:
        assert kg[0] + 7 * kg[1] < pfslot[0] < bv - 1
        B.put(pfslot[0], 'g', pfslot[1]); B.put(60, 's', pfslot[2])
    for b in (bv, bk):
        B.put(b - 1, 's', f"s_waitcnt vmcnt({8 + (1 if (pollslot and b == bk) else 0) + (1 if pfslot else 0)})"); B.put(b, 's', "s_barrier")
    B.auto_lgkm(look=look, maxcnt=15)
    B.place(bv + 1, bk, 'v', f"v_xor_b32 v{V_KA}, 0x8000, v{V_KA}")
    B.place(bk + 1, bk + 16, 'v', f"v_xor_b32 v{V_VA}, 0x8000, v{V_VA}")
    t = 0
    cv = cvts(); cpos = {}
    seq = [cv[0], cv[1], cv[2], cv[3]] + [f"v_add_f32 {LS[q]}, {LS[q]}, {TS[q]}" for q in range(2)] + cv[4:]
    for x in seq:
        while not (B.fits(t, 'v') and (B.has(t, 'd') or t < 12)): t += 1
        B.put(t, 'v', x); cpos[x] = t
    lpos = max(cpos[seq[4]], cpos[seq[5]])
    te = 0; epos = {}
    for kb in range(4):
        for qs in range(2):
            lo = max(16 * kb + 8 * qs + 7 + 5, cpos[cv[(kb * 2 + qs) * 2 + 1]] + 1)
            for i in range(4):
                te = B.place(max(te, lo), 128, 'e', f"v_exp_f32 {E(kb,qs)[i]}, {S(kb,qs)[i]}"); epos[kb, qs, i] = te
    ta = lpos
    for kb in range(4):
        for qs in range(2):
            for i in range(4):
                if kb == 0 and i == 0: continue
                src = E(0, qs)[0] if (kb == 0 and i == 1) else TS[qs]
                ta = B.place(max(ta + 1, epos[kb, qs, i] + 1), 128, 'v', f"v_add_f32 {TS[qs]}, {src}, {E(kb,qs)[i]}")
    ta = B.place(ta + 1, 128, 'v', f"v_add_f32 v{V_T0}, {TS[0]}, {TS[1]}")
    ta = B.place(ta + 1, 127, 'v', f"v_cmp_nge_f32 vcc, s{S_BIG}, v{V_T0}")
    B.place(120, 126, 's', f"s_sub_u32 s{S_LEFT}, s{S_LEFT}, 1")
    if rot:
        for (t, sp), (e, w, e2, w2) in zip(jumps, rot):
            pos = []
            while len(pos) < 4:
                if any(x.startswith(("s_add", "s_xor", "s_sub", "s_cmp")) for x in B.pre[t]): pos = []
                elif not B.pre[t] and not B.has(t, 'g'): pos.append(t)
                t += 1
            for k, x in zip(pos, (f"s_cmp_eq_u32 s{sp}, s{e}", f"s_cmov_b32 s{sp}, s{w}", f"s_cmov_b32 s{e}, s{e2}", f"s_cmov_b32 s{w}, s{w2}")): B.put(k, 's', x)
    if down:
        for (t, sp), (e, w, st) in zip(jumps, down):
            pos = []
            while len(pos) < 3:
                if any(x.startswith(("s_add", "s_xor", "s_sub", "s_cmp")) for x in B.pre[t]): pos = []
                elif not B.pre[t] and not B.has(t, 'g'): pos.append(t)
                t += 1
            for k, x in zip(pos, (f"s_cmp_eq_u32 s{sp}, s{e}", f"s_cmov_b32 s{sp}, s{w}", f"s_cmov_b32 s{st}, {tstride}")): B.put(k, 's', x)
    B.put(127, 'S', f"s_cbranch_vccnz {name}_slow")
    return B

def k2(a, name, diag=False, nA=18, L=16):
    st = Stamps(diag, 1)
    kernel_header(a, name)
    a("s_cmp_ge_u32 s2, 256", f"s_cbranch_scc1 {name}_end")
    st.mark(a)
    a("s_load_dwordx2 s[30:31], s[0:1], 112")
    a("v_lshrrev_b32 v2, 6, v0", "v_and_b32 v0, 63, v0", "v_readfirstlane_b32 s3, v2",
      "s_and_b32 s33, s2, 7", "s_bfe_u32 s34, s2, 0x30003",
      "s_bfe_u32 s35, s2, 0x10006", "s_lshl_b32 s33, s33, 1", "s_add_u32 s35, s35, s33",
      "s_lshr_b32 s36, s2, 7",
      "s_lshl_b32 s37, s34, 1", f"s_sub_u32 s38, {32-nA}, s37",
      "s_and_b32 s39, s2, 127",
      f"s_mov_b32 s{S_BIG}, {fbits(2.0**24)}")
    a(f"v_lshlrev_b32 v{V_L16}, 4, v0", f"v_add_u32 v{V_D1}, 4096, v{V_L16}")
    a(f"v_and_b32 v{V_R}, 15, v0", f"v_lshrrev_b32 v{V_T0}, 4, v0", f"v_lshlrev_b32 v{V_T0}, 2, v{V_T0}", f"v_sub_u32 v{V_R}, v{V_R}, v{V_T0}",
      "s_lshl_b32 s48, s3, 4", f"v_add_u32 v{V_R}, s48, v{V_R}")
    a("s_lshl_b32 s49, s35, 20", "s_lshl_b32 s50, s3, 13")
    a("s_waitcnt lgkmcnt(0)")
    srd(a, 12, 30, WS_BYTES)
    a("s_sub_u32 s51, 15, s34", "s_cmp_eq_u32 s36, 0", f"s_cbranch_scc1 {name}_roleB")
    a("s_mov_b32 s52, s38", f"s_mov_b32 s53, {nA}", "s_cmp_eq_u32 s38, 0", "s_cselect_b32 s54, 1, 2", f"s_branch {name}_seg")
    a(f"{name}_roleB:", "s_mov_b32 s52, 0", "s_mov_b32 s53, s38", "s_mov_b32 s54, 0", "s_cmp_lg_u32 s38, 0", f"s_cbranch_scc1 {name}_seg")
    a(f"{name}_seg2:", "s_mov_b32 s51, s34", "s_mov_b32 s52, 0", "s_add_u32 s53, s37, 2", "s_mov_b32 s54, 1")
    a(f"{name}_seg:")
    a("s_lshl_b32 s55, s52, 15", "s_add_u32 s55, s55, s49", f"s_add_u32 s{S_KP}, s55, s50", f"s_add_u32 s{S_VP}, s{S_KP}, {WS_V}",
      f"s_mov_b32 s{S_KM}, s50", f"s_add_u32 s{S_VM}, s50, 0x10000",
      "s_lshl_b32 s55, s51, 16", "s_add_u32 s55, s55, s49", "s_add_u32 s55, s55, s50", f"s_add_u32 s55, s55, {WS_Q}", "s_add_u32 s56, s55, 0x8000")
    def issue(sm, sp):
        a(f"s_mov_b32 m0, s{sm}", "s_nop 0")
        for j in range(8):
            if j == 4: a("s_bitset1_b32 m0, 12", "s_nop 0")
            a(dma(sp, j))
        a(f"s_add_u32 s{sp}, s{sp}, 0x8000", f"s_xor_b32 s{sm}, s{sm}, 0x8000")
    issue(S_KM, S_KP)
    for qs in range(2):
        for s in range(8): a(f"buffer_load_dwordx4 {Q(qs,s)}, v{V_D0 if s < 4 else V_D1}, s[12:15], s{55+qs} offen offset:{(s%4)*1024}")
    issue(S_KM, S_KP); issue(S_VM, S_VP)
    a(f"v_mov_b32 v{V_KA}, v{V_L16}", f"v_add_u32 v{V_VA}, 0x10000, v{V_L16}")
    for i in range(96, 256): a(f"v_mov_b32 v{i}, 0")
    for r in LS + NM: a(f"v_mov_b32 {r}, 0")
    a(f"s_mov_b32 s{S_FLOOR}, 0xff800000", "s_cmp_eq_u32 s54, 0", f"s_cselect_b32 s{S_THR}, 0, 2", f"s_sub_u32 s{S_LEFT}, s53, 1")
    def mask(qs):
        a(f"v_mov_b32 v{V_T0}, {fbits(-1e30)}")
        for kb in range(4):
            for i in range(4): a(f"v_cmp_gt_i32 s[{16+2*i}:{17+2*i}], {16*kb+i}, v{V_R}")
            for i in range(4): a(f"v_cndmask_b32 {C(kb,qs)[i]}, {NM[qs]}, v{V_T0}, s[{16+2*i}:{17+2*i}]")
    a(f"s_cmp_ge_u32 s{S_LEFT}, s{S_THR}", f"s_cbranch_scc1 {name}_nomask0")
    mask(0)
    a(f"{name}_nomask0:")
    a("s_waitcnt vmcnt(16)", "s_barrier")
    if diag:
        a("s_cmp_eq_u32 s54, 0", f"s_cbranch_scc1 {name}_st1"); st.mark(a); a(f"{name}_st1:")
    B0 = Body(64, cyclic=False); set_qk(B0, 0)
    for n in range(8): a(fload(n))
    a("s_waitcnt lgkmcnt(0)")
    for n in range(8, 32): B0.put(2 * n - 16, 'd', fload(n), F(n))
    B0.auto_lgkm(look=2, maxcnt=15)
    a(*B0.lines())
    a(f"v_xor_b32 v{V_KA}, 0x8000, v{V_KA}", "s_waitcnt vmcnt(8)", "s_barrier")
    for n in range(L // 2): a(fload(n))
    a(f"{name}_slow:", "s_nop 7")
    for qs in range(2):
        mx, t = f"v{V_T0+qs}", f"v{V_T2}"
        el = [S(kb, qs)[i] for kb in range(4) for i in range(4)]
        a(f"v_max3_f32 {mx}, {el[0]}, {el[1]}, {el[2]}")
        for k in range(3, 15, 2): a(f"v_max3_f32 {mx}, {mx}, {el[k]}, {el[k+1]}")
        a(f"v_max_f32 {mx}, {mx}, {el[15]}")
        for sw in ("v_permlane32_swap_b32", "v_permlane16_swap_b32"):
            a(f"v_mov_b32 {t}, {mx}", "s_nop 1", f"{sw} {mx}, {t}", "s_nop 1", f"v_max_f32 {mx}, {mx}, {t}")
        a(f"v_max_f32 {mx}, s{S_FLOOR}, {mx}", f"v_sub_f32 {NM[qs]}, {NM[qs]}, {mx}")
        for e in el: a(f"v_sub_f32 {e}, {e}, {mx}")
        for kb in range(4):
            for i in range(4): a(f"v_exp_f32 {E(kb,qs)[i]}, {S(kb,qs)[i]}", f"v_mov_b32 {C(kb,qs)[i]}, {NM[qs]}")
        ee = [E(kb, qs)[i] for kb in range(4) for i in range(4)]
        a(f"v_add_f32 {TS[qs]}, {ee[0]}, {ee[1]}")
        for k in range(2, 16): a(f"v_add_f32 {TS[qs]}, {TS[qs]}, {ee[k]}")
    a("s_waitcnt lgkmcnt(0)", f"s_cmp_lg_u32 s{S_FLOOR}, 0", f"s_mov_b32 s{S_FLOOR}, 0", f"s_cbranch_scc1 {name}_ret")
    for qs in range(2):
        f = f"v{V_T0+qs}"
        a(f"v_exp_f32 {f}, -{f}", "s_nop 0", f"v_mul_f32 {LS[qs]}, {LS[qs]}, {f}")
        for db in range(16):
            for i in range(4): a(f"v_mul_f32 {O(db,qs)[i]}, {O(db,qs)[i]}, {f}")
    a(f"s_branch {name}_ret")
    B = main_body(name, L)
    print("attn pattern:", B.pattern()); print("over:", B.report())
    a(".p2align 6", f"{name}_loop:")
    a(*B.lines())
    a(f"{name}_ret:", f"s_cmp_gt_u32 s{S_LEFT}, s{S_THR}", f"s_cbranch_scc1 {name}_loop")
    a(f"s_cmp_eq_u32 s{S_LEFT}, 0", f"s_cbranch_scc1 {name}_tail", f"s_cmp_eq_u32 s{S_LEFT}, 1", f"s_cbranch_scc1 {name}_d1")
    mask(0); a("s_nop 0", f"s_branch {name}_loop")
    a(f"{name}_d1:")
    mask(1)
    for kb in range(4):
        for i in range(4): a(f"v_mov_b32 {C(kb,0)[i]}, v{V_T0}")
    a("s_nop 0", f"s_branch {name}_loop")
    a(f"{name}_tail:", "s_waitcnt vmcnt(0) lgkmcnt(0)", "s_barrier")
    for n in range(32, 40): a(fload(n))
    a(*cvts())
    for q in range(2): a(f"v_add_f32 {LS[q]}, {LS[q]}, {TS[q]}")
    a("s_waitcnt lgkmcnt(0)")
    BT = Body(64, cyclic=False); set_pv(BT, 0)
    for n in range(40, 64): BT.put(2 * (n - 32) - 16, 'd', fload(n), F(n))
    BT.auto_lgkm(look=2, maxcnt=15)
    a(*BT.lines())
    if diag:
        a("s_cmp_eq_u32 s54, 0", f"s_cbranch_scc1 {name}_st2"); st.mark(a); a(f"{name}_st2:")
    for qs in range(2):
        l, t = LS[qs], f"v{V_T2}"
        for sw in ("v_permlane32_swap_b32", "v_permlane16_swap_b32"):
            a(f"v_mov_b32 {t}, {l}", "s_nop 1", f"{sw} {l}, {t}", "s_nop 1", f"v_add_f32 {l}, {l}, {t}")
    for qs in range(2): a(f"v_log_f32 {TS[qs]}, {LS[qs]}", f"v_rcp_f32 v{V_T0+qs}, {LS[qs]}")
    for qs in range(2): a(f"v_sub_f32 {TS[qs]}, {TS[qs]}, {NM[qs]}")
    a("s_lshl_b32 s55, s39, 16", "s_lshl_b32 s57, s3, 14", "s_add_u32 s55, s55, s57", f"s_add_u32 s55, s55, {WS_PO}", "s_add_u32 s56, s55, 0x2000",
      "s_lshl_b32 s57, s39, 2", "s_add_u32 s57, s57, s3", "s_lshl_b32 s57, s57, 9", f"s_add_u32 s57, s57, {WS_PL}",
      "s_lshl_b32 s58, s39, 7", f"s_add_u32 s58, s58, {WS_FLAG}", f"v_lshrrev_b32 v{V_T3}, 2, v{V_L16}")
    def pack(qs, s):
        ra, rb = O(2 * s, qs), O(2 * s + 1, qs)
        a(f"v_cvt_pk_bf16_f32 {ra[0]}, {ra[0]}, {ra[1]}", f"v_cvt_pk_bf16_f32 {ra[1]}, {ra[2]}, {ra[3]}",
          f"v_cvt_pk_bf16_f32 {ra[2]}, {rb[0]}, {rb[1]}", f"v_cvt_pk_bf16_f32 {ra[3]}, {rb[2]}, {rb[3]}")
        return ra
    def scale_store(fl):
        for qs in range(2):
            for s in range(8):
                for db in (2 * s, 2 * s + 1):
                    for i in range(4): a(f"v_mul_f32 {O(db,qs)[i]}, {O(db,qs)[i]}, v{V_T0+qs}")
                r = pack(qs, s)
                a(f"buffer_store_dwordx4 {r}, v{V_D0 if s < 4 else V_D1}, s[12:15], s{55+qs} offen offset:{(s%4)*1024}{fl}")
    a("s_cmp_lg_u32 s54, 0", f"s_cbranch_scc1 {name}_final")
    for qs in range(2): a(f"buffer_store_dword {TS[qs]}, v{V_T3}, s[12:15], s57 offen offset:{256*qs} sc1")
    scale_store(" sc1")
    a("s_waitcnt vmcnt(0)", "s_barrier", "s_cmp_lg_u32 s3, 0", f"s_cbranch_scc1 {name}_seg2",
      f"v_mov_b32 v{V_T0}, 1", f"v_mov_b32 v{V_T1}, 0", "s_mov_b64 s[60:61], exec", "s_mov_b64 exec, 1",
      f"buffer_store_dword v{V_T0}, v{V_T1}, s[12:15], s58 offen sc1", "s_mov_b64 exec, s[60:61]", f"s_branch {name}_seg2")
    a(f"{name}_final:", "s_cmp_eq_u32 s54, 1", f"s_cbranch_scc1 {name}_store")
    a(f"v_mov_b32 v{V_T2}, 0", f"{name}_poll:", f"buffer_load_dword v16, v{V_T2}, s[12:15], s58 offen sc1", "s_waitcnt vmcnt(0)",
      "v_readfirstlane_b32 s59, v16", "s_cmp_eq_u32 s59, 1", f"s_cbranch_scc1 {name}_got", "s_sleep 4", f"s_branch {name}_poll", f"{name}_got:")
    for qs in range(2): a(f"buffer_load_dword v{16+qs}, v{V_T3}, s[12:15], s57 offen offset:{256*qs} sc1")
    PB = lambda qs, s: Reg('v', 32 + (qs * 8 + s) * 4, 4)
    for qs in range(2):
        for s in range(8): a(f"buffer_load_dwordx4 {PB(qs,s)}, v{V_D0 if s < 4 else V_D1}, s[12:15], s{55+qs} offen offset:{(s%4)*1024} sc1")
    a("s_waitcnt vmcnt(16)")
    for qs in range(2):
        a(f"v_max_f32 v18, v{16+qs}, {TS[qs]}", f"v_sub_f32 v19, {TS[qs]}, v18", f"v_sub_f32 v20, v{16+qs}, v18",
          "v_exp_f32 v19, v19", "v_exp_f32 v20, v20", "s_nop 0", "v_add_f32 v18, v19, v20", "v_rcp_f32 v18, v18", "s_nop 0",
          "v_mul_f32 v19, v19, v18", f"v_mul_f32 v{22+qs}, v20, v18", f"v_mul_f32 v{V_T0+qs}, v{V_T0+qs}, v19")
    a("s_lshl_b32 s55, s51, 20", "s_lshl_b32 s57, s3, 17", "s_add_u32 s55, s55, s57", "s_lshl_b32 s57, s35, 13", "s_add_u32 s55, s55, s57",
      f"s_add_u32 s55, s55, {WS_CTX}", "s_add_u32 s56, s55, 0x80000", "s_mov_b32 s59, 0xffff0000")
    for qs in range(2):
        for s in range(8):
            a(f"s_waitcnt vmcnt({15})")
            for k in range(8):
                o = O(2 * s + k // 4, qs)[k % 4]; pb = PB(qs, s)[k // 2]
                a(f"v_lshlrev_b32 v24, 16, {pb}" if k % 2 == 0 else f"v_and_b32 v24, s59, {pb}", f"v_mul_f32 v24, v24, v{22+qs}", f"v_fma_f32 {o}, {o}, v{V_T0+qs}, v24")
            r = pack(qs, s)
            a(f"buffer_store_dwordx4 {r}, v{V_D0 if s < 4 else V_D1}, s[12:15], s{55+qs} offen offset:{(s%4)*1024}")
    a(f"s_branch {name}_done")
    a(f"{name}_store:")
    a("s_lshl_b32 s55, s51, 20", "s_lshl_b32 s57, s3, 17", "s_add_u32 s55, s55, s57", "s_lshl_b32 s57, s35, 13", "s_add_u32 s55, s55, s57",
      f"s_add_u32 s55, s55, {WS_CTX}", "s_add_u32 s56, s55, 0x80000")
    scale_store("")
    a(f"{name}_done:")
    if diag:
        st.mark(a); a("s_waitcnt vmcnt(0)"); st.mark(a); st.store(a, "s[12:15]", "s3")
    a(f"{name}_end:", "s_endpgm")
    return kernel_desc(name)
```

```python
from common import *
from gemm import Gemm, quad_order
import k2 as AT
from k2 import V_L16, V_KA, V_VA, V_D0, V_D1, TS, LS, NM, V_T0, V_T1, V_T2, V_R, V_T3, P, S, E, C, O, Q, F, fload, set_qk, set_pv, cvts
from k2 import S_KM, S_VM, S_KP, S_VP, S_LEFT, S_THR, S_FLOOR, S_BIG

F_KV, F_CTX, F_PO, F_U, F_Y = (WS_FLAG + x for x in (0, 0x1000, 0x2000, 0x6000, 0x7000))
sX, sI, sH, sROLE, sJJ, sW1K = "s24", "s25", "s26", "s27", "s28", "s29"
pAq, pAk, pAv, pAsh, pAssm, pAD, pX, pC, pWq, pWuk, pWuv, pWo, pOut, pDbg = range(64, 92, 2)
sFKV, sFCTX, sFPO, sIDX = "s92", "s93", "s94", "s95"
STAMPS = ["entry", "e_args", "e_t0", "e_t1", "e_wait", "e_land", "kv_go", "kv_end", "q_end", "q_stored", "s1_done", "kv_flag", "att_go", "seg1_end", "seg1_fin", "tail_go", "tail_end", "po_flag", "att_fin", "op_go", "op_end", "s2_go", "s2_end", "pub", "flag1", "mid_end", "ctx_flag", "p4_loop", "p4_end", "drain"]

class Mega:
    def __init__(m, a, name, diag, **o):
        m.a, m.n, m.st = a, name, Stamps2(diag)
        m.o = dict(b1=40, b2=93, gstep=5, nA=20, L=16, NP=4, stfl=' sc1', st0=-104, ststep=7, pubgap=40, LW=13, groups=((0, 1), (2, 3), (4, 5, 6)),
                   wstep=5, pf=1, PD=2, nunits=9, pfdelay=1, DW=7, C0=4, s2pub=6, sleep=8, pgap=109, oppub=40, LO=14, epf=0, ehalf=190, s1g=230, s1gl=240, qlate=0, latepos=0, opw=7, oplead=40, opr=7, opfl='sc1', opoob=0, t1fast=1, outfl='', kg=(1, 6), vg=(49, 6), look=2, afl='sc1', xfl='', yfl='', lean=0, kvlead=30, rot=1, qfl=' sc1', stmod=(1, 1), popf=0, head=1, pre1=10, pfhead=2, stord=(0, 1, 2, 4, 5, 3), stsw=0, ststep0=7, apf=0, stl0=100, stlstep=10, l2pf=0, l2at=44, cs=8, cl=4, opsm=110, opc0=5, w23=(5, 5), w4=6, bpre=0, apre=0, shb=90, shstep=8, cpf1=1, cpf2=None, cpf3=0, x0=6, qsplit=1, zq=0, fa=1, d0wait=1, jjmap=6, fab=1, shb2=0, pad=(0, 0, 0, 1024, 1024, 0)); m.o.update(o)
        m.npoll = 0
        p = m.o['pad']; m.TS = 0x8000 + p[0]; m.HS = 32 * m.TS + p[1]; m.VB = 16 * m.HS + p[2]; m.IS = 0x4000 + p[3]; m.PS = 0x4000 + p[4]; m.CS = 4096 + p[5]
        assert m.VB + 16 * m.HS <= WS_CTX
    def mark(m, nm):
        if (m.st.on != 2 and not m.o.get('tilestamp')) or nm in ("entry", "drain") or (m.o.get('tilestamp') and STAMPS.index(nm) < 8): m.st.mark(m.a, STAMPS.index(nm))
        if m.o.get('tilestamp') and nm in ("q_stored", "s1_done", "att_go", "tail_go"): m.st.mark(m.a, 1 + ("q_stored", "s1_done", "att_go", "tail_go").index(nm))
        if m.o.get('idle', (0, 0))[0] == nm: m.a(f"s_sleep {m.o['idle'][1]}")
        h = m.o.get('hold')
        if h and h[0] == nm:
            l = f"{m.n}_hold{m.npoll}"; m.npoll += 1
            m.a(f"{l}:", "s_memrealtime s[98:99]", "s_waitcnt lgkmcnt(0)", "s_sub_u32 s98, s98, s96", f"s_cmp_lt_u32 s98, {h[1]*100}", f"s_cbranch_scc1 {l}")
    def poll(m, soff, n, va, vd, val=0, dbg=False):
        a = m.a; l = f"{m.n}_poll{m.npoll}"; m.npoll += 1
        a(f"v_and_b32 v{va}, {n-1}, v0", f"v_lshlrev_b32 v{va}, 2, v{va}", "s_mov_b32 s32, 0", f"{l}:")
        a(f"global_load_dword v{vd}, v{va}, s[{pDbg}:{pDbg+1}] offset:{soff} sc1" if dbg else f"buffer_load_dword v{vd}, v{va}, s[12:15], {soff} offen sc1")
        a("s_waitcnt vmcnt(0)", f"v_cmp_ne_u32 vcc, {val}, v{vd}", f"s_cbranch_vccz {l}_ok", f"s_sleep {m.o['sleep']}", "s_add_u32 s32, s32, 1",
          "s_cmp_lt_u32 s32, 0x80000", f"s_cbranch_scc1 {l}", f"{l}_ok:")
    def apoll(m, soff, n, areg, va):
        m.a(f"v_and_b32 v{va}, {n-1}, v0", f"v_lshlrev_b32 v{va}, 2, v{va}", f"buffer_load_dword a{areg}, v{va}, s[12:15], {soff} offen sc1")
    def acheck(m, soff, n, areg, va, vd):
        l = f"{m.n}_poll{m.npoll}_ok"
        m.a(f"v_accvgpr_read_b32 v{vd}, a{areg}", f"v_cmp_ne_u32 vcc, 0, v{vd}", f"s_cbranch_vccz {l}")
        m.poll(soff, n, va, vd)
    def code_pf_setup(m):
        a, n = m.a, m.n
        mode = m.o['cpf1']; nl = {0: 64, 1: 9, 2: 2, 3: 17}[mode]
        a("s_getpc_b64 s[100:101]", f"{n}_pc:", f"s_sub_u32 s100, s100, {n}_pc-{n}_go", "s_subb_u32 s101, s101, 0")
        if mode == 2: a("s_lshl_b32 s32, s2, 2", "s_add_u32 s32, s32, s3", "s_mul_i32 s32, s32, 144")
        else: a("s_lshr_b32 s32, s2, 1", f"s_and_b32 s32, s32, {(12, 124, 0, 60)[mode]}", "s_add_u32 s32, s32, s3", f"s_mul_i32 s32, s32, {128*nl}", f"s_add_u32 s32, s32, {(0x1000, 0, 0, 0)[mode]}")
        a(f"v_min_u32 v14, {nl-1}, v0", "v_lshl_add_u32 v14, v14, 7, s32", f"v_min_u32 v14, {n}_codeend-{n}_go-4, v14", "v_accvgpr_write_b32 a244, v14")
    def code_pf(m, v=14): return f"global_load_dword a243, v{v}, s[100:101]"
    def setflag(m, soff, va, vd):
        m.a(f"v_mov_b32 v{va}, 0", "s_mov_b64 exec, 1", f"buffer_store_dword v{va}, v{va}, s[12:15], {soff} offen sc1", "s_mov_b64 exec, -1")
    def publish(m, soff, va, vd, local=False):
        a = m.a; l = f"{m.n}_pub{m.npoll}"; m.npoll += 1
        a("s_waitcnt vmcnt(0)", "s_barrier", "s_cmp_lg_u32 s3, 0", f"s_cbranch_scc1 {l}")
        if local: a("s_cmp_lg_u32 s30, 0", f"s_cbranch_scc1 {l}_x", "buffer_wbl2 sc1", "s_waitcnt vmcnt(0)", f"{l}_x:")
        m.setflag(soff, va, vd)
        a(f"{l}:")

    def proj(m):
        a, name, o = m.a, m.n, m.o
        NP = o['NP']
        if m.st.on: a("v_mov_b32 v1, v0"); m.st.init(a); m.mark("entry"); a("v_mov_b32 v0, v1")
        if o.get('hold'): a("s_memrealtime s[96:97]")
        a("s_load_dwordx16 s[64:79], s[0:1], 0", "s_load_dwordx8 s[80:87], s[0:1], 64", "s_load_dwordx4 s[88:91], s[0:1], 96", "s_load_dwordx2 s[12:13], s[0:1], 112")
        a("v_lshrrev_b32 v1, 6, v0", "v_and_b32 v0, 63, v0", "v_readfirstlane_b32 s3, v1",
          f"s_and_b32 {sX}, s2, 7", f"s_bfe_u32 {sI}, s2, 0x30003", f"s_bfe_u32 {sH}, s2, 0x10006", f"s_lshl_b32 s37, {sX}, 1", f"s_add_u32 {sH}, {sH}, s37",
          f"s_lshr_b32 {sROLE}, s2, 7", f"s_bfe_u32 {sJJ}, s2, 0x40003", f"s_lshl_b32 {sW1K}, s3, 10",
          "s_and_b32 s39, s3, 1", "s_lshr_b32 s40, s3, 1")
        if o['jjmap']:
            a(f"s_mul_i32 s37, {sROLE}, {8 - o['jjmap']}", f"s_add_u32 s37, s37, {sI}", "s_and_b32 s37, s37, 7", "s_lshl_b32 s37, s37, 1", f"s_lshr_b32 {sJJ}, {sJJ}, 3", f"s_add_u32 {sJJ}, {sJJ}, s37")
        m.code_pf_setup()
        if o['pf']: a(m.code_pf())
        def wrow(j): return 4 * (j & 1) + 16 * ((j >> 1) & 1) + 32 * (j >> 2)
        for j in range(1, 8): a(f"s_mov_b32 s{40+j}, {65536*j}", f"s_mov_b32 s{47+j}, {wrow(j)*8192}")
        ysoff = lambda j: "0" if j == 0 else f"s{40+j}"
        xsoff = lambda j: "0" if j == 0 else f"s{47+j}"
        a("s_lshl_b32 s56, s39, 1", "s_lshl_b32 s57, s40, 3", "s_add_u32 s56, s56, s57")
        VY, VX, VST, VQ, VXA, VONE = 1, 2, 1, 2, 15, 11
        yaddr = [Reg('v', 4, 1), Reg('v', 5, 1)]
        xaddr = [Reg('v', 6 + i, 1) for i in range(8)]
        a(f"s_lshl_b32 s60, {sI}, 8", "s_lshl_b32 s58, s3, 3", "s_add_u32 s58, s58, s60", "v_lshrrev_b32 v14, 3, v0", "v_add_u32 v14, s58, v14", "v_lshlrev_b32 v14, 11, v14",
          "s_lshl_b32 s58, s39, 2", "v_lshrrev_b32 v15, 4, v0", "v_add_u32 v15, s58, v15", "v_xor_b32 v15, v0, v15", "v_and_b32 v15, 7, v15", f"v_lshl_add_u32 v{VY}, v15, 4, v14")
        a("v_lshrrev_b32 v14, 5, v0", "s_lshl_b32 s58, s3, 1", "v_add_u32 v15, s58, v14",
          "v_lshlrev_b32 v15, 1, v15", "v_xor_b32 v15, v0, v15", "v_and_b32 v15, 31, v15", "v_lshlrev_b32 v15, 4, v15",
          "v_add_u32 v14, s56, v14", "v_lshl_add_u32 v14, v14, 13, v15", f"s_lshl_b32 s58, {sH}, 9", f"v_add_u32 v{VX}, s58, v14")
        a("s_waitcnt lgkmcnt(0)")
        m.mark("e_args")
        a(f"s_cmp_eq_u32 {sROLE}, 0", f"s_cselect_b32 s8, s{pWuk}, s{pWuv}", f"s_cselect_b32 s9, s{pWuk+1}, s{pWuv+1}", "s_mov_b32 s10, 8388608", "s_mov_b32 s11, 0x20000")
        srd(a, 4, pC, 4194304); a(f"s_mov_b32 s14, {WS_BYTES}", "s_mov_b32 s15, 0x20000")
        def dmas(p):
            y = [(f"s_add_u32 m0, {sW1K}, {p*32768 + j*4096}", f"buffer_load_dwordx4 v{VY}, s[4:7], {ysoff(j)} offen {o['yfl']} lds") for j in range(8)]
            x = [(f"s_add_u32 m0, {sW1K}, {65536 + p*32768 + j*4096}", f"buffer_load_dwordx4 v{VX}, s[8:11], {xsoff(j)} offen {o['xfl']} lds") for j in range(8)]
            return [d for pr in zip(x, y) for d in pr]
        adv = [f"v_add_u32 v{VY}, 128, v{VY}", f"v_add_u32 v{VX}, 0x80000, v{VX}"]
        real = a; a = Asm()
        a(f"s_lshl_b32 s58, {sROLE}, 3", f"s_add_u32 s59, s58, {sI}", "s_lshl_b32 s59, s59, 2", f"s_lshl_b32 {sFKV}, {sH}, 7", f"s_add_u32 {sFKV}, {sFKV}, s59", f"s_add_u32 {sFKV}, {sFKV}, {F_KV}",
          f"s_add_u32 s58, s58, {sX}", f"s_mul_i32 {sIDX}, s58, 14", f"s_add_u32 {sIDX}, {sIDX}, {sJJ}",
          f"s_sub_u32 s63, 15, {sI}", f"s_cmp_eq_u32 {sROLE}, 0", f"s_cselect_b32 s63, {sI}, s63",
          f"s_lshl_b32 {sFCTX}, s63, 7", f"s_lshl_b32 s59, {sH}, 2", f"s_add_u32 {sFCTX}, {sFCTX}, s59", f"s_add_u32 {sFCTX}, {sFCTX}, {F_CTX}",
          f"s_and_b32 {sFPO}, s2, 127", f"s_lshl_b32 {sFPO}, {sFPO}, 7", f"s_add_u32 {sFPO}, {sFPO}, {F_PO}")
        a("s_cmp_lg_u32 s3, 0", f"s_cbranch_scc1 {name}_noclr")
        a(f"s_lshl_b32 s58, {sIDX}, 2", f"s_add_u32 s59, s58, {F_Y}", f"s_add_u32 s58, s58, {F_U}", f"s_lshl_b32 s61, {sROLE}, 2", f"s_add_u32 s61, s61, {sFPO}",
          f"s_cmp_lt_u32 {sJJ}, 14", f"s_cselect_b32 s58, s58, {sFKV}", f"s_cselect_b32 s59, s59, {sFKV}",
          f"v_mov_b32 v14, {sFKV}", f"v_writelane_b32 v14, {sFCTX}, 1", "v_writelane_b32 v14, s61, 2", "v_writelane_b32 v14, s58, 3", "v_writelane_b32 v14, s59, 4",
          f"s_add_u32 s58, {sFCTX}, 64", "v_writelane_b32 v14, s58, 5", "v_mov_b32 v15, 1", "s_mov_b64 exec, 63", "buffer_store_dword v15, v14, s[12:15], 0 offen sc1", "s_mov_b64 exec, -1")
        a(f"{name}_noclr:")
        a("s_cmp_eq_u32 s3, 0", "s_cselect_b32 s58, 0, 0x80000000", "v_bfrev_b32 v14, 1", "v_writelane_b32 v14, s58, 0", "v_accvgpr_write_b32 a245, v14")
        a("s_lshl_b32 s58, s39, 7", "s_lshl_b32 s59, s40, 3")
        a("v_and_b32 v14, 15, v0", "v_lshrrev_b32 v15, 4, v0",
          "s_lshl_b32 s60, s63, 7", "s_lshl_b32 s62, s3, 4", "s_add_u32 s60, s60, s62", "v_lshrrev_b32 v13, 3, v0", "v_lshlrev_b32 v13, 1, v13", "v_add_u32 v12, s60, v13", "v_mul_u32_u24 v12, 896, v12", "v_lshrrev_b32 v13, 1, v13", "v_xor_b32 v13, v0, v13", "v_and_b32 v13, 7, v13",
          "v_lshl_add_u32 v13, v13, 4, v12", "v_accvgpr_write_b32 a240, v13",
          "v_lshrrev_b32 v13, 1, v14", "v_xor_b32 v12, v13, v15", "v_lshlrev_b32 v12, 4, v12", "v_lshl_add_u32 v12, v13, 7, v12", "v_and_b32 v13, 1, v14", "v_lshl_add_u32 v12, v13, 10, v12",
          "s_lshl_b32 s33, s3, 13", "s_add_u32 s33, s33, 0x20000", "v_add_u32 v12, s33, v12", "v_accvgpr_write_b32 a242, v12",
          f"v_lshrrev_b32 {yaddr[1]}, 1, v14", f"v_xor_b32 {yaddr[1]}, {yaddr[1]}, v15",
          f"v_add_u32 v14, s58, v14", "v_lshlrev_b32 v14, 7, v14", f"v_lshl_add_u32 {yaddr[0]}, {yaddr[1]}, 4, v14", f"v_xor_b32 {yaddr[1]}, 64, {yaddr[0]}")
        a("v_bfe_u32 v14, v0, 2, 3", "v_lshrrev_b32 v15, 5, v0", "v_lshl_add_u32 v13, v15, 4, v14", "v_lshlrev_b32 v13, 9, v13",
          "v_xor_b32 v14, s59, v14", "v_lshl_add_u32 v13, v14, 5, v13", "v_and_b32 v14, 3, v0", "v_lshl_add_u32 v13, v14, 3, v13",
          f"v_add_u32 {xaddr[0]}, 0x10000, v13")
        for nb in range(1, 8): a(f"v_xor_b32 {xaddr[nb]}, {nb*32}, {xaddr[0]}")
        srd(a, 16, pWq, 448 * 8192); srd(a, 20, pX, 2048 * 896)
        cq = fbits(LOG2E / 16)
        a("s_and_b32 s62, s2, 127", "s_lshl_b32 s62, s62, 2", "s_add_u32 s62, s62, s3", f"s_mul_i32 s62, s62, {m.IS}", f"s_add_u32 s62, s62, {WS_CTX}",
          f"s_mul_i32 s58, {sH}, {m.HS}", f"s_mul_i32 s59, {sI}, {4*m.TS}", "s_add_u32 s58, s58, s59", f"s_mul_i32 s59, s39, {2*m.TS}", "s_add_u32 s58, s58, s59",
          "s_lshl_b32 s59, s40, 12", f"s_lshl_b32 s59, s59, {sROLE}", "s_add_u32 s58, s58, s59", f"s_mul_i32 s59, {sROLE}, {m.VB}", "s_add_u32 s58, s58, s59",
          f"s_mov_b32 s57, {64*896}", "s_lshl_b32 s60, s40, 8", "s_add_u32 s60, s60, 0x10000", f"s_mov_b32 s34, {cq}", f"s_mov_b32 s35, {cq}")
        niter = (16 - NP) // 2
        HEAD = o['head']
        a(f"s_mul_i32 s55, {sI}, {niter - 1}", "s_lshr_b32 s55, s55, 3", "s_add_u32 s55, s55, 1", "s_cmp_lg_u32 s3, 0", "s_cmov_b32 s55, 64", "v_mov_b32 v15, 1")
        a(
          f"s_cmp_ge_u32 {sI}, {(33 - o['nA']) // 2}", "s_cmov_b32 s62, 2.0")
        lean = o['lean']
        a(f"s_lshl_b32 s31, {sI}, 16", f"s_lshl_b32 s32, {sH}, 9", "s_add_u32 s31, s31, s32")
        if lean: a("v_bfe_u32 v15, v0, 2, 3", "v_lshlrev_b32 v15, 13, v15", "v_and_b32 v14, 3, v0", "v_lshlrev_b32 v14, 7, v14", "v_add3_u32 v16, v14, v15, s31", "v_lshrrev_b32 v18, 5, v0", "v_lshl_add_u32 v16, v18, 30, v16")
        else: a("v_lshrrev_b32 v15, 3, v0", "v_lshlrev_b32 v15, 13, v15", "v_and_b32 v14, 7, v0", "v_lshlrev_b32 v14, 6, v14", "v_add3_u32 v16, v14, v15, s31")
        a(f"s_lshl_b32 s31, {sI}, 2", "s_lshr_b32 s32, s2, 6", "s_add_u32 s31, s31, s32", "s_lshl_b32 s31, s31, 17", "v_lshlrev_b32 v17, 11, v0", "v_add_u32 v17, s31, v17")
        if lean == 2: a("v_lshrrev_b32 v14, 3, v0", f"v_xor_b32 v14, {sX}, v14", "v_lshl_add_u32 v17, v14, 27, v17")
        PD = o['PD']; units = [pWq, pWq, pX, pAk, pAv, pWo, pWo, pAssm, pAq][:o['nunits']]
        a("s_mul_i32 s36, s2, 7282", "s_lshr_b32 s36, s36, 16", "s_mul_i32 s37, s36, 9", "s_sub_u32 s37, s2, s37", "s_lshl_b32 s38, s36, 16",
          f"s_mov_b64 s[30:31], s[{pWq}:{pWq+1}]")
        for u, pp in list(enumerate(units))[2:]: a(f"s_cmp_eq_u32 s37, {u}", f"s_cmov_b64 s[30:31], s[{pp}:{pp+1}]")
        a("s_add_u32 s32, s38, 1835008", "s_cmp_eq_u32 s37, 1", "s_cmov_b32 s38, s32", "s_cmp_eq_u32 s37, 6", "s_cmov_b32 s38, s32",
          "s_lshl_b32 s32, s39, 15", "s_add_u32 s38, s38, s32",
          f"s_cmp_ge_u32 s37, {len(units)}", "s_cmov_b32 s36, 28", "s_cmp_lt_u32 s36, 28", "s_cselect_b32 s32, 0x8000, 0", "s_cselect_b32 s38, s38, 0",
          "s_add_u32 s36, s30, s38", "s_addc_u32 s37, s31, 0", "s_mov_b32 s38, s32", "s_mov_b32 s39, 0x20000",
          "v_lshlrev_b32 v14, 6, v0" if not lean else "v_lshlrev_b32 v14, 7, v0", f"s_mov_b32 s56, {(-(o['pfdelay'] + max(PD, 1)) * 0x1000) & 0xffffffff:#x}", "s_movk_i32 s30, 0x1000")
        if lean: a("v_and_b32 v14, 0xfff, v14", "v_lshl_add_u32 v14, v18, 20, v14")
        a("s_cmp_ge_u32 s3, 2", f"s_cbranch_scc1 {name}_pfset", "s_mov_b32 s38, 0")
        if PD:
            a("s_cmp_eq_u32 s3, 0", "s_cselect_b64 s[36:37], s[8:9], s[4:5]", "s_cselect_b32 s38, s10, s6", "s_movk_i32 s30, 128", "s_cmov_b32 s30, 0x80000", "s_cselect_b64 vcc, -1, 0",
              "s_lshl_b32 s56, s30, 1", "v_cndmask_b32 v14, v17, v16, vcc")
        a(f"{name}_pfset:", "v_mov_b32 v15, 1", "v_mov_b32 v3, 0")
        if not HEAD:
            for i in range(16, 256, 2): a(f"v_mov_b64 v[{i}:{i+1}], 0")
            for i in range(224, 240): a(f"v_accvgpr_write_b32 a{i}, 0")
        fill = a.L; a = real
        half = o['ehalf']; assert fill.index(f"{name}_noclr:") < half
        half = max(half, fill.index(f"{name}_pfset:") + 2)
        print("prologue fill", len(fill), half)
        grp = lambda p: [[m0, "s_nop 0", t] for m0, t in dmas(p)]
        if HEAD:
            g0 = grp(0); g0[-1] = g0[-1] + adv
            interleave(a, fill, g0 + grp(1)[:o['pre1']]); m.mark("e_t0")
        else:
            interleave(a, fill[:half], grp(0)); a(*adv); m.mark("e_t0")
            interleave(a, fill[half:], grp(1)); a(*adv); m.mark("e_t1")
        NPRE = 0 if (HEAD and o['pfhead']) else max(PD, 1)
        for k in range(NPRE): a("buffer_load_dword a243, v14, s[36:39], s56 offen", "s_add_u32 s56, s56, s30")
        pfs = [("buffer_load_dword a243, v14, s[36:39], s56 offen", "s_add_u32 s56, s56, s30")] * 2 if o['pf'] else None
        xreg = lambda p, x, s_: Reg('a', (x * 2 + s_) * 4, 4)
        yreg = lambda p, y, s_: Reg('a', 64 + (y * 2 + s_) * 4, 4)
        G = []
        for ty in range(2):
            key = (lambda x, y: (x // 2, y)) if ty == 0 else (lambda x, y: (x, y // 2))
            done = {}
            for n, (x, y, st) in enumerate(quad_order(8, 8, 1)): done[key(x, y)] = n
            order = sorted(done, key=lambda k: done[k])
            preg = {}; nv = 0
            for pi, k in enumerate(order):
                if pi in (2, 3): preg[k] = Reg('a', 224 + 8 * (pi - 2), 8)
                else: preg[k] = Reg('v', 16 + 8 * nv, 8); nv += 1
            half = (lambda x, y: x % 2) if ty == 0 else (lambda x, y: y % 2)
            acc = lambda x, y, preg=preg, key=key, half=half: preg[key(x, y)][4 * half(x, y):4 * half(x, y) + 4]
            g = Gemm(8, 8, acc, ty == 1, xreg, yreg, xaddr, yaddr, dmas, adv, o['b1'], o['b2'], o['gstep'], pf=pfs)
            g.order, g.preg, g.done = order, preg, done
            G.append(g)
        m.mark("e_wait")
        a("s_mov_b32 s61, 0", f"s_waitcnt vmcnt({(o['pre1'] if HEAD else 16)+NPRE})"); m.mark("e_land"); a("s_barrier")
        a(*G[0].preload[0])
        m.mark("kv_go")
        a(f"s_cmp_eq_u32 {sROLE}, 0", "s_waitcnt lgkmcnt(0)", f"s_cbranch_scc0 {name}_vloop{'_head' if HEAD else ''}")
        def head(g, lab):
            T = 128; b1, b2 = o['b1'], o['b2']
            B = Body(T + 8, cyclic=False); seen = set()
            for n in range(T + 8):
                tx, src, dst = g.B.m[n]; key = min(dst)
                if key not in seen: seen.add(key); tx = tx[:tx.rindex(",")] + ", 0"
                B.m[n] = (tx, src, dst)
            for q, rel, txt, reg in g.dl:
                if 0 <= q * T + rel < T: B.put(q * T + rel, 'd', txt, reg)
            B.put(b1 - 1, 's', "s_waitcnt lgkmcnt(0)"); B.put(b1, 's', "s_barrier"); B.vmwait(b2 - 1, ["t1"]); B.put(b2, 's', "s_barrier")
            B.auto_lgkm(look=2)
            def G1(t, txt, tag, sc):
                while B.has(t, 'v') or B.pre[t - 1] or not all(x.startswith("s_waitcnt") for x in B.pre[t]): t += 1
                B.putg(t, txt, tag, sc); return t
            t = 1
            for m0, tx in dmas(1)[o['pre1']:]: t = G1(t, tx, "t1", m0) + 4
            for x in adv: t = max(t, B.place(max(t - 3, 0), T, 'v', x) + 2)
            if o['pfhead'] == 1:
                for k in range(PD):
                    t = G1(t, pfs[0][0], "pf", None)
                    while B.pre[t + 1]: t += 1
                    B.put(t + 1, 's', pfs[0][1]); t += 4
            t = max(t, b1 + 2); st = 4 if t > 46 else 5
            for m0, tx in dmas(0): t = G1(t, tx, "t2", m0) + st
            t -= st; assert t < T
            B.resolve_vm(["t1"])
            print("head pattern:", B.pattern())
            a(f"{lab}_head:"); a(*B.lines(0, T)); a(*adv)
            if pfs and o['pfhead'] >= 2:
                for k in range(PD): a(pfs[0][1]) if k < o['pfhead'] - 1 else a(*pfs[0])
            if pfs: a(*pfs[0])
            a(f"s_branch {lab}_mid")

        def tail(g, ty, late=None):
            T = 128; H = 256; Z = H + NP * T; N = Z + 448
            b1, b2 = o['b1'], o['b2']
            B = Body(N, cyclic=False)
            for u in range(NP + 2):
                p = u % 2
                for n in range(T): B.m[u * T + n] = g.B.m[p * T + n]
                for q, rel, txt, reg in g.dl:
                    if q == p and u * T + rel >= 0: B.put(u * T + rel, 'd', txt, reg)
                B.put(u * T + b1 - 1, 's', "s_waitcnt lgkmcnt(0)"); B.put(u * T + b1, 's', "s_barrier")
            hi = lambda pi: g.preg[g.order[pi]][4:8]; lo = lambda pi: g.preg[g.order[pi]][0:4]
            qlist = [('hi', 1), ('hi', 5), ('hi', 6), ('hi', 7), ('hi', 0), ('hi', 4)] + [('hi', k) for k in range(8, 32)] + [('lo', 0), ('lo', 1)]
            qacc = lambda db, qs: (hi if qlist[2 * db + qs][0] == 'hi' else lo)(qlist[2 * db + qs][1])
            xf = lambda ks, qs: Reg('a', (128 + (ks * 2 + qs) * 4) if ks < 12 else (112 + ((ks - 12) * 2 + qs) * 4), 4)
            groups = o['groups']; region = [0, 0x10000, 0x8000, 0x18000, 0x20000, 0, 0x10000]
            ring = lambda f: Reg('a', 64 + 4 * (f % 12), 4)
            n = Z; f = 0; LW = o['LW']; gstart = []; qdone = {}; xors = []; na = 0
            for gi, grp in enumerate(groups):
                kss = [2 * t + h for t in grp for h in range(2)]
                gstart.append(Z + 2 * f - LW)
                for db in range(16):
                    for qs in range(2):
                        for j, ks in enumerate(kss):
                            B.set_mfma(n, qacc(db, qs), ring(f + j), xf(ks, qs), 0 if (gi == 0 and j == 0) else qacc(db, qs)); n += 1
                        qdone[db, qs] = n - 1
                    for j, ks in enumerate(kss):
                        if ks % 2 == 0:
                            va = 7 + na % 4; na += 1
                            xors.append((Z + 2 * (f + j) - LW, f"v_xor_b32 v{va}, {db*32 | region[ks//2]}, v6"))
                        for e in range(2):
                            B.put(Z + 2 * (f + j) - LW + e, 'd', f"ds_read_b64_tr_b16 {ring(f+j)[2*e:2*e+2]}, v{va} offset:{(ks%2)*16384 + e*4096}", ring(f + j)[2*e:2*e+2])
                    f += len(kss)
            lastread = Z + 2 * f - LW
            assert NP >= 4
            for u in range(NP + 2):
                kt = 16 - NP - 2 + u; p = u % 2
                if kt + 2 < 16:
                    for (m0, txt), gp in zip(dmas(p), g.gpos[p]): B.putg(gp - p * T + u * T, txt, f"kv{kt+2}", m0)
                    for gp, txt in g.advpos:
                        if gp // T == p: B.put(gp - p * T + u * T, 'v', txt)
            if pfs: B.putg(g.gpos[1][-1] + 3, pfs[1][0], "pf")
            t12 = (NP - 2) * T; xlast = {}
            for rnd in range(4):
                t = t12 + rnd * T + b2 if rnd < 3 else Z
                for tt in range(2 * rnd, min(2 * rnd + 2, 7)):
                    for qs in range(2):
                        for h in range(2):
                            tx = f"ds_read_b128 {xf(2*tt+h, qs)}, v{3 if h else 14} offset:{(tt%2)*4096 + qs*2048}"
                            if rnd == 2 and (t + 1 - b1 - 3) % 5 == 0: t += 1
                            if rnd < 3: t = B.place(t + 1, t + 12, 'd', tx, xf(2 * tt + h, qs))
                            else: t += 2; B.put(t, 'd', tx, xf(2 * tt + h, qs))
                xlast[rnd] = t
            def lgkm_cover(pos, lastpos):
                cnt = sum(1 for k in range(lastpos + 1, pos) for it in B.vec[k] if it[0] == 'd')
                B.put(pos, 's', f"s_waitcnt lgkmcnt({min(cnt, 15)})")
            xstart = {0: t12 + o['x0']}
            for rnd in range(1, 4):
                pos = max(t12 + rnd * T + 2, xlast[rnd - 1] + 8); lgkm_cover(pos, xlast[rnd - 1]); xstart[rnd] = pos + 1
            br4 = xlast[3] + 10; lgkm_cover(br4 - 1, xlast[3]); B.put(br4, 's', "s_barrier")
            bfree = gstart[1] + 10
            B.put(bfree - 1, 's', "s_waitcnt lgkmcnt(9)"); B.put(bfree, 's', "s_barrier")
            B.put(N - 3, 's', "s_waitcnt lgkmcnt(0)"); B.put(N - 2, 's', "s_barrier")
            bars = []
            for u in range(1, NP + 1): bars.append((u * T + b2, [f"kv{16-NP-2+u+1}"] + ([f"x{u-NP+2}"] if u >= NP - 2 else [])))
            for gi, grp in enumerate(groups): bars.append((gstart[gi] - 1, [f"wq{t}" for t in grp] + (["x3"], [], ["arm"])[gi]))
            for pos, tags in bars: B.vmwait(pos - 1, tags); B.put(pos, 's', "s_barrier")
            B.auto_lgkm(look=3, maxcnt=15)
            def gfree(t): return not B.has(t, 'g') and not any(k in 've' for k, *_ in B.vec[t]) and all(x.startswith("s_waitcnt") for x in B.pre[t]) and len(B.pre[t]) <= 1
            state = dict(last=-1)
            def G1(t, txt, tag, sc=None, mind=2):
                while True:
                    if gfree(t) and not any(B.has(k, 'g') for k in range(max(0, t - mind + 1), min(N, t + mind))) and (sc is None or not B.pre[t - 1] or (not B.pre[t - 2] and not B.has(t - 2, 'g'))): break
                    t += 1
                B.putg(t, txt, tag)
                if sc: B.put(t - 1 if not B.pre[t - 1] else t - 2, 's', sc)
                return t
            for pos, tx in xors: B.place(pos - 3, pos, 'v', tx, back=True)
            B.place((NP + 1) * T + b1, xors[0][0] - 3, 'v', "v_xor_b32 v6, s60, v6")
            wq = lambda t, j: (f"buffer_load_dwordx4 v{VQ}, s[16:19], {xsoff(j)} offen lds", f"wq{t}", f"s_add_u32 m0, {sW1K}, {region[t] + j*4096}")
            B.place(H, H + 5, 'v', f"v_accvgpr_read_b32 v{VXA}, a240")
            if o['pf'] and o['cpf2'] is not None:
                tq = B.place(H, H + 5, 'v', "v_accvgpr_read_b32 v14, a244"); tq = G1(max(tq + 1, H + o['cpf2']), m.code_pf(), "pf")
            else: tq = H
            if o['l2pf'] & 1:
                tq = B.place(max(tq + 1, H + o['l2at']), N, 'v', "v_accvgpr_read_b32 v14, a241"); tq = G1(tq + 1, "buffer_load_dword a243, v14, s[16:19], 0 offen", "pf")
            if o['l2pf'] & 2:
                tq = B.place(max(tq + 1, H + o['l2at']), N, 'v', "v_accvgpr_read_b32 v14, a253")
                for pp in (pAk, pAv): tq = G1(tq + 1, f"global_load_dword a243, v14, s[{pp}:{pp+1}]", "pf")
            assert tq < H + b2 - 6
            tq = B.place(tq + 1, tq + 20, 'v', "v_accvgpr_read_b32 v14, a242"); B.place(tq + 1, tq + 20, 'v', "v_xor_b32 v3, 64, v14")
            B.place(NP * T, NP * T + 20, 'v', f"v_lshlrev_b32 v{VST}, 4, v0")
            cur = [16]
            def wgroup(t, start, step):
                start = B.place(start - 2, start + 8, 'v', f"v_add_u32 v{VQ}, {((t - cur[0]) * 0x80000) & 0xffffffff:#x}, v{VQ}") + 1; cur[0] = t
                for j in range(8): start = G1(start, *wq(t, j)) + step
                return start
            for rnd in range(4):
                t = xstart[rnd]
                for tt in range(2 * rnd, min(2 * rnd + 2, 7)):
                    for qs in range(2):
                        for h in range(2):
                            im = h * 896 + tt * 128
                            t = G1(t, f"buffer_load_dwordx4 v{VXA}, s[20:23], {'s57' if qs else 0} offen offset:{im} lds", f"x{rnd}", f"s_add_u32 m0, s33, {((tt%2)*4096 + qs*2048 + h*1024 - im) & 0xffffffff:#x}") + 4
                assert t - 4 < t12 + rnd * T + b1 + 12, (rnd, t)
            t = wgroup(0, NP * T + b1 + 3, 5); t = wgroup(1, t, 5)
            plan = o['plan'][late] if o.get('plan') else None
            if not plan:
                w23 = o['w23'][late]
                t = wgroup(2, (NP + 1) * T + b1 + 3, w23); t = wgroup(3, t, w23)
                t = wgroup(4, max(t, br4 + 3), o['w4'])
                t = wgroup(5, max(t, bfree + 3), o['wstep']); t = wgroup(6, t, o['wstep'])
            def V1(t, txt): return B.place(t, N, 'v', txt)
            soff = (lambda k: (k[1] // 4) * m.TS + (k[1] % 4) * 8192 + k[0] * 1024) if ty == 0 else (lambda k: (k[1] // 2) * m.TS + (k[1] % 2) * 16384 + k[0] * 1024)
            base15 = (NP + 1) * T
            tv = 0; ready = {}; packed = {}
            def S1(t, txt):
                while B.pre[t] or B.has(t, 'g'): t += 1
                for y in (txt if isinstance(txt, tuple) else (txt,)): B.put(t, 's', y)
                return t
            S1(base15 - 20, (f"s_cmp_lt_u32 {sI}, 4", f"s_cselect_b32 s1, 2.0, {sFKV}")); S1(base15 - 30, "s_mov_b32 s56, s58")
            def store(t, pi, base, tag):
                r = {2: hi(0), 3: hi(4)}.get(pi) or lo(pi); off = soff(g.order[pi])
                return G1(t, f"buffer_store_dwordx4 {r}, v{VST}, s[12:15], s59 offen offset:{off % 4096}{o['stfl']}", tag, f"s_add_u32 s59, {base}, {off - off % 4096}")
            ts = Z + o['st0']; spos = {}; xslot = None
            if plan:
                todo = list(o['stord'] + tuple(range(6, 32))); rel = {2: base15 + b1 + 3, 3: 0, 4: br4 + 3, 5: bfree + 3, 6: 0}; tq_ = ts
                for it in plan.split():
                    if it[0] == 'S':
                        for k in range(int(it[1:])): pi = todo.pop(0); ts = spos[pi] = store(tq_, pi, "s56", "st"); tq_ = max(tq_ + o['cs'], ts + 2)
                    elif it[0] == 'W': t = tq_ = wgroup(int(it[1:]), max(tq_, rel[int(it[1:])]), o['cl'])
                    elif it[0] == '@': tq_ = max(tq_, Z + int(it[1:]))
                    elif it[0] == 'X': xslot = tq_; tq_ += 60
                assert not todo
                ts += o['ststep']
            for pi in (() if plan else o['stord'] + tuple(range(6, 32))):
                if late and pi >= 4:
                    if pi < 6: ts += o['ststep0']
                    continue
                ts = spos[pi] = store(ts, pi, "s56", "st")
                ts += o['ststep'] if ts >= Z + o['stsw'] else o['ststep0']
            if late and not plan:
                tl = Z + o['stl0']
                for pi in range(4, 32): tl = spos[pi] = store(tl, pi, "s56", "st"); tl += o['stlstep']
            print("stores end", spos[31] - Z)
            def cv(pi, dst, s0, s1):
                nonlocal tv
                for i, (x, y) in enumerate(((s0[0], s0[1]), (s0[2], s0[3]), (s1[0], s1[1]), (s1[2], s1[3]))): tv = V1(tv, f"v_cvt_pk_bf16_f32 {dst[i]}, {x}, {y}")
                packed[pi] = (dst, tv)
            for pi in (0, 1, 2, 4, 5, 3) + tuple(range(6, 32)):
                k = g.order[pi]; tv = max(tv, base15 + g.done[k] + 8)
                if pi in (2, 3):
                    ta, tb = (hi(0), hi(1)) if pi == 2 else (hi(4), hi(5))
                    for i in range(8): tv = V1(tv, f"v_accvgpr_read_b32 {(ta if i < 4 else tb)[i%4]}, {g.preg[k][i]}")
                    cv(pi, ta, ta, tb); ready['hi', 1 if pi == 2 else 5] = tv
                else:
                    cv(pi, lo(pi), lo(pi), hi(pi)); ready['hi', pi] = tv
            for pi in range(32):
                assert packed[pi][1] < spos[pi], (pi, packed[pi][1], spos[pi])
                ready[{2: ('hi', 0), 3: ('hi', 4)}.get(pi, ('lo', pi))] = spos[pi]
            for idx, kq in enumerate(qlist): assert ready[kq] < Z + 4 * idx - 1, (kq, ready[kq], Z + 4 * idx)
            tp = ts - o['ststep'] + o['pubgap']
            late_pub = tp > N - 12
            if not late:
                while B.pre[tp] or B.pre[tp - 1] or B.has(tp, 'g'): tp += 1
                B.vmwait(tp - 1, ["st"]); B.put(tp, 's', "s_barrier")
                B.place(Z, tp, 'v', f"v_accvgpr_read_b32 v{VONE}, a245")
                G1(tp + 1, f"buffer_store_dword v{VONE}, v{VONE}, s[12:15], {sFKV} offen sc1", "fl", mind=1)
            tz = B.place(Z + 20, N, 'v', "v_mov_b32 v12, 0"); tz = G1(tz + 1, f"global_load_dword a248, v12, s[{pDbg}:{pDbg+1}] offset:128 sc1", "arm")
            tz = B.place(tz + 1, N, 'v', "v_and_b32 v12, 11, v0"); B.place(tz + 1, N, 'v', "v_lshlrev_b32 v12, 2, v12")
            sc, ve, vm = m.s1a_ops(); tz = Z + 40
            for x in sc:
                tz += 1
                while B.pre[tz] or B.has(tz, 'g'): tz += 1
                B.put(tz, 's', x)
            tz = max(tz, spos[16])
            for x in ve: tz = B.place(tz + 1, N, 'v', x)
            tve = tz; tz = max(tz + 1, xslot or Z + o['s1gl' if late else 's1g'])
            for x in vm: tz = G1(tz, x, "s1") + 4
            tz = max(t, tve) + 2
            for x in m.att_scalars(ty):
                tz += 1
                while B.pre[tz] or B.has(tz, 'g'): tz += 1
                for y in (x if isinstance(x, tuple) else (x,)): B.put(tz, 's', y)
            assert tz < N - o['kvlead']
            G1(N - o['kvlead'], "buffer_load_dword v13, v12, s[12:15], s58 offen sc1", "kvp")
            tz = B.place(Z + 130, N, 'v', f"v_add_u32 v{V_D1}, 4096, v{V_L16}")
            tz = B.place(gstart[2] + 2, N, 'v', "v_accvgpr_read_b32 v5, a248")
            rest = []; tv = 0
            for s in range(8):
                for qs in range(2):
                    ra, rb = qacc(2 * s, qs), qacc(2 * s + 1, qs)
                    cvs = [f"v_cvt_pk_bf16_f32 {ra[i]}, {x}, {y}" for i, (x, y) in enumerate(((ra[0], ra[1]), (ra[2], ra[3]), (rb[0], rb[1]), (rb[2], rb[3])))]
                    wrs = [f"v_accvgpr_write_b32 {Q(qs,s)[i]}, {ra[i]}" for i in range(4)]
                    off = qs * 0x2000 + s * 1024
                    sto = (f"buffer_store_dwordx4 {ra}, v{VST}, s[12:15], s59 offen offset:{off % 4096}{o['qfl']}", "qst", f"s_add_u32 s59, s62, {off - off % 4096}")
                    tv = max(tv, qdone[2 * s + 1, qs] + 8)
                    free = sum(1 for k in range(min(tv, N), N - 4) if B.fits(k, 'v'))
                    if free >= 20 and not rest:
                        for r in (ra, rb):
                            for i in range(4): tv = V1(tv, f"v_mul_f32 {r[i]}, s34, {r[i]}")
                        for x in cvs: tv = V1(tv, x)
                        if ty == 1 and not o['qlate']: G1(tv + 1, *sto)
                        for x in wrs: tv = V1(tv, x)
                    else:
                        rest += [f"v_pk_mul_f32 {r[i:i+2]}, {r[i:i+2]}, s[34:35]" for r in (ra, rb) for i in (0, 2)] + cvs + ([sto[2], sto[0]] if ty == 1 and not o['qlate'] else []) + wrs
            vops = B.resolve_vm()
            print(f"tail{ty} pattern:", " ".join(B.pattern().split()[H:])); print("over", len([x for x in B.report() if x[0] >= H]), "rest", len(rest), "late_pub", late_pub)
            ts_on = o.get('tilestamp')
            if not late:
                g.common = B.lines(H, base15)
                for u in range(NP - 1):
                    if ts_on: m.st.mark(a, 20 + u)
                    a(*B.lines(H + u * T, H + (u + 1) * T))
                a(f"s_cmp_ge_u32 {sI}, 4", f"s_cbranch_scc1 {name}_late{ty}")
            else:
                assert g.common == B.lines(H, base15)
                a(f"{name}_late{ty}:")
            if ts_on: m.st.mark(a, 23)
            a(*B.lines(base15, Z)); m.mark("kv_end")
            for u in range(4):
                a(*B.lines(Z + 112 * u, Z + 112 * (u + 1)))
                if ts_on: m.st.mark(a, 24 + u)
            m.mark("q_end")
            assert not late_pub and vops.index("kvp") > max(i for i, x in enumerate(vops) if x == 's1')
            a(f"s_waitcnt vmcnt({len(vops) - 1 - vops.index('kvp')})", "v_cmp_ne_u32 s[16:17], 0, v13", "v_cmp_gt_u32 vcc, 256, v5", "s_or_b64 vcc, vcc, s[16:17]",
              f"s_mov_b32 m0, s{S_KM}", "s_cselect_b32 s48, 0, 1", f"s_cselect_b32 s52, 2.0, s{S_KP}")
            interleave(a, rest, [(["s_bitset1_b32 m0, 12", "s_nop 0"] if j == 4 else []) + [AT.dma(52, j).replace(" lds", " sc1 lds")] for j in range(8)])

        def loop(g, lab):
            B = g.B
            k = [i for i in range(4, 40) if not B.pre[i] and not B.vec[i]][0]
            pre_k = list(B.pre[k])
            L = B.lines(0, k) + [B.m[k][0], "s_cmp_eq_u32 s61, s55", f"s_cbranch_scc1 {lab}_side", f"{lab}_back:"] + B.lines(k + 1, 128) + [f"{lab}_mid:"] + B.lines(128, B.n - 2)
            L += [B.m[B.n-2][0], "s_add_u32 s61, s61, 1"] + B.lines(B.n - 2, B.n - 1)[1:] + B.lines(B.n - 1, B.n) + [f"s_cmp_lt_u32 s61, {niter}", f"s_cbranch_scc1 {lab}"]
            if o.get('tilestamp'):
                def stp(off): return ["s_memrealtime s[96:97]", "s_memtime s[98:99]", "v_accvgpr_read_b32 v0, a255", "s_waitcnt lgkmcnt(0)", "s_lshl_b32 s97, s61, 2", f"s_add_u32 s97, s97, {off}", "s_add_u32 s99, s97, 1", "s_mov_b32 vcc_lo, m0",
                                      "s_mov_b32 m0, s97", "v_writelane_b32 v0, s96, m0", "s_mov_b32 m0, s99", "v_writelane_b32 v0, s98, m0", "s_mov_b32 m0, vcc_lo", "v_accvgpr_write_b32 a255, v0", "v_mbcnt_lo_u32_b32 v0, -1, 0", "v_mbcnt_hi_u32_b32 v0, -1, v0"]
                im = L.index(f"{lab}_mid:"); L = stp(16) + L[:im + 1] + stp(18) + L[im + 1:]
            if HEAD: head(g, lab)
            a(".p2align 6", f"{lab}:"); a(*L)
            if o.get('rerun'):
                a("s_add_u32 s97, s97, 1", f"s_cmp_gt_u32 s97, {o['rerun']}", f"s_cbranch_scc1 {lab}_norerun", "s_waitcnt vmcnt(0) lgkmcnt(0)", "s_barrier",
                  "s_lshl_b32 s58, s3, 6", "v_add_u32 v0, s58, v0", f"s_branch {name}_go", f"{lab}_norerun:")
        loop(G[0], f"{name}_kloop"); tail(G[0], 0, 0); a(f"s_branch {name}_kvdone"); tail(G[0], 0, 1)
        a(f"s_branch {name}_kvdone")
        for lab in ("kloop", "vloop"):
            a(f"{name}_{lab}_side:", "s_mov_b64 exec, 1", f"global_atomic_add v3, v15, s[{pDbg}:{pDbg+1}] offset:128 sc1", "s_mov_b64 exec, -1", f"s_branch {name}_{lab}_back")
        loop(G[1], f"{name}_vloop"); tail(G[1], 1, 0); a(f"s_branch {name}_kvdone"); tail(G[1], 1, 1)
        a(f"{name}_kvdone:")
        m.mark("q_stored")

    S1K = lambda m, j: 32 + 8 * j
    S1V = lambda m, j: 72 + 8 * j
    S1W = lambda m, j: 88 + 8 * j
    def s1a_ops(m):
        sc = [f"s_and_b32 s36, {sIDX}, 31", f"s_lshr_b32 s37, {sIDX}, 5", "s_lshl_b32 s38, s3, 4", "s_lshl_b32 s39, s36, 6", "s_add_u32 s38, s38, s39", "s_mul_i32 s38, s38, 896",
              "s_lshl_b32 s39, s37, 7", "s_add_u32 s38, s38, s39", "s_lshl_b32 s39, s37, 9"]
        t = Asm(); srd(t, 4, pAk, 2048 * 896); srd(t, 8, pAv, 2048 * 896); srd(t, 20, pAsh, 448 * 8); sc += t.L
        ve = ["v_lshrrev_b32 v120, 3, v0", "v_mul_u32_u24 v120, 1792, v120", "v_and_b32 v121, 7, v0", "v_lshl_add_u32 v120, v121, 4, v120", "v_add_u32 v120, s38, v120", "v_lshlrev_b32 v121, 6, v121",
              f"v_subrev_u32 v122, {896*3}, v120", f"v_subrev_u32 v123, {896*2}, v120", f"v_subrev_u32 v128, 896, v120"]
        q = lambda r: f"v[{r}:{r+3}]"
        vm = [f"buffer_load_dwordx4 {q(m.S1K(j))}, v{(122,123,128)[j]}, s[4:7], 0 offen" for j in range(3)]
        vm += [f"buffer_load_dwordx4 {q(m.S1K(3+j))}, v120, s[4:7], 0 offen offset:{896*j}" for j in range(2)]
        vm += [f"buffer_load_dwordx4 {q(m.S1V(j))}, v120, s[8:11], 0 offen offset:{896*j}" for j in range(2)]
        vm += [f"buffer_load_dwordx4 {q(m.S1W(j))}, v121, s[20:23], s39 offen offset:{16*j}" for j in range(4)]
        return sc, ve, vm
    def s1b(m):
        a, name = m.a, m.n
        a(f"s_cmp_ge_u32 {sJJ}, 14", f"s_cbranch_scc1 {name}_s1b", "s_mov_b32 s36, 0xffff0000", f"s_and_b32 s33, {sIDX}, 31", f"s_lshr_b32 s34, {sIDX}, 5")
        def unpack(dst, src, hi): a(f"v_and_b32 v{dst}, s36, v{src}" if hi else f"v_lshlrev_b32 v{dst}, 16, v{src}")
        T = 128
        for c2 in range(4):
            for j in range(5):
                for h in range(2): unpack(T + 2 * j + h, m.S1K(j) + c2, h)
            for j in range(2):
                for h in range(2): unpack(T + 10 + 2 * j + h, m.S1V(j) + c2, h)
            for j in range(4):
                for h in range(2): unpack(T + 14 + 2 * j + h, m.S1W(c2) + 2 * h + j // 2, j % 2)
            pr = lambda r: f"v[{T+r}:{T+r+1}]"
            for t in range(2):
                d = pr(22 + 2 * t)
                a(f"v_pk_mul_f32 {d}, {pr(2*t)}, {pr(20)}", f"v_pk_fma_f32 {d}, {pr(2+2*t)}, {pr(18)}, {d}", f"v_pk_fma_f32 {d}, {pr(4+2*t)}, {pr(16)}, {d}",
                  f"v_pk_fma_f32 {d}, {pr(6+2*t)}, {pr(14)}, {d}", f"v_pk_mul_f32 {d}, {d}, {pr(10+2*t)}", f"v_cvt_pk_bf16_f32 v{16+4*t+c2}, v{T+22+2*t}, v{T+23+2*t}")
        a("v_lshrrev_b32 v26, 3, v0", "v_lshlrev_b32 v26, 8, v26", "v_and_b32 v25, 7, v0", "v_lshl_add_u32 v26, v25, 4, v26", "s_lshl_b32 s35, s3, 11", "s_add_u32 s35, s35, 0x20000", "v_add_u32 v26, s35, v26")
        for t in range(2): a(f"ds_write_b128 v26, v[{16+4*t}:{19+4*t}] offset:{128*t}")
        a("v_bfe_u32 v24, v0, 2, 2", "v_bfe_u32 v28, v0, 4, 1", "v_lshl_add_u32 v24, v28, 3, v24", "v_lshlrev_b32 v24, 2, v24", "v_lshrrev_b32 v28, 5, v0", "v_add_u32 v24, v24, v28",
          "v_lshlrev_b32 v24, 7, v24", "v_and_b32 v28, 3, v0", "v_lshl_add_u32 v24, v28, 3, v24", "s_lshl_b32 s35, s3, 5", "s_add_u32 s35, s35, 0x20000", "v_add_u32 v24, s35, v24")
        a("v_and_b32 v25, 15, v0", f"v_mul_u32_u24 v25, {m.CS}, v25", "v_lshrrev_b32 v28, 4, v0", "v_lshl_add_u32 v25, v28, 4, v25",
          "s_lshl_b32 s35, s34, 2", "s_add_u32 s35, s35, s3", f"s_mul_i32 s35, s35, {16*m.CS}", "s_lshl_b32 s36, s33, 7", "s_add_u32 s35, s35, s36", f"s_add_u32 s35, s35, {WS_U}")
        a(f"{name}_s1b:")
    def s1c(m):
        a, name = m.a, m.n
        a(f"s_cmp_ge_u32 {sJJ}, 14", f"s_cbranch_scc1 {name}_s1c")
        for ph in range(2):
            for e in range(2): a(f"ds_read_b64_tr_b16 v[{16+4*ph+2*e}:{17+4*ph+2*e}], v24 offset:{(16*e + 2*ph)*128}")
        a("s_waitcnt lgkmcnt(0)")
        for ph in range(2): a(f"buffer_store_dwordx4 v[{16+4*ph}:{19+4*ph}], v25, s[12:15], s35 offen offset:{64*ph} sc1")
        a(f"{name}_s1c:")

    def att_scalars(m, role):
        L = [f"s_and_b32 s58, {sFKV}, ~127", f"s_lshl_b32 s37, {sI}, 1", f"s_sub_i32 s38, {32-m.o['nA']}, s37", "s_max_i32 s38, s38, 0",
             f"s_mul_i32 s49, {sH}, {m.HS}", "s_lshl_b32 s50, s3, 13", "s_add_u32 s49, s49, s50", f"s_mov_b32 s54, {2*role}"]
        if role: L += [f"s_sub_u32 s{S_LEFT}, 31, s37", f"s_sub_u32 s{S_LEFT}, s{S_LEFT}, s38", f"s_mul_i32 s55, s38, {m.TS}", f"s_add_u32 s{S_KP}, s55, s49", "s_add_u32 s60, s58, 16", f"s_sub_u32 s{S_THR}, 17, s37"]
        else: L += [f"s_add_u32 s{S_LEFT}, s37, 1", f"s_mov_b32 s{S_KP}, s49", f"s_add_u32 s60, {sFPO}, 4", f"s_mov_b32 s{S_THR}, 2"]
        if role and m.o['rot']:
            assert m.o['nA'] >= 19
            L += [f"s_sub_u32 s66, s{S_KP}, {m.TS}", f"s_add_u32 s{S_KP}, s49, {15*m.TS}", f"s_add_u32 s67, s49, {16*m.TS}", f"s_add_u32 s68, s66, {m.VB}", f"s_add_u32 s69, s67, {m.VB}",
                  f"s_mov_b32 s70, {-m.TS & 0xffffffff:#x}", "s_mov_b32 s71, s70"]
        else: L += ["s_mov_b32 s66, 1", "s_mov_b32 s68, 1", f"s_mov_b32 s70, {m.TS}", "s_mov_b32 s71, s70"]
        L += [f"s_add_u32 s{S_VP}, s{S_KP}, {m.VB}", f"s_mov_b32 s{S_KM}, s50", f"s_add_u32 s{S_VM}, s50, 0x10000",
              f"s_lshr_b32 s61, {sIDX}, 4", "s_lshl_b32 s61, s61, 7", f"s_add_u32 s61, s61, {F_U}", f"s_mov_b32 s{S_BIG}, {fbits(2.0**24)}",
              f"s_lshl_b32 s30, {sIDX}, 1", "s_lshr_b32 s31, s3, 1", "s_add_u32 s30, s30, s31", "s_min_u32 s30, s30, 223", "s_lshl_b32 s30, s30, 2", "s_lshl_b32 s53, s3, 4"]
        return L
    def attn(m):
        a, name, o = m.a, m.n, m.o
        nA, L = o['nA'], o['L']
        sNB, sHB, sW8K, sMODE, sQB = "s38", "s49", "s50", "s54", "s51"
        dma = lambda sp, j: AT.dma(sp, j).replace(" lds", " sc1 lds")
        a(f"s_load_dword s31, s[{pAD}:{pAD+1}], s30")
        m.s1b()
        m.mark("s1_done")
        def issue(sm, sp, a):
            a(f"s_mov_b32 m0, s{sm}", "s_nop 0")
            for j in range(8):
                if j == 4: a("s_bitset1_b32 m0, 12", "s_nop 0")
                a(dma(sp, j))
            a(f"s_add_u32 s{sp}, s{sp}, s70", f"s_xor_b32 s{sm}, s{sm}, 0x8000")
        def qload(qb, dst, a):
            a(f"s_add_u32 s55, {qb}, s3", f"s_mul_i32 s55, s55, {m.IS}", f"s_add_u32 s55, s55, {WS_CTX}", "s_add_u32 s56, s55, 0x2000")
            for qs in range(2):
                for s in range(8): a(f"buffer_load_dwordx4 a[{dst+(qs*8+s)*4}:{dst+(qs*8+s)*4+3}], v{V_D0 if s < 4 else V_D1}, s[12:15], s{55+qs} offen offset:{(s%4)*1024} sc1")
        BIG = fbits(2.0**24)
        sFQ, sFU, sSSM = "s60", "s61", "s62"
        fill = [f"v_and_b32 v{V_R}, 15, v0", f"v_lshrrev_b32 v{V_T0}, 4, v0", f"v_lshlrev_b32 v{V_T0}, 2, v{V_T0}", f"v_sub_u32 v{V_R}, v{V_R}, v{V_T0}", f"v_add_u32 v{V_R}, s53, v{V_R}",
                f"v_mov_b32 v{V_KA}, v{V_L16}", f"v_add_u32 v{V_VA}, 0x10000, v{V_L16}"] + [f"v_mov_b64 v[{i}:{i+1}], 0" for i in range(96, 256, 2)] + [f"v_mov_b32 {r}, 0" for r in LS + NM]
        fill += [f"v_mov_b32 v{V_T2}, v{V_L16}", "s_mov_b64 s[8:9], s[12:13]", "s_mov_b32 s10, s14", "s_mov_b32 s76, 0", "s_movk_i32 s77, 0x1000", "s_mov_b32 s51, 0"]
        fill += [f"v_mul_u32_u24 v{V_T3}, {sROLE}, v12", "v_accvgpr_write_b32 a246, 1", "v_accvgpr_write_b32 a247, 1", f"s_cmp_lt_u32 {sJJ}, 14", f"s_cselect_b32 {sSSM}, 1, 0", f"s_andn2_b32 {sSSM}, {sSSM}, {sROLE}"]
        selops = lambda b: ([f"v_mov_b32 v{b}, 0", f"v_mov_b32 v{b+1}, 0", f"v_mov_b32 v{b+4}, 0", f"v_mov_b32 v{b+5}, 0", f"v_and_b32 v{b+6}, 1, v0", f"v_lshlrev_b32 v{b+6}, 4, v{b+6}", f"v_mov_b32 v{b+7}, 0x3f80",
                             f"v_lshlrev_b32 v{b+6}, v{b+6}, v{b+7}", f"v_bfe_u32 v{b+7}, v0, 1, 3", f"v_lshrrev_b32 v{b+8}, 4, v0", f"v_lshlrev_b32 v{b+8}, 1, v{b+8}", f"v_sub_u32 v{b+7}, v{b+7}, v{b+8}",
                             f"v_cmp_eq_u32 s[20:21], 0, v{b+7}", f"v_cmp_eq_u32 s[22:23], 1, v{b+7}"],
                            [f"v_cndmask_b32 v{b+2}, 0, v{b+6}, s[20:21]", f"v_cndmask_b32 v{b+3}, 0, v{b+6}, s[22:23]"])
        so = selops(40); real = m.a; m.a = Asm(); m.op_setup(50, 51); ops_ = m.a.L[:-4]; m.a = real
        fill += so[0] + ops_ + so[1] + [f"v_accvgpr_write_b32 a{196+i}, v{40+i}" for i in range(6)] + ["v_accvgpr_write_b32 a252, v50"]
        wosw = [f"v_accvgpr_read_b32 v{V_T2}, a252", f"s_mov_b64 s[8:9], s[{pWo}:{pWo+1}]", f"s_mov_b32 s10, {4096*896}"]
        if o['apf']:
            fill += ["s_mul_i32 s39, s2, 7168", "s_cmp_eq_u32 s3, 1", "s_cselect_b32 s36, 1835008, 0", "s_add_u32 s39, s39, s36",
                     f"s_mov_b64 s[4:5], s[{pWo}:{pWo+1}]", "s_cmp_eq_u32 s3, 2", f"s_cmov_b64 s[4:5], s[{pAssm}:{pAssm+1}]", "s_cmp_eq_u32 s3, 3", f"s_cmov_b64 s[4:5], s[{pAq}:{pAq+1}]",
                     "s_add_u32 s4, s4, s39", "s_addc_u32 s5, s5, 0", "s_movk_i32 s6, 7168", f"s_mov_b32 s39, {(-1024*o['apf']) & 0xffffffff:#x}",
                     f"v_lshrrev_b32 v{V_T3}, 3, v0", f"v_lshlrev_b32 v{V_T3}, 20, v{V_T3}", f"v_lshl_add_u32 v{V_T3}, v0, 7, v{V_T3}"]
        a("s_add_u32 s52, s52, s70", f"s_or_b32 m0, s{S_KM}, 0x8000", "s_nop 0")
        interleave(a, fill, [(["s_bitset1_b32 m0, 12", "s_nop 0"] if j == 4 else []) + [dma(52, j)] for j in range(8)])
        def mask(qs, a=a):
            a(f"v_mov_b32 v{V_T0}, {fbits(-1e30)}")
            for kb in range(4):
                for i in range(4): a(f"v_cmp_gt_i32 s[{16+2*i}:{17+2*i}], {16*kb+i}, v{V_R}")
                for i in range(4): a(f"v_cndmask_b32 {C(kb,qs)[i]}, {NM[qs]}, v{V_T0}, s[{16+2*i}:{17+2*i}]")
        a(f"s_cmp_ge_u32 s{S_LEFT}, 2", f"s_cbranch_scc1 {name}_nomask0")
        mask(0)
        a(f"{name}_nomask0:", "v_accvgpr_read_b32 v27, a245", f"s_lshl_b32 s36, {sIDX}, 2", f"s_add_u32 s36, s36, {F_U}", f"s_cmp_lt_u32 {sJJ}, 14", "s_cselect_b32 s36, s36, 2.0",
          f"s_add_u32 s33, {sFPO}, 4", f"s_cmp_eq_u32 {sROLE}, 1", "s_cselect_b32 s33, s33, 2.0",
          "s_cmp_eq_u32 s48, 0", f"s_cbranch_scc1 {name}_kvlate", f"s_add_u32 s{S_KP}, s52, s70", f"{name}_kvok:", "s_waitcnt vmcnt(8) lgkmcnt(0)", "s_barrier")
        real = a; a = m.a = Asm()
        a(f"{name}_kvlate:", "v_cmp_gt_u32 vcc, 256, v5", "v_mov_b32 v29, 0", "s_mov_b32 s32, 0", f"s_cbranch_vccz {name}_armed",
          f"{name}_pollA:", f"global_load_dword v28, v29, s[{pDbg}:{pDbg+1}] offset:128 sc1", "s_add_u32 s32, s32, 1", "s_waitcnt vmcnt(0)", "v_cmp_gt_u32 vcc, 256, v28",
          "s_cmp_lt_u32 s32, 0x80000", "s_cselect_b64 vcc, vcc, 0", f"s_cbranch_vccnz {name}_pollA", f"{name}_armed:")
        m.poll("s58", 12, 28, 29)
        m.mark("kv_flag")
        issue(S_KM, S_KP, a); issue(S_KM, S_KP, a)
        a(f"s_branch {name}_kvok")
        late = a.L; a = m.a = real
        m.mark("att_go")
        B0 = Body(64, cyclic=False); set_qk(B0, 0)
        for n in range(8): a(fload(n))
        a("buffer_store_dword v27, v27, s[12:15], s1 offen sc1")
        a("buffer_store_dword v27, v27, s[12:15], s33 offen sc1")
        m.s1c()
        a(f"s_mov_b32 m0, s{S_VM}", "s_waitcnt lgkmcnt(0)")
        for n in range(8, 32): B0.put(2 * n - 16, 'd', fload(n), F(n))
        B0.auto_lgkm(look=2, maxcnt=15)
        for j in range(8):
            B0.put(1 + 4 * j, 'g', dma(S_VP, j))
            if j == 4: B0.put(4 * j, 's', "s_bitset1_b32 m0, 12")
        B0.put(32, 's', f"s_add_u32 s{S_VP}, s{S_VP}, s71"); B0.put(34, 's', f"s_xor_b32 s{S_VM}, s{S_VM}, 0x8000")
        rest = []; te = 0; ta = 0; epos = {}
        els = [(kb, qs, i) for kb in range(4) for qs in range(2) for i in range(4)]
        ex = lambda kb, qs, i: f"v_exp_f32 {E(kb,qs)[i]}, {S(kb,qs)[i]}"
        ad = lambda kb, qs, i: f"v_add_f32 {TS[qs]}, {E(0,qs)[0] if (kb == 0 and i == 1) else TS[qs]}, {E(kb,qs)[i]}"
        for el in els:
            try: te = B0.place(max(te, 16 * el[0] + 8 * el[1] + 13), 64, 'e', ex(*el)); epos[el] = te
            except RuntimeError: te = 64; rest.append(ex(*el))
        rest2 = []
        for el in els:
            if el[0] == 0 and el[2] == 0: continue
            try: ta = B0.place(max(ta + 1, epos.get(el, 64) + 1), 64, 'v', ad(*el))
            except RuntimeError: ta = 64; rest2.append(ad(*el))
        print("first pattern:", B0.pattern(), len(rest), len(rest2))
        a(*B0.lines())
        a(f"v_xor_b32 v{V_KA}, 0x8000, v{V_KA}", "s_waitcnt vmcnt(8)", "s_barrier")
        for n in range(L // 2): a(fload(n))
        a("buffer_store_dword v27, v27, s[12:15], s36 offen sc1")
        a(*rest); a(*rest2)
        a(f"{name}_first:", f"v_add_f32 v{V_T0}, {TS[0]}, {TS[1]}", f"v_min_f32 v{V_T1}, {TS[0]}, {TS[1]}", f"v_cmp_nge_f32 vcc, s{S_BIG}, v{V_T0}",
          f"s_mov_b32 s{S_FLOOR}, 0xff800000", f"s_cbranch_vccnz {name}_slow2", f"v_cmp_gt_f32 vcc, {fbits(2.0**-24)}, v{V_T1}", f"s_cbranch_vccnz {name}_rowchk",
          f"{name}_firstok:", f"s_mov_b32 s{S_FLOOR}, 0", "s_waitcnt lgkmcnt(0)", f"s_branch {name}_ret")
        a(*late)
        a(f"{name}_rowchk:", f"v_mov_b32 v16, {TS[0]}", f"v_mov_b32 v17, {TS[1]}")
        for sw in ("v_permlane32_swap_b32", "v_permlane16_swap_b32"):
            a("v_mov_b32 v18, v16", "v_mov_b32 v19, v17", "s_nop 0", f"{sw} v16, v18", f"{sw} v17, v19", "s_nop 0", "v_add_f32 v16, v16, v18", "v_add_f32 v17, v17, v19")
        a("v_min_f32 v16, v16, v17", f"v_cmp_gt_f32 vcc, {fbits(2.0**-24)}, v16", f"s_cbranch_vccz {name}_firstok", f"s_branch {name}_slow2")
        a(f"{name}_slow:", f"s_cmp_lg_u32 s{S_BIG}, {BIG}", f"s_cbranch_scc1 {name}_switched", "s_nop 5", f"{name}_slow2:")
        for qs in range(2):
            mx, t = f"v{V_T0+qs}", "v16"
            el = [S(kb, qs)[i] for kb in range(4) for i in range(4)]
            a(f"v_max3_f32 {mx}, {el[0]}, {el[1]}, {el[2]}")
            for k in range(3, 15, 2): a(f"v_max3_f32 {mx}, {mx}, {el[k]}, {el[k+1]}")
            a(f"v_max_f32 {mx}, {mx}, {el[15]}")
            for sw in ("v_permlane32_swap_b32", "v_permlane16_swap_b32"):
                a(f"v_mov_b32 {t}, {mx}", "s_nop 1", f"{sw} {mx}, {t}", "s_nop 1", f"v_max_f32 {mx}, {mx}, {t}")
            a(f"v_max_f32 {mx}, s{S_FLOOR}, {mx}", f"v_sub_f32 {NM[qs]}, {NM[qs]}, {mx}")
            for e in el: a(f"v_sub_f32 {e}, {e}, {mx}")
            for kb in range(4):
                for i in range(4): a(f"v_exp_f32 {E(kb,qs)[i]}, {S(kb,qs)[i]}", f"v_mov_b32 {C(kb,qs)[i]}, {NM[qs]}")
            ee = [E(kb, qs)[i] for kb in range(4) for i in range(4)]
            a(f"v_add_f32 {TS[qs]}, {ee[0]}, {ee[1]}")
            for k in range(2, 16): a(f"v_add_f32 {TS[qs]}, {TS[qs]}, {ee[k]}")
        a("s_waitcnt lgkmcnt(0)", f"s_cmp_lg_u32 s{S_FLOOR}, 0", f"s_mov_b32 s{S_FLOOR}, 0", f"s_cbranch_scc1 {name}_ret")
        for qs in range(2):
            f = f"v{V_T0+qs}"
            a(f"v_exp_f32 {f}, -{f}", "s_nop 0", f"v_mul_f32 {LS[qs]}, {LS[qs]}, {f}")
            for db in range(16):
                for i in range(4): a(f"v_mul_f32 {O(db,qs)[i]}, {O(db,qs)[i]}, {f}")
        a(f"s_branch {name}_ret")
        B = AT.main_body(name, L, kg=o['kg'], vg=o['vg'], look=o['look'], down=((66, 67, 70), (68, 69, 71)), kgen=(V_T2, 39, 76, 77), tstride=m.TS,
                         pfslot=(45, f"buffer_load_dword a243, v{V_T3}, s[4:7], s39 offen", "s_add_u32 s39, s39, 1024") if o['apf'] else None, pollslot=(o['pgap'], f"buffer_load_dword a246, v{V_T3}, s[12:15], {sFQ} offen sc1"))
        for i in range(B.n): B.vec[i] = [(k, t.replace(" lds", f" {o['afl']} lds") if k == 'g' else t, d, s_) for k, t, d, s_ in B.vec[i]]
        ab = o.get('aabl', '')
        for i in range(B.n):
            B.vec[i] = [it for it in B.vec[i] if it[0] not in ab]
            if 'b' in ab: B.pre[i] = [x for x in B.pre[i] if x != "s_barrier"]
            if 'w' in ab: B.pre[i] = [x for x in B.pre[i] if not x.startswith("s_waitcnt lgkm")]
        print("attn pattern:", B.pattern()); print("over:", B.report())
        a(".p2align 6", f"{name}_loop:")
        a(*B.lines())
        a(f"{name}_ret:", f"s_cmp_gt_u32 s{S_LEFT}, s{S_THR}", f"s_cbranch_scc1 {name}_loop")
        a(f"s_cmp_eq_u32 s{S_LEFT}, 0", f"s_cbranch_scc1 {name}_segend", f"s_cmp_eq_u32 s{S_LEFT}, 1", f"s_cbranch_scc1 {name}_d1")
        a(f"s_cmp_eq_u32 s{S_LEFT}, 2", f"s_cbranch_scc1 {name}_d0")
        a("s_waitcnt vmcnt(0)")
        m.acheck(sFQ, 12, 246, V_T0, V_T1)
        a(f"s_mov_b32 {sFQ}, {sFPO}", f"v_mov_b32 v{V_T3}, 0", f"s_mov_b32 s{S_THR}, 2", f"s_branch {name}_loop", f"{name}_d0:")
        real = a; a = Asm(); qload("s58", 128, a); ql = a.L; a = real
        t0 = Asm(); mask(0, t0)
        a(f"v_accvgpr_read_b32 v{V_T1}, a246", f"s_cmp_eq_u32 {sMODE}, 0", f"s_cselect_b32 s57, {sNB}, 0", f"v_readfirstlane_b32 s58, v{V_T1}", "s_cmp_eq_u32 s57, 0", f"s_cbranch_scc1 {name}_d0{'a' if o['fa'] else 'm'}")
        if o['qsplit']:
            a("s_cmp_lg_u32 s58, 0", f"s_cbranch_scc1 {name}_d0m", "s_mov_b32 s51, 1", "s_lshl_b32 s58, s2, 2")
            a(*ql[:4]); interleave(a, t0.L, [[x] for x in ql[4:12]]); a("s_nop 0", f"s_branch {name}_loop")
        a(f"{name}_d0m:"); a(*t0.L); a("s_nop 0", f"s_branch {name}_loop")
        poadr = ["s_and_b32 s55, s2, 127", "s_lshl_b32 s57, s55, 2", "s_add_u32 s57, s57, s3", f"s_mul_i32 s55, s57, {m.IS}", f"s_add_u32 s55, s55, {WS_PO}", "s_lshl_b32 s57, s57, 10", f"s_add_u32 s57, s57, {WS_PL}"]
        PA = lambda qs, s: Reg('a', 128 + (qs * 8 + s) * 4, 4)
        pal = lambda qs, s: f"buffer_load_dwordx4 {PA(qs,s)}, v{V_D0 if s < 4 else V_D1}, s[12:15], s{55+qs} offen offset:{(s%4)*1024} sc1"
        if o['fa']:
            def look(no, wait):
                if o['fab']: a(f"s_cmp_eq_u32 {sNB}, 0", f"s_cselect_b32 s55, 1, {sROLE}", "s_cmp_eq_u32 s55, 0", f"s_cbranch_scc1 {no}")
                else: a(f"s_cmp_eq_u32 {sROLE}, 0", f"s_cbranch_scc1 {no}")
                if wait: a("s_waitcnt vmcnt(0)", f"v_accvgpr_read_b32 v{V_T1}, a246", "s_nop 0", f"v_readfirstlane_b32 s58, v{V_T1}")
                a(*poadr); a(f"s_cmp_eq_u32 {sNB}, 0", "s_cmov_b32 s58, 0", "s_cmov_b32 s55, 2.0", "s_cmov_b32 s57, 2.0", "s_cmp_lg_u32 s58, 0", f"s_cbranch_scc1 {no}", "s_mov_b32 s51, 2", "s_add_u32 s56, s55, 0x2000")
            half0 = [f"buffer_load_dwordx4 a[192:195], v{V_L16}, s[12:15], s57 offen sc1"] + [pal(0, s) for s in range(8)]
            a(f"{name}_d0a:"); look(f"{name}_d0m", o['d0wait'])
            interleave(a, t0.L, [[x] for x in half0])
            a("s_nop 0", f"s_branch {name}_loop")
        t = Asm(); mask(1, t); t(f"s_mov_b32 s16, {fbits(-1e30)}", "s_mov_b32 s17, s16")
        for kb in range(4):
            for i in (0, 2): t(f"v_mov_b64 {C(kb,0)[i:i+2]}, s[16:17]")
        if o['zq']:
            for i in range(32): t.L.insert(0, f"v_accvgpr_write_b32 a{i}, 0")
        a(f"{name}_d1:")
        if o['fa']:
            a("s_cmp_eq_u32 s51, 2", f"s_cbranch_scc1 {name}_fa")
            look(f"{name}_d1g", 1); a(*half0); a(f"s_branch {name}_fa1", f"{name}_d1g:")
        a(f"s_cmp_eq_u32 {sMODE}, 0", f"s_cselect_b32 s57, {sNB}, 0", "s_cmp_lg_u32 s57, 0", f"s_cbranch_scc1 {name}_d1q",
          f"s_cmp_eq_u32 {sMODE}, 1", f"s_cbranch_scc1 {name}_last")
        a(*t.L)
        a(f"{name}_last:")
        m.apoll(sFU, 32, 247, V_T0)
        a(*wosw)
        a(f"s_mov_b32 s{S_KP}, s78", f"s_add_u32 s{S_KM}, {sW8K}, {m.OPR[0]}", "s_movk_i32 s76, 6144", "s_movk_i32 s77, 10240", f"s_branch {name}_loop")
        a(f"{name}_d1q:", f"s_mov_b32 s{S_KP}, {sHB}", "s_lshl_b32 s58, s2, 2"); a(*ql[:4])
        a("s_cmp_eq_u32 s51, 1", f"s_cbranch_scc1 {name}_d1r", "s_waitcnt vmcnt(0)")
        m.acheck(sFQ, 1, 246, V_T0, V_T1)
        a(*ql[4:12]); a(f"{name}_d1r:")
        interleave(a, t.L, [[x] for x in ql[12:]])
        a("s_nop 0", f"s_branch {name}_loop")
        a(f"{name}_segend:")
        if o['fa']: a("s_cmp_eq_u32 s51, 2", f"s_cbranch_scc1 {name}_fa2")
        a(f"s_cmp_eq_u32 {sMODE}, 0", f"s_cselect_b32 s57, {sNB}, 0", "s_cmp_eq_u32 s57, 0", f"s_cbranch_scc1 {name}_tail")
        for i in range(64): a(f"v_accvgpr_mov_b32 a{i}, a{128+i}")
        for i in range(96, 128, 2): a(f"v_mov_b64 v[{i}:{i+1}], 0")
        a(f"s_add_u32 s{S_VP}, {sHB}, {m.VB}", f"s_mov_b32 s{S_LEFT}, {sNB}", f"s_mov_b32 s{S_THR}, 1", f"s_mov_b32 s{S_BIG}, -1.0", "s_cmp_eq_u32 s57, 1", f"s_cbranch_scc1 {name}_last", f"s_branch {name}_loop")
        def lsum_ops(t):
            out = []
            for sw in ("v_permlane32_swap_b32", "v_permlane16_swap_b32"):
                out.append([f"v_mov_b32 v{t+qs}, {LS[qs]}" for qs in range(2)])
                out.append([f"{sw} {LS[qs]}, v{t+qs}" for qs in range(2)])
                out.append([f"v_add_f32 {LS[qs]}, {LS[qs]}, v{t+qs}" for qs in range(2)])
            return out
        sel = lambda qs: "op_sel:[0,0] op_sel_hi:[1,0]" if qs == 0 else "op_sel:[0,1] op_sel_hi:[1,1]"
        def pack(qs, s):
            r = Reg('v', O(2 * s, qs).lo, 8)
            a(*[f"v_cvt_pk_bf16_f32 {r[i]}, {r[2*i]}, {r[2*i+1]}" for i in range(4)])
            return r[0:4]
        def scale(fr, after):
            for qs in range(2):
                for s in range(8):
                    r = Reg('v', O(2 * s, qs).lo, 8)
                    for i in range(4): a(f"v_pk_mul_f32 {r[2*i:2*i+2]}, {r[2*i:2*i+2]}, v[{fr}:{fr+1}] {sel(qs)}")
                    after(qs, s, pack(qs, s))
        cv = lambda qs, s: [f"v_cvt_pk_bf16_f32 v{O(2*s,qs).lo+i}, v{O(2*s,qs).lo+2*i}, v{O(2*s,qs).lo+2*i+1}" for i in range(4)]
        a(f"{name}_switched:")
        m.mark("seg1_end")
        for grp in lsum_ops(18): a(*grp); a("s_nop 0")
        for qs in range(2): a(f"v_rcp_f32 v{16+qs}, {LS[qs]}")
        a(f"s_mov_b32 s{S_BIG}, {BIG}", f"s_mov_b32 {sMODE}, 1")
        for qs in range(2):
            a(f"v_accvgpr_write_b32 a{250+qs}, v{16+qs}")
            for s in range(8): a(*cv(qs, s)); a(*[f"v_accvgpr_write_b32 a{128+(qs*8+s)*4+i}, {O(2*s,qs)[i]}" for i in range(4)])
        for i in range(128, 256, 2): a(f"v_mov_b64 v[{i}:{i+1}], 0")
        for r in LS + NM: a(f"v_mov_b32 {r}, 0")
        m.mark("seg1_fin")
        a(f"s_branch {name}_first")
        if o['fa']:
            FB = Body(160, cyclic=False); R16 = lambda f: F(f % 16); first = {}; last = {}; sdone = {}; odone = {}
            SELA = [Reg('a', 198, 4), Reg('a', 196, 4)]
            def M(n, d, f, b, c):
                FB.set_mfma(n, d, R16(f) if isinstance(f, int) else f, b, c)
                if isinstance(f, int): first.setdefault(f, n); last[f] = n
            ltx = {}
            for kb in range(4):
                for s in range(8):
                    M(24 * kb + s, S(kb, 1), 16 * kb + s, Q(1, s), C(kb, 1) if s == 0 else S(kb, 1)); ltx[16 * kb + s] = f"v{V_KA} offset:{(8*kb+s)*1024}"
                sdone[kb] = 24 * kb + 7
                for d4 in range(4):
                    db = 4 * kb + d4
                    for k, (ks, qs) in enumerate(((0, 0), (1, 0), (1, 1), (0, 1))):
                        M(24 * kb + 8 + 4 * d4 + k, O(db, qs), 16 * kb + 8 + 2 * d4 + ks, P(ks, qs), O(db, qs)); ltx[16 * kb + 8 + 2 * d4 + ks] = f"v{V_VA} offset:{(ks*16+db)*1024}"
            for db in range(16):
                M(96 + db, O(db, 0), SELA[db % 2], PA(0, db // 2), O(db, 0)); odone[db, 0] = 96 + db
                for ks in range(2): M(112 + 3 * db + ks, O(db, 1), 64 + 2 * db + ks, P(ks, 1), O(db, 1)); ltx[64 + 2 * db + ks] = f"v{V_VA} offset:{(ks*16+db)*1024}"
                M(114 + 3 * db, O(db, 1), SELA[db % 2], PA(1, db // 2), O(db, 1)); odone[db, 1] = 114 + 3 * db
            fl = lambda f: f"ds_read_b128 {R16(f)}, {ltx[f]}"
            t = -1; tva = 0
            for f in range(16, 96):
                t = max(t + 1 + (1 if f % 2 == 0 else 0), last[f - 16], first[f] - 22, 97 if f >= 64 else 0)
                assert t <= first[f] - 7, (f, t, first[f])
                FB.put(t, 'd', fl(f), R16(f))
                if f < 64: tva = t
            FB.put(80, 's', "s_barrier"); FB.vmwait(94, ["v"]); FB.vmwait(96, ["v", "p"]); FB.put(97, 's', "s_barrier")
            FB.auto_lgkm(look=2, maxcnt=15)
            def GF(t, txt, tag, sc=()):
                ok = lambda k: all(x.startswith("s_waitcnt") for x in FB.pre[k]) and not FB.has(k - 1, 'g') and sum(1 for q in range(max(k - 3, lastg[0] + 1), k) if not FB.pre[q]) >= len(sc)
                c = [k for k in range(t, t + 6) if ok(k)]
                c0 = [k for k in c if k < t + 2 and not FB.vec[k]]
                t = (c0 or c)[0]; FB.putg(t, txt, tag)
                fr = [q for q in range(max(t - 3, lastg[0] + 1), t) if not FB.pre[q]]
                for q, y in zip(fr[::-1], sc): FB.put(q, 's', y)
                lastg[0] = t; return t
            lastg = [-1]
            for j in range(8): GF(1 + int(3.7 * j), dma(S_VP, j), "v", {0: [f"s_mov_b32 m0, s{S_VM}"], 4: ["s_bitset1_b32 m0, 12"]}.get(j, []))
            for s in range(8): GF(1 + int(3.7 * (8 + s)), pal(1, s), "p")
            for j in range(8):
                t = GF(max(lastg[0] + 2, 1 + int(3.7 * (16 + j))), f"buffer_load_dwordx4 v{V_T2}, s[8:11], s39 offen offset:{(j%4)*1024} lds", "w",
                       [f"s_add_u32 s39, s78, {7168*j - (j%4)*1024}"] + ([f"s_add_u32 m0, {sW8K}, {m.OPR[0] + 1024*j}"] if j % 4 == 0 else []))
            assert t < 95, t
            t = 99
            for j in range(8): m0, tx = m.wo(1, j); t = GF(t, tx, "w", [m0]) + 4
            FB.place(t - 3, 160, 'v', m.woadv)
            FB.place(tva, 95, 'v', f"v_xor_b32 v{V_VA}, 0x8000, v{V_VA}")
            te = 0; ta = 0
            for kb in range(4):
                for i in range(4):
                    te = max(te + 1, sdone[kb] + 5)
                    free = [k for k in range(te, min(te + 3, 90)) if FB.fits(k, 'e')]
                    if free: te = free[0]
                    else:
                        while FB.has(te, 'g') or FB.has(te, 'v') or FB.has(te, 'e'): te += 1
                    FB.put(te, 'e', ex(kb, 1, i))
                    if kb or i: ta = FB.place(max(ta, te) + 1, 95, 'v', ad(kb, 1, i))
            FB.place(ta + 1, 96, 'v', f"v_cmp_nge_f32 vcc, s{S_BIG}, {TS[1]}")
            tm = Asm(); mask(1, tm); tq = 0
            for k, x in enumerate(tm.L[9:]):
                tq = FB.place(tq + (1 if k % 4 == 0 else 0), 24 * (k // 8 + 1) - 2, 'v', x)
            RL = 64; ST = Reg('v', 32, 4); tv = 96
            for x in [c for k, c in enumerate(cvts()) if (k // 2) % 2 == 1] + [f"v_add_f32 {LS[1]}, {LS[1]}, {TS[1]}"]: tv = FB.place(tv, 110, 'v', x)
            tl = tv
            for grp in lsum_ops(40) + [[f"v_add_f32 {LS[q]}, {LS[q]}, {ST[q]}" for q in range(2)]]:
                tl += 2
                for x in grp: tl = FB.place(tl, 160, 'v', x)
            restf = [f"v_rcp_f32 v{RL+q}, {LS[q]}" for q in range(2)]
            for qs in range(2):
                for s in range(8):
                    tv = max(tv, odone[2 * s + 1, qs] + 5)
                    for x in cv(qs, s):
                        try:
                            if len(restf) > 2: raise RuntimeError
                            tv = FB.place(tv, 160, 'v', x)
                        except RuntimeError: restf.append(x)
            FB.resolve_vm()
            print("fa pattern:", FB.pattern(), len(FB.report()), len(restf))
            a(f"{name}_fa:", "s_waitcnt vmcnt(1)", f"{name}_fa1:"); a(*tm.L[:9]); a("s_barrier")
            if o['fab']: m.apoll(sFU, 32, 247, V_T1)
            for f in range(8, 16): a(fl(f))
            a(*cvts()); a(*[f"v_add_f32 {LS[q]}, {LS[q]}, {TS[q]}" for q in range(2)])
            a(*wosw); a(f"s_mul_i32 s58, s3, {56*896}", "s_sub_u32 s58, 128, s58", f"s_mov_b32 s{S_LEFT}, 0", "s_waitcnt lgkmcnt(0)")
            a(*FB.lines(0, 96)); a(f"s_cbranch_vccnz {name}_slow")
            a(f"{name}_fa2:"); m.mark("tail_go")
            a(*[f"v_accvgpr_read_b32 {ST[i]}, a{192+i}" for i in range(4)])
            a(f"v_add_u32 v2, s58, v{V_T2}", f"v_cmp_neq_f32 vcc, {ST[2]}, {NM[0]}", f"v_cmp_neq_f32 s[20:21], {ST[3]}, {NM[1]}", "s_or_b64 vcc, vcc, s[20:21]",
              f"s_cmp_eq_u32 {sNB}, 0", "s_cselect_b64 vcc, 0, vcc", f"s_cbranch_vccnz {name}_fagen")
            a(*FB.lines(96, 160)); m.mark("tail_end"); a("s_nop 1"); a(*restf)
            a("s_waitcnt vmcnt(0)", f"s_cmp_lg_u32 {sROLE}, 0", f"s_cbranch_scc1 {name}_attdone", "s_mov_b32 s59, 2.0", f"s_cmp_eq_u32 {sSSM}, 0", f"s_cbranch_scc1 {name}_t1park")
            m.acheck(sFU, 32, 247, V_T0, V_T1)
            a(f"s_branch {name}_t1park")
            a(f"{name}_fagen:", f"v_mov_b32 {TS[0]}, 0")
            for kb in range(4): a(*[f"v_mov_b32 {E(kb,0)[i]}, 0" for i in range(4)])
        a(f"{name}_tail:"); m.mark("tail_go")
        a(*poadr)
        a(f"s_mul_i32 s58, s3, {56*896}", "s_sub_u32 s58, 128, s58", f"v_add_u32 v2, s58, v{V_T2}")
        a(*cvts())
        for q in range(2): a(f"v_add_f32 {LS[q]}, {LS[q]}, {TS[q]}")
        a("s_waitcnt vmcnt(0) lgkmcnt(0)", "s_barrier")
        for n in range(32, 40): a(fload(n))
        RL = 64; ST = Reg('v', 68, 4)
        def tail_body():
            BT = Body(64, cyclic=False); set_pv(BT, 0)
            for n in range(40, 64): BT.put(2 * (n - 32) - 16, 'd', fload(n), F(n))
            BT.auto_lgkm(look=2, maxcnt=15)
            return BT
        def put_lsum(BT):
            t = 3
            for grp in lsum_ops(72):
                for x in grp: BT.put(t, 'v', x)
                t += 4
            return t
        poa = lambda qs, s: f"v{V_D0 if s < 4 else V_D1}, s[12:15], s{55+qs} offen offset:{(s%4)*1024} sc1"
        a(f"s_cmp_lg_u32 {sNB}, 0", f"s_cselect_b32 s58, {sMODE}, 0", "s_cmp_eq_u32 s58, 2", f"s_cbranch_scc1 {name}_tail2")
        a(f"s_cmp_eq_u32 {sSSM}, 0", f"s_cbranch_scc1 {name}_nou")
        m.acheck(sFU, 32, 247, V_T0, V_T1)
        a(f"{name}_nou:", f"s_cmp_eq_u32 {sMODE}, 1", "s_cselect_b32 s55, s55, 2.0", "s_cselect_b32 s57, s57, 2.0", f"s_cselect_b32 s59, {sFPO}, 2.0", "s_add_u32 s56, s55, 0x2000", "s_waitcnt lgkmcnt(0)")
        BT = tail_body()
        for j in range(8):
            gp = (1, 5, 9, 11, 13, 17, 19, 21)[j] if o['t1fast'] else 4 * j + 1
            m0, tx = m.wo(1, j); BT.put(gp, 'g', tx); BT.put(gp - 1, 's', m0)
        BT.put(22 if o['t1fast'] else 30, 'v', m.woadv)
        if o['t1fast']:
            for grp, gp in zip(lsum_ops(72), ((0, 2), (3, 3), (6, 7), (8, 10), (14, 15), (18, 20))):
                for x, k in zip(grp, gp): BT.put(k, 'v', x)
        else: put_lsum(BT)
        rest = []; tv = 0; tg = 25 if o['t1fast'] else 33
        for s in range(8):
            for qs in range(2):
                tv = max(tv, 8 * s + 15); sto = f"buffer_store_dwordx4 {O(2*s,qs)}, {poa(qs,s)}"
                slots = [k for k in range(min(tv, 64), 64) if k % 4 != 1 for _ in range(max(0, 2 - BT.vcost(k)))]
                if len(slots) >= 4 and not any(x.startswith("v_") for x in rest):
                    for x, k in zip(cv(qs, s), slots): BT.put(k, 'v', x); tv = k
                    while tg <= tv: tg += 4
                    if tg < 64: BT.put(tg, 'g', sto); tg += 4
                    else: rest.append(sto)
                else: rest += cv(qs, s) + [sto]
        print("tail1pv pattern:", BT.pattern(), len(rest))
        a(*BT.lines())
        m.mark("tail_end")
        a(f"v_mov_b32 {ST[0]}, {LS[0]}", f"v_mov_b32 {ST[1]}, {LS[1]}", f"v_mov_b32 {ST[2]}, {NM[0]}", f"v_mov_b32 {ST[3]}, {NM[1]}")
        for qs in range(2): a(f"v_rcp_f32 v{RL+qs}, {LS[qs]}")
        a(*[x for x in rest if x.startswith("v_")])
        m.po_rest = [f"buffer_store_dwordx4 {ST}, v{V_L16}, s[12:15], s57 offen sc1"] + [x.replace(f"v{V_D1},", "v3,") for x in rest if x.startswith("buffer_")]
        nin = 17 - len(m.po_rest)
        a(f"s_waitcnt vmcnt({nin})", f"s_cmp_lg_u32 {sROLE}, 0", f"s_cbranch_scc1 {name}_attdone", f"v_mov_b32 v3, v{V_D1}", f"s_cmp_eq_u32 {sMODE}, 1", f"s_cbranch_scc0 {name}_t1park")
        for qs in range(2): a(f"v_accvgpr_read_b32 v{RL+qs}, a{250+qs}")
        a(f"s_branch {name}_opB", f"{name}_t1park:")
        for s in range(8):
            for qs in range(2): a(*[f"v_accvgpr_write_b32 a{128+(qs*8+s)*4+i}, {O(2*s,qs)[i]}" for i in range(4)])
        a(f"s_branch {name}_opB")
        PB = lambda qs, s: Reg('v', (96 if qs else 32) + s * 4, 4)
        pol = [f"buffer_load_dwordx4 {ST}, v{V_L16}, s[12:15], s57 offen sc1"] + [f"buffer_load_dwordx4 {PB(qs,s)}, {poa(qs,s)}" for s in range(8) for qs in range(2)]
        a(f"{name}_tail2:", f"v_accvgpr_read_b32 v{V_T0}, a246", "s_mov_b32 s52, s55", "s_mov_b32 s53, s57", f"v_readfirstlane_b32 s58, v{V_T0}", "s_mov_b32 s59, 2.0", "s_nop 1",
          "s_cmp_eq_u32 s58, 0", "s_cselect_b32 s55, s55, 2.0", "s_cselect_b32 s57, s57, 2.0", "s_add_u32 s56, s55, 0x2000", pol[0], "s_waitcnt lgkmcnt(0)")
        BT = tail_body()
        for k in range(16): BT.put(max(4 * k - 3, 0) if k else 63, 'g', pol[k if k else 16])
        t = put_lsum(BT)
        print("tail2pv pattern:", BT.pattern())
        a(*BT.lines())
        m.mark("tail_end")
        a("s_cmp_eq_u32 s58, 0", f"s_cbranch_scc1 {name}_merge2")
        m.poll(sFPO, 1, V_T0, V_T1)
        m.mark("po_flag")
        a("s_mov_b32 s55, s52", "s_mov_b32 s57, s53", "s_add_u32 s56, s55, 0x2000"); a(*pol)
        a(f"{name}_merge2:", "s_waitcnt vmcnt(14)", f"v_cmp_neq_f32 vcc, {ST[2]}, {NM[0]}", f"v_cmp_neq_f32 s[20:21], {ST[3]}, {NM[1]}", "s_or_b64 vcc, vcc, s[20:21]", f"s_cbranch_vccnz {name}_mslow")
        BM = Body(32, cyclic=False); SEL = [Reg('a', 198, 4), Reg('a', 196, 4)]
        for s in range(8):
            for qs in range(2):
                for e in range(2): BM.set_mfma(4 * s + 2 * qs + e, O(2 * s + e, qs), SEL[e], PB(qs, s), O(2 * s + e, qs))
        for j in range(8):
            m0, tx = m.wo(1, j); BM.put(4 * j + 1, 'g', tx); BM.put(4 * j, 's', m0)
            if j < 7: BM.put(4 * j + 3, 's', f"s_waitcnt vmcnt({14 - 2*(j+1) + j + 1})")
        for qs in range(2): BM.put(0, 'v', f"v_add_f32 {LS[qs]}, {LS[qs]}, {ST[qs]}"); BM.put(2 + qs, 'e', f"v_rcp_f32 v{RL+qs}, {LS[qs]}")
        rest = []; tv = 0
        for s in range(8):
            for qs in range(2):
                tv = max(tv, 4 * s + 2 * qs + 6)
                for x in cv(qs, s):
                    try:
                        if rest: raise RuntimeError
                        tv = BM.place(tv, 32, 'v', x)
                    except RuntimeError: rest.append(x)
        print("merge pattern:", BM.pattern(), len(rest))
        a(*BM.lines()); a(m.woadv); a(*rest)
        a("s_waitcnt vmcnt(0)", f"s_branch {name}_attdone")
        a(f"{name}_mslow:")
        for j in range(8): a(m.wo(1, j)[0], "s_nop 0", m.wo(1, j)[1])
        a(m.woadv, "s_mov_b32 s58, 0xffff0000", "s_waitcnt vmcnt(0)")
        for qs in range(2):
            a(f"v_min_f32 v20, {ST[2+qs]}, {NM[qs]}", f"v_sub_f32 v21, v20, {NM[qs]}", f"v_sub_f32 v22, v20, {ST[2+qs]}", f"v_exp_f32 v{16+qs}, v21", f"v_exp_f32 v{18+qs}, v22", "s_nop 0",
              f"v_mul_f32 {LS[qs]}, {LS[qs]}, v{16+qs}", f"v_fmac_f32 {LS[qs]}, {ST[qs]}, v{18+qs}", f"v_rcp_f32 v{RL+qs}, {LS[qs]}")
        for qs in range(2):
            sel3 = "op_sel:[0,0,0] op_sel_hi:[1,0,1]" if qs == 0 else "op_sel:[0,1,0] op_sel_hi:[1,1,1]"
            for s in range(8):
                r = Reg('v', O(2 * s, qs).lo, 8)
                for k in range(4):
                    pb = PB(qs, s)[k]; t = Reg('v', 24 + 2 * k, 2)
                    a(f"v_lshlrev_b32 {t[0]}, 16, {pb}", f"v_and_b32 {t[1]}, s58, {pb}", f"v_pk_mul_f32 {t}, {t}, v[18:19] {sel(qs)}",
                      f"v_pk_fma_f32 {r[2*k:2*k+2]}, {r[2*k:2*k+2]}, v[16:17], {t} {sel3}")
                a(*cv(qs, s))
        a(f"{name}_attdone:")

    OPR = [0x20000, 0, 0x8000, 0x10000, 0x18000, 0x20000, 0]
    def op_setup(m, v, t):
        a = m.a
        a(f"v_lshrrev_b32 v{t}, 3, v0", "s_lshl_b32 s78, s3, 6", f"v_add_u32 v{v}, s78, v{t}", f"v_mul_u32_u24 v{v}, 896, v{v}", f"v_and_b32 v{t}, 6, v{t}", f"v_xor_b32 v{t}, v{t}, v0", f"v_and_b32 v{t}, 7, v{t}",
          f"v_lshl_add_u32 v{v}, v{t}, 4, v{v}", f"s_mul_i32 s78, {sH}, {256*896}")
        for j in range(1, 8): a(f"s_add_u32 s{78+j}, s78, {32*896*j}")
        srd(a, 8, pWo, 4096 * 896)
    def wo(m, c, j, v=2): return (f"s_add_u32 m0, {sW1K}, {m.OPR[c] + j*4096}", f"buffer_load_dwordx4 v{v}, s[8:11], s{78+j} offen lds")
    woadv = "v_add_u32 v2, 128, v2"
    def red_addr(m):
        return [f"s_lshl_b32 s44, {sX}, 7", f"s_add_u32 s44, s44, {F_CTX}", f"s_lshl_b32 s40, {sX}, 1", f"s_and_b32 s41, {sJJ}, 1", "s_add_u32 s40, s40, s41", f"s_lshr_b32 s41, {sJJ}, 1",
                "s_lshl_b32 s42, s40, 2", "s_add_u32 s42, s42, s3", f"s_mul_i32 s37, s42, {14*m.PS}", f"s_mul_i32 s43, s41, {m.PS}", "s_add_u32 s37, s37, s43", f"s_add_u32 s37, s37, {WS_PP}"]
    def oproj(m, role):
        a, name, o = m.a, m.n, m.o
        LO = o['LO']; VFL = 9
        m.mark("att_fin")
        a("v_lshrrev_b32 v8, 2, v0", "v_lshlrev_b32 v4, 7, v8", "v_bfe_u32 v8, v8, 1, 2", "v_lshl_add_u32 v4, v8, 5, v4", "v_and_b32 v8, 3, v0", "v_lshl_add_u32 v4, v8, 3, v4", f"v_add_u32 v4, {m.OPR[0]}, v4",
          "s_barrier")
        ring = lambda f: Reg('a', 4 * (f % 16), 4)
        CF = (lambda qs, s: O(2 * s, qs)) if role else (lambda qs, s: Reg('a', 128 + (qs * 8 + s) * 4, 4))
        AC = lambda mb, qs: Reg('v', 72 + ((mb // 2) % 3) * 16 + qs * 8 + (mb % 2) * 4, 4)
        H = 16; N = H + 448; B = Body(N, cyclic=False)
        for k in range(H): B.m[k] = ("s_nop 0", set(), set())
        n = H; done = {}
        for mb in range(28):
            for qs in range(2):
                for s in range(8): B.set_mfma(n, AC(mb, qs), ring(8 * mb + s), CF(qs, s), 0 if s == 0 else AC(mb, qs)); n += 1
                done[mb, qs] = n - 1
            c = mb // 4
            for s in range(8):
                for e in range(2):
                    B.put(H + 2 * (8 * mb + s) - LO + e, 'd', f"ds_read_b64_tr_b16 {ring(8*mb+s)[2*e:2*e+2]}, v{4 + mb%4} offset:{(m.OPR[c] & 0x8000) + s*4096 + e*2048}", ring(8 * mb + s)[2*e:2*e+2])
        cs = lambda c: H + 64 * c - LO
        def bar(pos, tags=None, lg=None):
            if tags: B.vmwait(pos - 1, tags)
            if lg is not None: B.put(pos - 1, 's', f"s_waitcnt lgkmcnt({lg})")
            B.put(pos, 's', "s_barrier")
        pub = H + o['oppub']
        if not role: bar(pub, ["po"]); bar(cs(5) + 10, lg=9)
        SM = o['opsm']
        if SM:
            for c in range(2, 7): bar(cs(c) - 1, [f"w{c}"] + (["p0"] if role and c == o['opc0'] and not o['shb'] else []) + (["st0"] if c == 5 else []))
        else: bar(cs(2) - 1, ["w2"]); bar(cs(2) + 10, lg=9); bar(cs(3) - 1, ["w3", "w4"] + (["p0"] if role else [])); bar(cs(5) - 1, ["w5", "w6", "st0"])
        B.auto_lgkm(look=3, maxcnt=15)
        def gfree(t): return not B.has(t, 'g') and not any(k in 've' for k, *_ in B.vec[t]) and all(x.startswith("s_waitcnt") for x in B.pre[t]) and len(B.pre[t]) <= 1
        def G1(t, txt, tag, sc=None):
            while not (gfree(t) and not B.has(t - 1, 'g') and not (t + 1 < N and B.has(t + 1, 'g')) and (sc is None or not B.pre[t - 1] or (not B.pre[t - 2] and not B.has(t - 2, 'g')))): t += 1
            B.putg(t, txt, tag)
            if sc: B.put(t - 1 if not B.pre[t - 1] else t - 2, 's', sc)
            return t
        def S1(t, txt):
            while B.pre[t] or B.has(t, 'g'): t += 1
            B.put(t, 's', txt); return t
        for c in range(1, 7):
            dx = (m.OPR[c] ^ m.OPR[c - 1]) & ~0x8000
            if dx:
                for mb in range(4): B.place(cs(c) + 16 * mb - 12, cs(c) + 16 * mb, 'v', f"v_xor_b32 v{4+mb}, {dx:#x}, v{4+mb}", back=True)
        G1(cs(5), f"buffer_store_dword v{VFL}, v{VFL}, s[12:15], {sFCTX} offen offset:64 sc1", "fl")
        t = H
        if not role:
            for x in m.po_rest: t = G1(t, x, "po") + 3
            assert t < pub
            tt = G1(pub + 1, f"buffer_store_dword v{VFL}, v{VFL}, s[12:15], s59 offen sc1", "fl")
            if o['popf']:
                B.place(H, pub, 'v', "v_lshlrev_b32 v14, 7, v0")
                for qs in range(2): tt = G1(tt + 2, f"buffer_load_dword v15, v14, s[12:15], s{55+qs} offen sc1", "pf")
        else:
            if not o['shb2']: G1(N - o['oplead'], "buffer_load_dword v12, v10, s[12:15], s44 offen sc1", "p1")
            for h, cb in (() if o['shb'] else ((0, o['opc0'] if SM else 3),)):
                G1(cs(cb) - o['oplead'], f"buffer_load_dword v11, v10, s[12:15], s44 offen offset:{64*(1-h)} sc1", f"p{h}")
                tt = B.place(cs(cb), N, 'v', "v_cmp_ne_u32 vcc, 0, v11") + 1
                while B.pre[tt] or B.has(tt, 'g') or B.has(tt, 'v'): tt += 1
                for x in ("s_cmp_eq_u64 vcc, s[52:53]", f"s_cselect_b32 s{49+h}, 1, 0", f"s_cselect_b32 s51, s{37+h}, 2.0"): B.put(tt, 's', x)
                for k in range(16):
                    tt = G1(tt + (o['opr'] if k else 1), f"buffer_load_dwordx4 a[{64+64*h+4*k}:{67+64*h+4*k}], v1, s[12:15], s51 offen offset:{(k%4)*1024} sc1", "sh", "s_add_u32 s51, s51, 4096" if (k and k % 4 == 0) else None)
        t = max(t, H + 1)
        for c in range(2, 7):
            if c >= 5: t = max(t, cs(c - 3) + 1 if SM else cs(2) + 12)
            if SM: t = max(t, cs(c) - SM)
            for j in range(8): m0, tx = m.wo(c, j); t = G1(t, tx, f"w{c}", m0) + o['opw']
            t = max(t, B.place(t - o['opw'] + 1, N, 'v', m.woadv) + 1)
        if not role:
            t = max(t, cs(5) + 12)
            for m0, tx in m.s2_dmas(): t = G1(t, tx, "u", m0) + o['opw']
        rest = []
        for mp in range(14):
            for qs in range(2):
                r = Reg('v', AC(2 * mp, qs).lo, 8)
                cv = [f"v_mul_f32 {r[i]}, {r[i]}, v{64+qs}" for i in range(4, 8)] + [f"v_cvt_pk_bf16_f32 {r[i]}, {r[2*i]}, {r[2*i+1]}" for i in range(4)]
                t = done[2 * mp, qs] + 5
                for i in range(4): t = B.place(t, N, 'v', f"v_mul_f32 {r[i]}, {r[i]}, v{64+qs}")
                sto = (f"buffer_store_dwordx4 {r[0:4]}, v1, s[12:15], s58 offen {o['opfl']}", f"st{mp//7}", f"s_add_u32 s58, s48, {(qs*4*14 + mp)*m.PS + (0x40000000 if (o.get('xst', 0) >> role & 1 and mp % 2) else o['opoob'])}")
                t = max(t, done[2 * mp + 1, qs] + 5)
                if t + 12 < N:
                    for x in cv: t = B.place(t, N, 'v', x)
                    t = G1(t + 1, *sto); assert mp >= 11 or t < done[2 * mp + 6, qs] - 8, (mp, t)
                else: rest += cv + [sto[2], sto[0]]
        if not role:
            for k, tx in enumerate(m.s2_pads()): B.put(N - LO + 1 + k, 'd', tx)
        t = H + 30
        for x in m.red_addr() + [f"s_add_u32 s38, s37, {0x40000000 if o.get('xld', 0) & 1 else 7*m.PS}"]: t = S1(t, x)
        assert t < cs(3) - o['oplead'] - 2
        ops = B.resolve_vm()
        if role and not o['shb2']: m.after_p1 = len(ops) - 1 - ops.index("p1") + sum(1 for x in rest if x.startswith("buffer_"))
        if not role: m.after_u = len(ops) - 1 - max(i for i, x in enumerate(ops) if x == "u") + sum(1 for x in rest if x.startswith("buffer_"))
        print(f"op{role} pattern:", B.pattern(), len(B.report()), len(rest))
        for k in range(H): a(*[x[1] for x in B.vec[k]])
        for mb in range(1, 4): a(f"v_xor_b32 v{4+mb}, {32*mb}, v4")
        if role: a("v_and_b32 v10, 15, v0", "v_lshlrev_b32 v10, 2, v10", f"s_cmp_lt_u32 {sJJ}, 14", "s_cselect_b32 s52, 0, 1", "s_mov_b32 s53, 0")
        else: m.s2_setup()
        a(f"v_accvgpr_read_b32 v{VFL}, a245", "s_lshl_b32 s48, s63, 3", "s_add_u32 s48, s48, s3", f"s_mul_i32 s48, s48, {14*m.PS}", f"s_lshl_b32 s58, {sH}, 10", "s_add_u32 s48, s48, s58", f"s_add_u32 s48, s48, {WS_PP}")
        for k in range(H): a(*B.pre[k])
        m.mark("op_go")
        if o.get('idlerole', (9, 0))[0] == role: a(f"s_sleep {o['idlerole'][1]}")
        a(*B.lines(H, N)); a("s_nop 4"); a(*rest)
        m.mark("op_end")
        a(f"s_cmp_ge_u32 {sJJ}, 14", f"s_cbranch_scc1 {name}_idle")

    S2W, S2K = 8736, 4608
    def s2_setup(m):
        a = m.a
        a(f"s_lshl_b32 s34, {sIDX}, 2", "s_add_u32 s34, s34, s3", f"s_mul_i32 s35, s34, {m.CS}", "s_lshl_b32 s34, s34, 12", "s_cmp_eq_u32 s62, 0", "s_cmov_b32 s34, 2.0", "s_cmov_b32 s35, 2.0", f"s_add_u32 s35, s35, {WS_U}",
          f"s_mul_i32 s33, s3, {m.S2W}", "s_add_u32 s33, s33, 0x10000")
        srd(a, 4, pAssm, 448 * 4096)
        a("v_lshrrev_b32 v10, 1, v0", "v_lshlrev_b32 v10, 7, v10", "v_and_b32 v11, 1, v0", "v_lshl_add_u32 v10, v11, 4, v10",
          "v_and_b32 v11, 31, v0", "v_lshl_add_u32 v11, v11, 2, s33", "v_and_b32 v12, 7, v0", "v_lshl_add_u32 v12, v12, 2, s33", "v_mov_b32 v13, 0")
    def s2_dmas(m):
        return [(f"s_add_u32 m0, s33, {m.S2K + 32}" if k == 0 else None, f"buffer_load_dwordx4 v1, s[4:7], s34 offen offset:{1024*k} lds") for k in range(4)] + \
               [(f"s_add_u32 m0, s33, {p*1152 + 128 - 32*p}", f"buffer_load_dwordx4 v10, s[12:15], s35 offen offset:{32*p} sc1 lds") for p in range(4)]
    def sh_dmas(m):
        return [(([f"s_lshl_b32 m0, s3, 14"] if k == 0 else ["s_add_u32 m0, m0, 4096", "s_add_u32 s51, s51, 4096"]) if k % 4 == 0 else [], f"buffer_load_dwordx4 v1, s[12:15], s51 offen offset:{(k%4)*1024} sc1 lds") for k in range(16)]
    def s2_pads(m): return [f"ds_write_b32 v11, v13 offset:{p*1152}" for p in range(4)] + [f"ds_write_b32 v12, v13 offset:{m.S2K}"]
    def s2(m, setup, qloads):
        a, name, o = m.a, m.n, m.o
        KB = m.S2K + 32
        VZ, VXX, VU, VB, VY_, VONE = 16, 17, 18, 19, 20, 21
        a("v_and_b32 v22, 15, v0", "v_lshrrev_b32 v23, 4, v0", f"v_lshl_add_u32 v{VU}, v22, 3, s33", f"v_lshl_add_u32 v{VZ}, v23, 4, v{VU}", f"v_lshl_add_u32 v{VU}, v23, 1, v{VU}",
          f"v_and_b32 v{VXX}, 3, v0", "v_bfe_u32 v24, v0, 2, 2", f"v_sub_u32 v{VXX}, v{VXX}, v24", "v_lshlrev_b32 v24, 3, v23", f"v_sub_u32 v{VXX}, v{VXX}, v24", f"v_add_u32 v{VXX}, 32, v{VXX}",
          f"v_lshl_add_u32 v{VXX}, v{VXX}, 3, s33",
          f"v_lshlrev_b32 v{VY_}, 5, v22", f"v_lshl_add_u32 v{VY_}, v23, 3, v{VY_}",
          "v_add_u32 v24, -1, v0", "v_and_b32 v24, 15, v24", "v_add_u32 v24, 48, v24", f"v_add_u32 v{VB}, -16, v0", "v_cmp_gt_u32 vcc, 16, v0", f"v_accvgpr_read_b32 v{VONE}, a245", f"s_add_u32 s34, s35, {WS_Y - WS_U}",
          f"v_cndmask_b32 v{VB}, v{VB}, v24, vcc", f"v_lshlrev_b32 v{VB}, 2, v{VB}", "v_cmp_eq_u32 vcc, 63, v0",
          "s_lshl_b32 s30, s31, 16", "s_and_b32 s31, s31, 0xffff0000", "s_bitcmp1_b32 s3, 0", "s_cselect_b32 s31, s31, s30")
        X = lambda n: Reg('v', 160 + 4 * n, 4)
        Z = lambda p, d: Reg('v', 12, 4) if (p, d) == (3, 15) else Reg('a', (p * 16 + d) * 4, 4)
        AC = lambda c, p: Reg('v', 32 + 16 * c + 4 * p, 4)
        T = lambda c, j: Reg('v', 224 + 8 * (c % 4) + j, 1); U = lambda c, r: Reg('v', 228 + 8 * (c % 4) + r, 1)
        for i in range(224, 256, 2): a(f"v_mov_b64 v[{i}:{i+1}], 0")
        lds = []
        for d in range(16):
            lds += [(f"ds_read_b64_tr_b16 {X(d)[2*e:2*e+2]}, v{VXX} offset:{KB - 64 + 256*d + 32*(1-e)}", X(d)[2*e:2*e+2]) for e in range(2)]
            if d % 2 == 1:
                lds += [(f"ds_read_b64 {Z(p,dd)[2*e:2*e+2]}, v{VZ} offset:{p*1152 + 8 + 64*dd + 8*e}", Z(p, dd)[2*e:2*e+2]) for p in range(4) for dd in (d, d - 1) for e in range(2)]
        N = 288; B = Body(N, cyclic=False)
        n = 0; endc = {}
        for c in range(8):
            for p in range(4):
                for k in range(2 * c + 2):
                    B.set_mfma(n, AC(c, p), X(k), Z(p, 2 * c - k + 1), 0 if k == 0 else AC(c, p)); n += 1
            endc[c] = n - 1
        PRE = 44
        a(f"s_waitcnt vmcnt({m.after_u}) lgkmcnt(0)")
        for k, (tx, r) in enumerate(lds[:PRE]):
            a(tx)
            if k % 8 == 7: a("s_waitcnt lgkmcnt(6)")
        a("s_waitcnt lgkmcnt(0)")
        m.mark("s2_go")
        for k, (tx, r) in enumerate(lds[PRE:]): B.put(k, 'd', tx, r)
        pub = o['s2pub']
        B.put(pub - 1, 's', "s_waitcnt vmcnt(0)"); B.put(pub, 's', "s_barrier"); B.putg(pub + 1, f"buffer_store_dword v{VONE}, v{VONE}, s[12:15], {sFCTX} offen sc1", "fl")
        B.putg(N - o['oplead'], f"buffer_load_dword v23, v11, s[12:15], {'s44' if o['shb2'] else 's45'} offen sc1", "p")
        a("v_lshlrev_b32 v11, 2, v22", "s_add_u32 s45, s44, 1088")
        if o['shb']:
            B.putg(o['shb'] - 41, "buffer_load_dword v23, v11, s[12:15], s44 offen offset:64 sc1", "p0")
            t = o['shb']
            while B.pre[t] or B.pre[t + 1] or B.has(t, 'v'): t += 1
            B.vmwait(t, ["p0"]); B.put(t, 'v', "v_cmp_ne_u32 s[52:53], 0, v23")
            for x in ("s_cmp_eq_u64 s[52:53], 0", "s_cselect_b32 s49, 1, 0", "s_cselect_b32 s51, s37, 2.0"): B.put(t + 1, 's', x)
            for k, (sc, x) in enumerate(m.sh_dmas()):
                t += o['shstep'] if k else 4
                while B.has(t, 'g') or B.has(t, 'v') or B.pre[t] or (sc and (B.pre[t - 1] or B.pre[t - 2] or B.has(t - 1, 'g') or B.has(t - 2, 'g'))): t += 1
                B.putg(t, x, "sh")
                for j, y in enumerate(sc): B.put(t - 2 + j, 's', y)
            assert t < N - o['oplead']
        rest = []; tv = len(lds) - PRE - 30; td = len(lds) - PRE - 1
        for c in range(8):
            A0, A1, A2, A3 = (AC(c, p) for p in range(4))
            st1 = [f"v_add_f32 {A1[3]}, {A1[3]}, {A2[2]}", f"v_add_f32 {A2[3]}, {A2[3]}, {A3[2]}", f"v_add_f32 {A1[3]}, {A1[3]}, {A3[1]}"]
            st1 += [f"v_cndmask_b32_e64 {T(c,j)}, {AC(c,j+1)[3]}, {AC(c-1,j+1)[3] if c else 0}, vcc" for j in range(3)]
            ds = [(f"ds_bpermute_b32 {T(c,j)}, v{VB}, {T(c,j)}", T(c, j)) for j in range(3)] + [(f"ds_read_u16_d16_hi {U(c,r)}, v{VU} offset:{r*1152 + 128 + 128*c}", U(c, r)) for r in range(4)]
            st2 = [f"v_add_f32 {A0[1]}, {A0[1]}, {A1[0]}", f"v_add_f32 {A0[2]}, {A0[2]}, {A1[1]}", f"v_add_f32 {A0[3]}, {A0[3]}, {A1[2]}",
                   f"v_add_f32 {A0[2]}, {A0[2]}, {A2[0]}", f"v_add_f32 {A0[3]}, {A0[3]}, {A2[1]}", f"v_add_f32 {A0[3]}, {A0[3]}, {A3[0]}"]
            st3 = [(f"v_add_f32 {A0[j]}, {A0[j]}, {T(c,j)}", T(c, j)) for j in range(3)] + [(f"v_fmac_f32 {A0[r]}, s31, {U(c,r)}", U(c, r)) for r in range(4)]
            st4 = [f"v_cvt_pk_bf16_f32 {A0[0]}, {A0[0]}, {A0[1]}", f"v_cvt_pk_bf16_f32 {A0[1]}, {A0[2]}, {A0[3]}"]
            sto = f"buffer_store_dwordx2 {A0[0:2]}, v{VY_}, s[12:15], s34 offen offset:{512*c} sc1"
            if c < 7:
                tv = max(tv, endc[c] + 8)
                for x in st1: tv = B.place(tv, N, 'v', x)
                td = max(td, tv)
                for x, r in ds: td = B.place(td + 1, N, 'd', x, r)
                for x in st2: tv = B.place(tv, N, 'v', x)
                t3 = max(tv, td + 6)
                for x, r in st3: t3 = B.place(t3, N, 'v', x, None, r)
                for x in st4: t3 = B.place(t3, N, 'v', x)
                t3 = B.place(t3 + 1, N, 'g', sto)
                done3 = getattr(m, '_d3', {}); done3[c] = t3; m._d3 = done3
                if c >= 3: tv = max(tv, done3[c - 3])
            else: rest = ["s_nop 7"] + st1 + [x for x, r in ds] + st2 + ["s_waitcnt lgkmcnt(0)"] + [x for x, r in st3] + st4 + [sto]
        B.auto_lgkm(look=2, maxcnt=15)
        t = pub + 4
        for x in setup:
            if x.startswith("s_"):
                t += 1
                while B.pre[t] or B.has(t, 'g'): t += 1
                B.put(t, 's', x)
            else: t = B.place(t, N, 'v', x)
        t = max(t, m._d3[2])
        for x in qloads: t = B.place(t + 2, N, 'g', x) + 10
        assert t - 10 < N - o['oplead']
        ops = B.resolve_vm(); m.after_p = len(ops) - 1 - ops.index("p") + 1
        print("s2 pattern:", B.pattern(), len(B.report()))
        a(*B.lines()); a(*rest)
        m.mark("s2_end")

    def red_setup(m):
        a = m.a
        a("s_lshl_b32 s42, s42, 4", "s_lshl_b32 s36, s41, 6", "s_add_u32 s36, s36, 896", f"s_add_u32 s35, s36, {1024*1792}", f"s_add_u32 s39, s37, {0x40000000 if m.o.get('xld', 0) & 2 else 64*14*m.PS}")
        srd(a, 8, pOut, 2048 * 1792)
        a("v_and_b32 v2, 15, v0", "v_add_u32 v2, s42, v2", "v_mul_u32_u24 v7, 896, v2", "v_lshrrev_b32 v3, 4, v0", "v_lshlrev_b32 v8, 4, v3", "v_lshl_add_u32 v2, v7, 1, v8", "v_add_u32 v7, v7, v8")
        a("v_and_b32 v4, 1, v0", "v_lshlrev_b32 v4, 4, v4", "v_mov_b32 v5, 0x3f80", "v_lshlrev_b32 v4, v4, v5",
          "v_bfe_u32 v5, v0, 3, 1", "v_bfe_u32 v6, v0, 1, 1", "v_lshl_add_u32 v5, v5, 1, v6",
          "v_bfe_u32 v6, v0, 2, 1", "v_lshlrev_b32 v6, 1, v6", "v_sub_u32 v6, v3, v6", "v_lshl_add_u32 v5, v6, 2, v5")
        for h in range(2):
            for k in range(4): a(f"v_cmp_eq_u32 s[{16+2*k}:{17+2*k}], {4*h+k}, v5")
            for k in range(4): a(f"v_cndmask_b32 v{24+4*h+k}, 0, v4, s[{16+2*k}:{17+2*k}]")
    def red_loads(m, sp, base):
        for k in range(16):
            m.a(f"buffer_load_dwordx4 a[{base+4*k}:{base+4*k+3}], v1, s[12:15], {sp} offen offset:{(k%4)*1024} sc1")
            if k % 4 == 3: m.a(f"s_add_u32 {sp}, {sp}, 4096")
    def red_sum(m, base, acc, younger=None):
        for h in range(16):
            if younger is not None: m.a(f"s_waitcnt vmcnt({15 - h + younger})")
            for f in range(2): m.a(mfma(Reg('v', acc + 4 * f, 4), Reg('v', 24 + 4 * f, 4), Reg('a', base + 4 * h, 4), Reg('v', acc + 4 * f, 4) if h else 0))
    def red_out(m, acc, so, off):
        for i in range(4): m.a(f"v_cvt_pk_bf16_f32 v{acc+i}, v{acc+2*i}, v{acc+2*i+1}")
        m.a(f"buffer_store_dwordx4 v[{acc}:{acc+3}], v2, s[8:11], {so} offen offset:{off} {m.o['outfl']}")

    def endgame(m):
        a, name, o = m.a, m.n, m.o
        m.oproj(1)
        if o['shb2']:
            assert o['shb'] and not o['bpre']
            m.red_setup()
            a("s_add_u32 s45, s44, 1024", f"s_add_u32 s39, s39, {7*m.PS}", "s_waitcnt vmcnt(0)", "s_barrier", f"buffer_store_dword v9, v9, s[12:15], {sFCTX} offen sc1")
            m.mark("pub")
            m.poll("s45", 16, 16, 17)
        else:
            a(f"s_waitcnt vmcnt({m.after_p1})", "v_cmp_ne_u32 vcc, 0, v12", "s_cmp_eq_u64 vcc, 0", "s_cselect_b32 s50, 1, 0", "s_cselect_b32 s51, s38, 2.0")
            real = m.a; m.a = Asm(); m.red_setup(); fill = m.a.L; m.a = Asm(); m.red_loads("s51", 128); lds = m.a.L; m.a = real
            n0 = o['apre']
            if n0: interleave(a, fill, [[x] for x in lds[:n0 // 4 * 5]])
            else: a(*fill)
            a("s_add_u32 s45, s44, 1024", f"s_add_u32 s39, s39, {7*m.PS}", f"s_waitcnt vmcnt({n0})", "s_barrier", f"buffer_store_dword v9, v9, s[12:15], {sFCTX} offen sc1")
            a(*lds[n0 // 4 * 5:])
            m.mark("pub")
            if o['shb']:
                a("s_cmp_eq_u32 s50, 1", f"s_cbranch_scc1 {name}_haveshort")
                m.poll("s44", 16, 16, 17)
                m.mark("flag1")
                m.red_loads("s38", 128)
                a(f"{name}_haveshort:")
                m.apoll("s45", 16, 246, 17)
                m.red_sum(128, 40, 1); a("s_nop 7"); m.red_out(40, "s36", 448); a("s_waitcnt vmcnt(1)")
            else:
                a("s_and_b32 s51, s49, s50", f"s_cbranch_scc1 {name}_haveshort")
                m.poll("s44", 16, 16, 17)
                m.mark("flag1")
                a("s_cmp_eq_u32 s49, 1", f"s_cbranch_scc1 {name}_have1")
                m.red_loads("s37", 64)
                a(f"{name}_have1:", "s_cmp_eq_u32 s50, 1", f"s_cbranch_scc1 {name}_have2")
                m.red_loads("s38", 128)
                a(f"{name}_have2:", "s_waitcnt vmcnt(0)", f"{name}_haveshort:")
                m.red_sum(64, 32)
                m.apoll("s45", 16, 246, 17)
                m.red_sum(128, 40, 1); m.red_out(32, "s36", 0); a("s_nop 2"); m.red_out(40, "s36", 448)
            a("s_waitcnt vmcnt(2)")
            m.mark("mid_end")
            m.acheck("s45", 16, 246, 16, 17)
        m.mark("ctx_flag")
        m.red_loads("s39", 0); m.red_sum(0, 48, 0)
        m.mark("p4_loop")
        a("s_nop 7"); m.red_out(48, "s35", 448)
        m.mark("p4_end")
        a(f"s_branch {name}_fin", f"{name}_idle:")
        m.publish(sFCTX, V_T0, V_T1)
        a(f"s_branch {name}_fin")
        a(f"{name}_opB:")
        m.oproj(0)
        real = m.a; m.a = a = Asm()
        m.red_setup()
        srd(a, 16, pAq, 2048 * 896)
        a(f"s_lshl_b32 {sFCTX}, {sIDX}, 2", f"s_add_u32 {sFCTX}, {sFCTX}, {F_Y}", "s_lshl_b32 s43, s41, 6", f"s_add_u32 s43, s43, {F_Y}",
          "s_lshl_b32 s46, s41, 7", f"s_add_u32 s54, s46, {1024*896}", f"s_add_u32 s55, s46, {1024*1792}",
          "s_lshl_b32 s56, s42, 1", f"s_mul_i32 s57, s41, {64*m.CS}", "s_add_u32 s56, s56, s57", f"s_add_u32 s56, s56, {WS_Y}", f"s_add_u32 s57, s56, {32*m.CS}", "s_lshl_b32 s58, s3, 12", "s_add_u32 s58, s58, 0x20000", "s_mov_b32 s59, 0xffff0000", "s_lshl_b32 s47, s3, 14",
          "v_lshrrev_b32 v8, 1, v0", f"v_mul_u32_u24 v8, {m.CS}, v8", "v_and_b32 v9, 1, v0", "v_lshl_add_u32 v8, v9, 4, v8",
          "v_lshlrev_b32 v10, 3, v3", "v_bfe_u32 v6, v0, 2, 2", "v_add_u32 v10, v10, v6", "v_lshlrev_b32 v10, 5, v10", "v_and_b32 v6, 3, v0", "v_lshl_add_u32 v10, v6, 3, v10",
          "v_add_u32 v10, s58, v10", "v_add_u32 v9, s47, v1")
        fill = a.L; m.a = Asm(); m.red_loads("s51", 0); lds = m.a.L; m.a = a = real
        m.s2(fill, [f"buffer_load_dwordx4 v[{48+4*k}:{51+4*k}], v7, s[16:19], {'s54' if k >= 2 else 's46'} offen offset:{64*(k%2)}" for k in range(4)])
        a(f"s_waitcnt vmcnt({m.after_p})", "v_cmp_ne_u32 vcc, 0, v23", "s_cmp_eq_u64 vcc, 0", "s_cselect_b32 s50, 1, 0", "s_cselect_b32 s51, s39, 2.0")
        n1 = o['bpre']; assert n1 % 4 == 0
        a(*lds[:n1 // 4 * 5])
        def shsum():
            for k in range(16): a(f"ds_read_b128 a[{64+4*k}:{67+4*k}], v9 offset:{1024*k}")
            for h in range(16):
                a(f"s_waitcnt lgkmcnt({15-h})")
                for f in range(2): a(mfma(Reg('v', 40 + 4 * f, 4), Reg('v', 24 + 4 * f, 4), Reg('a', 64 + 4 * h, 4), Reg('v', 40 + 4 * f, 4) if h else 0))
        if o['shb']: shsum()
        a(f"s_waitcnt vmcnt({n1})", "s_barrier", f"buffer_store_dword v21, v21, s[12:15], {sFCTX} offen sc1")
        if o['shb']:
            a("s_cmp_eq_u32 s49, 1", f"s_cbranch_scc1 {name}_havesh", "s_add_u32 s48, s44, 64", "s_mov_b32 s47, s51")
            m.poll("s48", 16, 16, 17)
            a("s_mov_b32 s51, s37")
            for sc, x in m.sh_dmas(): a(*sc); a("s_nop 0", x)
            a("s_mov_b32 s51, s47", "s_waitcnt vmcnt(0)"); shsum()
            a("s_nop 4", f"{name}_havesh:", "s_nop 2"); m.red_out(40, "s36", 0)
        m.mark("pub")
        if o['shb2']:
            a("s_cmp_eq_u32 s50, 1", f"s_cbranch_scc1 {name}_havesh2")
            m.poll("s44", 16, 16, 17)
            a(f"{name}_havesh2:")
            m.red_loads("s38", 128); m.apoll("s45", 16, 246, 17)
            m.red_sum(128, 80, 1); a("s_nop 7"); m.red_out(80, "s36", 448); a("s_waitcnt vmcnt(1)")
            m.acheck("s45", 16, 246, 16, 17)
        else:
            a("s_cmp_eq_u32 s50, 1", f"s_cbranch_scc1 {name}_havelong")
            m.poll("s45", 16, 16, 17)
        m.mark("flag1")
        a("s_mov_b32 s51, s39"); a(*lds[:n1 // 4 * 5])
        a(f"{name}_havelong:")
        ydma = lambda sa: [x for k in range(4) for x in (f"s_add_u32 m0, s58, {1024*(k%2)}", "s_nop 0", f"buffer_load_dwordx4 v8, s[12:15], s{sa+k%2} offen offset:{2048*(k//2)} sc1 lds")]
        a(*lds[n1 // 4 * 5:15]); a("buffer_load_dword v23, v11, s[12:15], s43 offen sc1"); a(*lds[15:])
        for h in range(16):
            if h == 12:
                a("s_waitcnt vmcnt(4)", "v_cmp_ne_u32 vcc, 0, v23", "s_cmp_eq_u64 vcc, 0", "s_cselect_b32 s50, 1, 0", "s_cselect_b32 s52, s56, 2.0", "s_cselect_b32 s53, s57, 2.0")
                a(*ydma(52))
            a(f"s_waitcnt vmcnt({16 - h if h < 12 else 19 - h})")
            for f in range(2): a(mfma(Reg('v', 32 + 4 * f, 4), Reg('v', 24 + 4 * f, 4), Reg('a', 4 * h, 4), Reg('v', 32 + 4 * f, 4) if h else 0))
        a("s_nop 7"); m.red_out(32, "s35", 0)
        m.mark("mid_end")
        a("s_cmp_eq_u32 s50, 1", f"s_cbranch_scc1 {name}_havey")
        m.poll("s43", 16, 16, 17)
        m.mark("ctx_flag")
        a(*ydma(56)); a("s_waitcnt vmcnt(0)", f"{name}_havey:", "s_waitcnt vmcnt(1)")
        for k in range(4):
            for e in range(2): a(f"ds_read_b64_tr_b16 v[{64+4*k+2*e}:{65+4*k+2*e}], v10 offset:{1024*k + 128*e}")
        for k in range(4):
            a(f"s_waitcnt lgkmcnt({6-2*k})")
            for i in range(4):
                q, y = 48 + 4 * k + i, 64 + 4 * k + i
                a(f"v_lshlrev_b32 v16, 16, v{q}", f"v_and_b32 v17, s59, v{q}", f"v_lshlrev_b32 v18, 16, v{y}", f"v_and_b32 v19, s59, v{y}",
                  "v_pk_mul_f32 v[16:17], v[16:17], v[18:19]", f"v_cvt_pk_bf16_f32 v{q}, v16, v17")
            a(f"buffer_store_dwordx4 v[{48+4*k}:{51+4*k}], v2, s[8:11], {'s55' if k >= 2 else 's46'} offen offset:{64*(k%2)} {m.o['outfl']}")
        m.mark("p4_end")

def mega9(a, name, diag=False, **o):
    m = Mega(a, name, diag, **o)
    kernel_header(a, name)
    if o.get('rerun'): a("s_mov_b32 s97, 0")
    a("s_cmp_lt_u32 s2, 256", f"s_cbranch_scc1 {name}_go", "s_endpgm", f"{name}_go:")
    m.proj(); m.attn()
    m.endgame()
    a(f"{name}_fin:")
    if o.get('holdmin'):
        a("s_not_b32 s98, s96" if o['holdmin'] == 1 else "s_mov_b32 s98, s96", "v_mov_b32 v2, 0", "v_mov_b32 v3, s98", "s_mov_b64 exec, 1", f"global_atomic_umax v2, v3, s[{pDbg}:{pDbg+1}] offset:64 sc1", "s_mov_b64 exec, -1",
          f"{name}_h0:", "s_memrealtime s[98:99]", "s_waitcnt lgkmcnt(0)", "s_sub_u32 s98, s98, s96", "s_cmp_lt_u32 s98, 9000", f"s_cbranch_scc1 {name}_h0",
          f"global_load_dword v3, v2, s[{pDbg}:{pDbg+1}] offset:64 sc1", "s_waitcnt vmcnt(0)", "v_readfirstlane_b32 s96, v3", "s_nop 3")
        if o['holdmin'] == 1: a("s_not_b32 s96, s96")
    if not diag: m.mark("drain")
    if diag:
        a("s_waitcnt vmcnt(0)"); m.mark("drain"); m.st.store(a)
        if o.get('dbgout') is not None:
            a(f"s_cmp_lg_u32 s2, {o['dbgout']}", f"s_cbranch_scc1 {name}_nodbg", "s_cmp_lg_u32 s3, 0", f"s_cbranch_scc1 {name}_nodbg", "v_accvgpr_read_b32 v2, a255", "v_mov_b32 v4, 0", "s_nop 1",
              "v_readlane_b32 s40, v2, 0", "v_readlane_b32 s41, v2, 1")
            for k, nm in enumerate(["kv_go", "kv_end", "q_end", "att_go", "tail_end", "op_go", "op_end", "drain"]):
                i = STAMPS.index(nm)
                a(f"v_readlane_b32 s42, v2, {2*i}", f"v_readlane_b32 s43, v2, {2*i+1}", "s_nop 3", "s_sub_u32 s42, s42, s40", "s_sub_u32 s43, s43, s41",
                  f"v_writelane_b32 v4, s42, {2*k}", f"v_writelane_b32 v4, s43, {2*k+1}")
            a("s_mov_b64 exec, 0xffff", f"global_store_dword v1, v4, s[{pDbg}:{pDbg+1}]", f"{name}_nodbg:")
    a("s_endpgm", f"{name}_codeend:")
    return kernel_desc(name)

def make(diag=False, **o):
    from build import build, NAME
    s = build([(NAME + "_kernel", mega9, 256, 163840, o)], diag=diag)
    return s.replace(f"; @launch kernel={NAME}_kernel grid", "; @launch grid").replace(NAME + "_kernel_", "L_")
if __name__ == "__main__":
    import sys, hazard
    s = make(diag=len(sys.argv) > 2)
    print("hazards", hazard.check(s))
    open(sys.argv[1] if len(sys.argv) > 1 else "mega.s", "w").write(s)
```

```python
from common import *
import struct
def fbits(x): return f"{struct.unpack('<I', struct.pack('<f', x))[0]:#x}"

V_L16, V_KA, V_VA, V_D0, V_D1 = 1, 2, 3, 1, 4
TS = [Reg('v', 5, 1), Reg('v', 6, 1)]; LS = [Reg('v', 7, 1), Reg('v', 8, 1)]; NM = [Reg('v', 9, 1), Reg('v', 10, 1)]
V_T0, V_T1, V_T2, V_R, V_T3 = 11, 12, 13, 14, 15
P = lambda ks, qs: Reg('v', 16 + (ks * 2 + qs) * 4, 4)
S = lambda kb, qs: Reg('v', 32 + (kb * 2 + qs) * 4, 4)
E = lambda kb, qs: Reg('v', 64 + (kb * 2 + qs) * 4, 4)
C = lambda kb, qs: Reg('v', 96 + (kb * 2 + qs) * 4, 4)
O = lambda db, qs: Reg('v', 128 + (qs * 16 + db) * 4, 4)
Q = lambda qs, s: Reg('a', (qs * 8 + s) * 4, 4)
F = lambda n: Reg('a', 64 + (n % 16) * 4, 4)
def fload(n):
    if n < 32: return f"ds_read_b128 {F(n)}, v{V_KA} offset:{n*1024}"
    db, ks = (n - 32) // 2, (n - 32) % 2
    return f"ds_read_b128 {F(n)}, v{V_VA} offset:{(ks*16+db)*1024}"
def set_qk(B, base):
    for kb in range(4):
        for qs in range(2):
            for s in range(8):
                B.set_mfma(base + 16 * kb + 8 * qs + s, S(kb, qs), F(8 * kb + s), Q(qs, s), C(kb, qs) if s == 0 else S(kb, qs))
def set_pv(B, base):
    for db in range(16):
        for k, (ks, qs) in enumerate(((0, 0), (1, 0), (1, 1), (0, 1))):
            B.set_mfma(base + 4 * db + k, O(db, qs), F(32 + 2 * db + ks), P(ks, qs), O(db, qs))
def cvts():
    return [f"v_cvt_pk_bf16_f32 {P(kb//2, qs)[2*(kb%2)+h]}, {E(kb,qs)[2*h]}, {E(kb,qs)[2*h+1]}" for kb in range(4) for qs in range(2) for h in range(2)]
S_KM, S_VM, S_KP, S_VP, S_LEFT, S_THR, S_FLOOR, S_BIG = 40, 41, 42, 43, 44, 45, 46, 47
def dma(sp, j): return f"buffer_load_dwordx4 v{V_D0 if j < 4 else V_D1}, s[12:15], s{sp} offen offset:{(j%4)*1024} lds"

def main_body(name, L=16, kg=(1, 6), vg=(49, 6), pollslot=None, look=2, rot=None, pfslot=None, down=None, kgen=None, tstride=0x8000, bclean=0, onebr=0):
    B = Body(128)
    set_qk(B, 0); set_pv(B, 64)
    for n in range(64): B.put(2 * n - L, 'd', fload(n), F(n))
    bv, bk = 64 - L - 1, 128 - L - 1
    jumps = []
    for (g0, gs), sm, sp in ((kg, S_KM, S_KP), (vg, S_VM, S_VP)):
        for j in range(8):
            g = g0 + gs * j
            if kgen and sp == S_KP:
                vk, st, d, d4 = kgen
                B.put(g, 'g', f"buffer_load_dwordx4 v{vk}, s[8:11], s{st if j else sp} offen offset:{(j%4)*1024} lds")
                if j: B.put(g - 3, 's', f"s_add_u32 s{st}, s{st if j > 1 else sp}, s{d4 if j == 4 else d}")
            else: B.put(g, 'g', dma(sp, j))
            if j == 0: B.put(g - 1, 's', f"s_mov_b32 m0, s{sm}")
            if j == 4: B.put(g - 1, 's', "s_bitset1_b32 m0, 12")
        B.put(g + 1, 's', f"s_add_u32 s{sp}, s{sp}, {'s%d' % down[len(jumps)][2] if down else '0x8000'}"); B.put(g - 1, 's', f"s_xor_b32 s{sm}, s{sm}, 0x8000")
        jumps.append((g + 3, sp))
    if pollslot: B.put(pollslot[0], 'g', pollslot[1])
    if pfslot:
        assert kg[0] + 7 * kg[1] < pfslot[0] < bv - 1
        B.put(pfslot[0], 'g', pfslot[1]); B.put(60, 's', pfslot[2])
    for b in (bv, bk):
        B.put(b - 1, 's', f"s_waitcnt vmcnt({8 + (1 if (pollslot and b == bk) else 0) + (1 if pfslot else 0)})"); B.put(b, 's', "s_barrier")
    B.auto_lgkm(look=look, maxcnt=15)
    if bclean:
        import re
        for b in (bv, bk):
            w = [x for x in B.pre[b] if x.startswith("s_waitcnt")]
            if w:
                B.pre[b].remove(w[0]); c = int(re.search(r"lgkmcnt\((\d+)\)", w[0]).group(1)) - (1 if B.has(b - 1, 'd') else 0)
                k = [i for i, x in enumerate(B.pre[b - 1]) if x.startswith("s_waitcnt")][0]; assert "lgkm" not in B.pre[b - 1][k]
                B.pre[b - 1][k] += f" lgkmcnt({c})"
            if bclean == 2: B.put(b, 'e', "")
    B.place(bv + 1, bk, 'v', f"v_xor_b32 v{V_KA}, 0x8000, v{V_KA}")
    B.place(bk + 1, bk + 16, 'v', f"v_xor_b32 v{V_VA}, 0x8000, v{V_VA}")
    t = 0
    cv = cvts(); cpos = {}
    seq = [cv[0], cv[1], cv[2], cv[3]] + [f"v_add_f32 {LS[q]}, {LS[q]}, {TS[q]}" for q in range(2)] + cv[4:]
    for x in seq:
        while not (B.fits(t, 'v') and (B.has(t, 'd') or t < 12)): t += 1
        B.put(t, 'v', x); cpos[x] = t
    lpos = max(cpos[seq[4]], cpos[seq[5]])
    te = 0; epos = {}
    for kb in range(4):
        for qs in range(2):
            lo = max(16 * kb + 8 * qs + 7 + 5, cpos[cv[(kb * 2 + qs) * 2 + 1]] + 1)
            for i in range(4):
                te = B.place(max(te, lo), 128, 'e', f"v_exp_f32 {E(kb,qs)[i]}, {S(kb,qs)[i]}"); epos[kb, qs, i] = te
    ta = lpos
    for kb in range(4):
        for qs in range(2):
            for i in range(4):
                if kb == 0 and i == 0: continue
                src = E(0, qs)[0] if (kb == 0 and i == 1) else TS[qs]
                ta = B.place(max(ta + 1, epos[kb, qs, i] + 1), 128, 'v', f"v_add_f32 {TS[qs]}, {src}, {E(kb,qs)[i]}")
    ta = B.place(ta + 1, 128, 'v', f"v_add_f32 v{V_T0}, {TS[0]}, {TS[1]}")
    ta = B.place(ta + 1, 127, 'v', f"v_cmp_nge_f32 vcc, s{S_BIG}, v{V_T0}")
    B.place(120, 126, 's', f"s_sub_u32 s{S_LEFT}, s{S_LEFT}, 1")
    if rot:
        for (t, sp), (e, w, e2, w2) in zip(jumps, rot):
            pos = []
            while len(pos) < 4:
                if any(x.startswith(("s_add", "s_xor", "s_sub", "s_cmp")) for x in B.pre[t]): pos = []
                elif not B.pre[t] and not B.has(t, 'g'): pos.append(t)
                t += 1
            for k, x in zip(pos, (f"s_cmp_eq_u32 s{sp}, s{e}", f"s_cmov_b32 s{sp}, s{w}", f"s_cmov_b32 s{e}, s{e2}", f"s_cmov_b32 s{w}, s{w2}")): B.put(k, 's', x)
    if down:
        for (t, sp), (e, w, st) in zip(jumps, down):
            pos = []
            while len(pos) < 3:
                if any(x.startswith(("s_add", "s_xor", "s_sub", "s_cmp")) for x in B.pre[t]): pos = []
                elif not B.pre[t] and not B.has(t, 'g'): pos.append(t)
                t += 1
            for k, x in zip(pos, (f"s_cmp_eq_u32 s{sp}, s{e}", f"s_cmov_b32 s{sp}, s{w}", f"s_cmov_b32 s{st}, {tstride}")): B.put(k, 's', x)
    if onebr:
        assert ta < 124 and not B.pre[125] and not B.pre[126]
        if onebr == 2:
            import re
            w = B.pre[127].pop(); c = int(re.search(r"lgkmcnt\((\d+)\)", w).group(1)) - 1
            assert not B.pre[124] and not B.pre[127] and B.has(126, 'd')
            B.put(126, 's', f"s_waitcnt lgkmcnt({c})")
        k = 124 if onebr == 2 else 125
        B.put(k, 's', f"s_cmp_gt_u32 s{S_LEFT}, s{S_THR}"); B.put(k + 1, 's', "s_cselect_b64 vcc, vcc, -1")
        B.put(127, 'S', f"s_cbranch_vccz {name}_loop"); B.put(127, 'S', f"v_cmp_nge_f32 vcc, s{S_BIG}, v{V_T0}")
    B.put(127, 'S', f"s_cbranch_vccnz {name}_slow")
    return B

def k2(a, name, diag=False, nA=18, L=16):
    st = Stamps(diag, 1)
    kernel_header(a, name)
    a("s_cmp_ge_u32 s2, 256", f"s_cbranch_scc1 {name}_end")
    st.mark(a)
    a("s_load_dwordx2 s[30:31], s[0:1], 112")
    a("v_lshrrev_b32 v2, 6, v0", "v_and_b32 v0, 63, v0", "v_readfirstlane_b32 s3, v2",
      "s_and_b32 s33, s2, 7", "s_bfe_u32 s34, s2, 0x30003",
      "s_bfe_u32 s35, s2, 0x10006", "s_lshl_b32 s33, s33, 1", "s_add_u32 s35, s35, s33",
      "s_lshr_b32 s36, s2, 7",
      "s_lshl_b32 s37, s34, 1", f"s_sub_u32 s38, {32-nA}, s37",
      "s_and_b32 s39, s2, 127",
      f"s_mov_b32 s{S_BIG}, {fbits(2.0**24)}")
    a(f"v_lshlrev_b32 v{V_L16}, 4, v0", f"v_add_u32 v{V_D1}, 4096, v{V_L16}")
    a(f"v_and_b32 v{V_R}, 15, v0", f"v_lshrrev_b32 v{V_T0}, 4, v0", f"v_lshlrev_b32 v{V_T0}, 2, v{V_T0}", f"v_sub_u32 v{V_R}, v{V_R}, v{V_T0}",
      "s_lshl_b32 s48, s3, 4", f"v_add_u32 v{V_R}, s48, v{V_R}")
    a("s_lshl_b32 s49, s35, 20", "s_lshl_b32 s50, s3, 13")
    a("s_waitcnt lgkmcnt(0)")
    srd(a, 12, 30, WS_BYTES)
    a("s_sub_u32 s51, 15, s34", "s_cmp_eq_u32 s36, 0", f"s_cbranch_scc1 {name}_roleB")
    a("s_mov_b32 s52, s38", f"s_mov_b32 s53, {nA}", "s_cmp_eq_u32 s38, 0", "s_cselect_b32 s54, 1, 2", f"s_branch {name}_seg")
    a(f"{name}_roleB:", "s_mov_b32 s52, 0", "s_mov_b32 s53, s38", "s_mov_b32 s54, 0", "s_cmp_lg_u32 s38, 0", f"s_cbranch_scc1 {name}_seg")
    a(f"{name}_seg2:", "s_mov_b32 s51, s34", "s_mov_b32 s52, 0", "s_add_u32 s53, s37, 2", "s_mov_b32 s54, 1")
    a(f"{name}_seg:")
    a("s_lshl_b32 s55, s52, 15", "s_add_u32 s55, s55, s49", f"s_add_u32 s{S_KP}, s55, s50", f"s_add_u32 s{S_VP}, s{S_KP}, {WS_V}",
      f"s_mov_b32 s{S_KM}, s50", f"s_add_u32 s{S_VM}, s50, 0x10000",
      "s_lshl_b32 s55, s51, 16", "s_add_u32 s55, s55, s49", "s_add_u32 s55, s55, s50", f"s_add_u32 s55, s55, {WS_Q}", "s_add_u32 s56, s55, 0x8000")
    def issue(sm, sp):
        a(f"s_mov_b32 m0, s{sm}", "s_nop 0")
        for j in range(8):
            if j == 4: a("s_bitset1_b32 m0, 12", "s_nop 0")
            a(dma(sp, j))
        a(f"s_add_u32 s{sp}, s{sp}, 0x8000", f"s_xor_b32 s{sm}, s{sm}, 0x8000")
    issue(S_KM, S_KP)
    for qs in range(2):
        for s in range(8): a(f"buffer_load_dwordx4 {Q(qs,s)}, v{V_D0 if s < 4 else V_D1}, s[12:15], s{55+qs} offen offset:{(s%4)*1024}")
    issue(S_KM, S_KP); issue(S_VM, S_VP)
    a(f"v_mov_b32 v{V_KA}, v{V_L16}", f"v_add_u32 v{V_VA}, 0x10000, v{V_L16}")
    for i in range(96, 256): a(f"v_mov_b32 v{i}, 0")
    for r in LS + NM: a(f"v_mov_b32 {r}, 0")
    a(f"s_mov_b32 s{S_FLOOR}, 0xff800000", "s_cmp_eq_u32 s54, 0", f"s_cselect_b32 s{S_THR}, 0, 2", f"s_sub_u32 s{S_LEFT}, s53, 1")
    def mask(qs):
        a(f"v_mov_b32 v{V_T0}, {fbits(-1e30)}")
        for kb in range(4):
            for i in range(4): a(f"v_cmp_gt_i32 s[{16+2*i}:{17+2*i}], {16*kb+i}, v{V_R}")
            for i in range(4): a(f"v_cndmask_b32 {C(kb,qs)[i]}, {NM[qs]}, v{V_T0}, s[{16+2*i}:{17+2*i}]")
    a(f"s_cmp_ge_u32 s{S_LEFT}, s{S_THR}", f"s_cbranch_scc1 {name}_nomask0")
    mask(0)
    a(f"{name}_nomask0:")
    a("s_waitcnt vmcnt(16)", "s_barrier")
    if diag:
        a("s_cmp_eq_u32 s54, 0", f"s_cbranch_scc1 {name}_st1"); st.mark(a); a(f"{name}_st1:")
    B0 = Body(64, cyclic=False); set_qk(B0, 0)
    for n in range(8): a(fload(n))
    a("s_waitcnt lgkmcnt(0)")
    for n in range(8, 32): B0.put(2 * n - 16, 'd', fload(n), F(n))
    B0.auto_lgkm(look=2, maxcnt=15)
    a(*B0.lines())
    a(f"v_xor_b32 v{V_KA}, 0x8000, v{V_KA}", "s_waitcnt vmcnt(8)", "s_barrier")
    for n in range(L // 2): a(fload(n))
    a(f"{name}_slow:", "s_nop 7")
    for qs in range(2):
        mx, t = f"v{V_T0+qs}", f"v{V_T2}"
        el = [S(kb, qs)[i] for kb in range(4) for i in range(4)]
        a(f"v_max3_f32 {mx}, {el[0]}, {el[1]}, {el[2]}")
        for k in range(3, 15, 2): a(f"v_max3_f32 {mx}, {mx}, {el[k]}, {el[k+1]}")
        a(f"v_max_f32 {mx}, {mx}, {el[15]}")
        for sw in ("v_permlane32_swap_b32", "v_permlane16_swap_b32"):
            a(f"v_mov_b32 {t}, {mx}", "s_nop 1", f"{sw} {mx}, {t}", "s_nop 1", f"v_max_f32 {mx}, {mx}, {t}")
        a(f"v_max_f32 {mx}, s{S_FLOOR}, {mx}", f"v_sub_f32 {NM[qs]}, {NM[qs]}, {mx}")
        for e in el: a(f"v_sub_f32 {e}, {e}, {mx}")
        for kb in range(4):
            for i in range(4): a(f"v_exp_f32 {E(kb,qs)[i]}, {S(kb,qs)[i]}", f"v_mov_b32 {C(kb,qs)[i]}, {NM[qs]}")
        ee = [E(kb, qs)[i] for kb in range(4) for i in range(4)]
        a(f"v_add_f32 {TS[qs]}, {ee[0]}, {ee[1]}")
        for k in range(2, 16): a(f"v_add_f32 {TS[qs]}, {TS[qs]}, {ee[k]}")
    a("s_waitcnt lgkmcnt(0)", f"s_cmp_lg_u32 s{S_FLOOR}, 0", f"s_mov_b32 s{S_FLOOR}, 0", f"s_cbranch_scc1 {name}_ret")
    for qs in range(2):
        f = f"v{V_T0+qs}"
        a(f"v_exp_f32 {f}, -{f}", "s_nop 0", f"v_mul_f32 {LS[qs]}, {LS[qs]}, {f}")
        for db in range(16):
            for i in range(4): a(f"v_mul_f32 {O(db,qs)[i]}, {O(db,qs)[i]}, {f}")
    a(f"s_branch {name}_ret")
    B = main_body(name, L)
    print("attn pattern:", B.pattern()); print("over:", B.report())
    a(".p2align 6", f"{name}_loop:")
    a(*B.lines())
    a(f"{name}_ret:", f"s_cmp_gt_u32 s{S_LEFT}, s{S_THR}", f"s_cbranch_scc1 {name}_loop")
    a(f"s_cmp_eq_u32 s{S_LEFT}, 0", f"s_cbranch_scc1 {name}_tail", f"s_cmp_eq_u32 s{S_LEFT}, 1", f"s_cbranch_scc1 {name}_d1")
    mask(0); a("s_nop 0", f"s_branch {name}_loop")
    a(f"{name}_d1:")
    mask(1)
    for kb in range(4):
        for i in range(4): a(f"v_mov_b32 {C(kb,0)[i]}, v{V_T0}")
    a("s_nop 0", f"s_branch {name}_loop")
    a(f"{name}_tail:", "s_waitcnt vmcnt(0) lgkmcnt(0)", "s_barrier")
    for n in range(32, 40): a(fload(n))
    a(*cvts())
    for q in range(2): a(f"v_add_f32 {LS[q]}, {LS[q]}, {TS[q]}")
    a("s_waitcnt lgkmcnt(0)")
    BT = Body(64, cyclic=False); set_pv(BT, 0)
    for n in range(40, 64): BT.put(2 * (n - 32) - 16, 'd', fload(n), F(n))
    BT.auto_lgkm(look=2, maxcnt=15)
    a(*BT.lines())
    if diag:
        a("s_cmp_eq_u32 s54, 0", f"s_cbranch_scc1 {name}_st2"); st.mark(a); a(f"{name}_st2:")
    for qs in range(2):
        l, t = LS[qs], f"v{V_T2}"
        for sw in ("v_permlane32_swap_b32", "v_permlane16_swap_b32"):
            a(f"v_mov_b32 {t}, {l}", "s_nop 1", f"{sw} {l}, {t}", "s_nop 1", f"v_add_f32 {l}, {l}, {t}")
    for qs in range(2): a(f"v_log_f32 {TS[qs]}, {LS[qs]}", f"v_rcp_f32 v{V_T0+qs}, {LS[qs]}")
    for qs in range(2): a(f"v_sub_f32 {TS[qs]}, {TS[qs]}, {NM[qs]}")
    a("s_lshl_b32 s55, s39, 16", "s_lshl_b32 s57, s3, 14", "s_add_u32 s55, s55, s57", f"s_add_u32 s55, s55, {WS_PO}", "s_add_u32 s56, s55, 0x2000",
      "s_lshl_b32 s57, s39, 2", "s_add_u32 s57, s57, s3", "s_lshl_b32 s57, s57, 9", f"s_add_u32 s57, s57, {WS_PL}",
      "s_lshl_b32 s58, s39, 7", f"s_add_u32 s58, s58, {WS_FLAG}", f"v_lshrrev_b32 v{V_T3}, 2, v{V_L16}")
    def pack(qs, s):
        ra, rb = O(2 * s, qs), O(2 * s + 1, qs)
        a(f"v_cvt_pk_bf16_f32 {ra[0]}, {ra[0]}, {ra[1]}", f"v_cvt_pk_bf16_f32 {ra[1]}, {ra[2]}, {ra[3]}",
          f"v_cvt_pk_bf16_f32 {ra[2]}, {rb[0]}, {rb[1]}", f"v_cvt_pk_bf16_f32 {ra[3]}, {rb[2]}, {rb[3]}")
        return ra
    def scale_store(fl):
        for qs in range(2):
            for s in range(8):
                for db in (2 * s, 2 * s + 1):
                    for i in range(4): a(f"v_mul_f32 {O(db,qs)[i]}, {O(db,qs)[i]}, v{V_T0+qs}")
                r = pack(qs, s)
                a(f"buffer_store_dwordx4 {r}, v{V_D0 if s < 4 else V_D1}, s[12:15], s{55+qs} offen offset:{(s%4)*1024}{fl}")
    a("s_cmp_lg_u32 s54, 0", f"s_cbranch_scc1 {name}_final")
    for qs in range(2): a(f"buffer_store_dword {TS[qs]}, v{V_T3}, s[12:15], s57 offen offset:{256*qs} sc1")
    scale_store(" sc1")
    a("s_waitcnt vmcnt(0)", "s_barrier", "s_cmp_lg_u32 s3, 0", f"s_cbranch_scc1 {name}_seg2",
      f"v_mov_b32 v{V_T0}, 1", f"v_mov_b32 v{V_T1}, 0", "s_mov_b64 s[60:61], exec", "s_mov_b64 exec, 1",
      f"buffer_store_dword v{V_T0}, v{V_T1}, s[12:15], s58 offen sc1", "s_mov_b64 exec, s[60:61]", f"s_branch {name}_seg2")
    a(f"{name}_final:", "s_cmp_eq_u32 s54, 1", f"s_cbranch_scc1 {name}_store")
    a(f"v_mov_b32 v{V_T2}, 0", f"{name}_poll:", f"buffer_load_dword v16, v{V_T2}, s[12:15], s58 offen sc1", "s_waitcnt vmcnt(0)",
      "v_readfirstlane_b32 s59, v16", "s_cmp_eq_u32 s59, 1", f"s_cbranch_scc1 {name}_got", "s_sleep 4", f"s_branch {name}_poll", f"{name}_got:")
    for qs in range(2): a(f"buffer_load_dword v{16+qs}, v{V_T3}, s[12:15], s57 offen offset:{256*qs} sc1")
    PB = lambda qs, s: Reg('v', 32 + (qs * 8 + s) * 4, 4)
    for qs in range(2):
        for s in range(8): a(f"buffer_load_dwordx4 {PB(qs,s)}, v{V_D0 if s < 4 else V_D1}, s[12:15], s{55+qs} offen offset:{(s%4)*1024} sc1")
    a("s_waitcnt vmcnt(16)")
    for qs in range(2):
        a(f"v_max_f32 v18, v{16+qs}, {TS[qs]}", f"v_sub_f32 v19, {TS[qs]}, v18", f"v_sub_f32 v20, v{16+qs}, v18",
          "v_exp_f32 v19, v19", "v_exp_f32 v20, v20", "s_nop 0", "v_add_f32 v18, v19, v20", "v_rcp_f32 v18, v18", "s_nop 0",
          "v_mul_f32 v19, v19, v18", f"v_mul_f32 v{22+qs}, v20, v18", f"v_mul_f32 v{V_T0+qs}, v{V_T0+qs}, v19")
    a("s_lshl_b32 s55, s51, 20", "s_lshl_b32 s57, s3, 17", "s_add_u32 s55, s55, s57", "s_lshl_b32 s57, s35, 13", "s_add_u32 s55, s55, s57",
      f"s_add_u32 s55, s55, {WS_CTX}", "s_add_u32 s56, s55, 0x80000", "s_mov_b32 s59, 0xffff0000")
    for qs in range(2):
        for s in range(8):
            a(f"s_waitcnt vmcnt({15})")
            for k in range(8):
                o = O(2 * s + k // 4, qs)[k % 4]; pb = PB(qs, s)[k // 2]
                a(f"v_lshlrev_b32 v24, 16, {pb}" if k % 2 == 0 else f"v_and_b32 v24, s59, {pb}", f"v_mul_f32 v24, v24, v{22+qs}", f"v_fma_f32 {o}, {o}, v{V_T0+qs}, v24")
            r = pack(qs, s)
            a(f"buffer_store_dwordx4 {r}, v{V_D0 if s < 4 else V_D1}, s[12:15], s{55+qs} offen offset:{(s%4)*1024}")
    a(f"s_branch {name}_done")
    a(f"{name}_store:")
    a("s_lshl_b32 s55, s51, 20", "s_lshl_b32 s57, s3, 17", "s_add_u32 s55, s55, s57", "s_lshl_b32 s57, s35, 13", "s_add_u32 s55, s55, s57",
      f"s_add_u32 s55, s55, {WS_CTX}", "s_add_u32 s56, s55, 0x80000")
    scale_store("")
    a(f"{name}_done:")
    if diag:
        st.mark(a); a("s_waitcnt vmcnt(0)"); st.mark(a); st.store(a, "s[12:15]", "s3")
    a(f"{name}_end:", "s_endpgm")
    return kernel_desc(name)
```

```python
from common import *
from gemm import Gemm, quad_order
import k2 as AT
from k2 import V_L16, V_KA, V_VA, V_D0, V_D1, TS, LS, NM, V_T0, V_T1, V_T2, V_R, V_T3, P, S, E, C, O, Q, F, fload, set_qk, set_pv, cvts
from k2 import S_KM, S_VM, S_KP, S_VP, S_LEFT, S_THR, S_FLOOR, S_BIG

F_KV, F_CTX, F_PO, F_U, F_Y = (WS_FLAG + x for x in (0, 0x1000, 0x2000, 0x6000, 0x7000))
sX, sI, sH, sROLE, sJJ, sW1K = "s24", "s25", "s26", "s27", "s28", "s29"
pAq, pAk, pAv, pAsh, pAssm, pAD, pX, pC, pWq, pWuk, pWuv, pWo, pOut, pDbg = range(64, 92, 2)
sFKV, sFCTX, sFPO, sIDX = "s92", "s93", "s94", "s95"
STAMPS = ["entry", "e_args", "e_t0", "e_t1", "e_wait", "e_land", "kv_go", "kv_end", "q_end", "q_stored", "s1_done", "kv_flag", "att_go", "seg1_end", "seg1_fin", "tail_go", "tail_end", "po_flag", "att_fin", "op_go", "op_end", "s2_go", "s2_end", "pub", "flag1", "mid_end", "ctx_flag", "p4_loop", "p4_end", "drain"]

class Mega:
    def __init__(m, a, name, diag, **o):
        m.a, m.n, m.st = a, name, Stamps2(diag)
        m.o = dict(b1=40, b2=93, gstep=5, nA=20, L=16, NP=4, stfl=' sc1', st0=-104, ststep=7, pubgap=40, LW=13, groups=((0, 1), (2, 3), (4, 5, 6)),
                   wstep=5, pf=1, PD=2, nunits=9, pfdelay=1, DW=7, C0=4, s2pub=6, sleep=6, pgap=109, oppub=40, LO=14, epf=0, ehalf=190, s1g=230, s1gl=240, qlate=0, latepos=0, opw=7, oplead=40, opr=7, opfl='sc1', opoob=0, t1fast=1, outfl='', kg=(1, 6), vg=(49, 6), look=2, afl='sc1', xfl='', yfl='', lean=0, kvlead=30, rot=1, qfl=' sc1', stmod=(1, 1), popf=0, head=1, pre1=10, pfhead=2, stord=(0, 1, 2, 4, 5, 3), stsw=0, ststep0=7, apf=0, stl0=100, stlstep=10, l2pf=0, l2at=44, cs=8, cl=4, opsm=110, opc0=5, w23=(5, 5), w4=6, bpre=0, apre=0, shb=90, shstep=8, cpf1=1, cpf2=None, cpf3=0, x0=6, qsplit=1, zq=0, fa=1, d0wait=1, jjmap=1, fab=1, dse=4, w0poll=3, sh2c=0, thrA=0, thrB=0, jjB=0, yfirst=1, bv3=5, bclean=2, onebr=2, kvbr=1, shb2=0, pad=(0, 0, 0, 1024, 1024, 0)); m.o.update(o)
        m.npoll = 0
        p = m.o['pad']; m.TS = 0x8000 + p[0]; m.HS = 32 * m.TS + p[1]; m.VB = 16 * m.HS + p[2]; m.IS = 0x4000 + p[3]; m.PS = 0x4000 + p[4]; m.CS = 4096 + p[5]
        assert m.VB + 16 * m.HS <= WS_CTX
    def mark(m, nm):
        if m.o.get('attstamp'):
            k = {"entry": 0, "q_end": 1, "att_go": 2, "tail_go": 27, "op_go": 28, "drain": 29}.get(nm)
            if k is not None: m.st.mark(m.a, k)
            if nm == "att_go": m.a("s_mov_b32 s0, 6")
            return
        if (m.st.on != 2 and not m.o.get('tilestamp')) or nm in ("entry", "drain") or (m.o.get('tilestamp') and STAMPS.index(nm) < 8): m.st.mark(m.a, STAMPS.index(nm))
        if m.o.get('tilestamp') and nm in ("q_stored", "s1_done", "att_go", "tail_go"): m.st.mark(m.a, 1 + ("q_stored", "s1_done", "att_go", "tail_go").index(nm))
        m.jitter()
        if m.o.get('idle', (0, 0))[0] == nm: m.a(f"s_sleep {m.o['idle'][1]}")
        h = m.o.get('hold')
        if h and h[0] == nm:
            l = f"{m.n}_hold{m.npoll}"; m.npoll += 1
            m.a(f"{l}:", "s_memrealtime s[98:99]", "s_waitcnt lgkmcnt(0)", "s_sub_u32 s98, s98, s96", f"s_cmp_lt_u32 s98, {h[1]*100}", f"s_cbranch_scc1 {l}")
    def jitter(m):
        j = m.o.get('jitter')
        if not j: return
        l = f"{m.n}_jit{m.npoll}"; m.npoll += 1
        m.a("s_cselect_b32 s99, 1, 0", "s_memtime s[96:97]", "s_waitcnt lgkmcnt(0)", "s_mul_i32 s96, s96, 0x9e3779b1", "s_lshr_b32 s96, s96, 24", f"s_cmp_ge_u32 s96, {j[0]}", f"s_cbranch_scc1 {l}_x",
            f"{l}:", f"s_sleep {j[1]}", "s_sub_u32 s96, s96, 1", f"s_cbranch_scc0 {l}", f"{l}_x:", "s_cmp_lg_u32 s99, 0")
    def poll(m, soff, n, va, vd, val=0, dbg=False):
        a = m.a; l = f"{m.n}_poll{m.npoll}"; m.npoll += 1
        a(f"v_and_b32 v{va}, {n-1}, v0", f"v_lshlrev_b32 v{va}, 2, v{va}", "s_mov_b32 s32, 0", f"{l}:")
        a(f"global_load_dword v{vd}, v{va}, s[{pDbg}:{pDbg+1}] offset:{soff} sc1" if dbg else f"buffer_load_dword v{vd}, v{va}, s[12:15], {soff} offen sc1")
        a("s_waitcnt vmcnt(0)", f"v_cmp_ne_u32 vcc, {val}, v{vd}", f"s_cbranch_vccz {l}_ok", f"s_sleep {m.o['sleep']}", "s_add_u32 s32, s32, 1",
          "s_cmp_lt_u32 s32, 0x80000", f"s_cbranch_scc1 {l}", f"{l}_ok:")
    def apoll(m, soff, n, areg, va):
        m.a(f"v_and_b32 v{va}, {n-1}, v0", f"v_lshlrev_b32 v{va}, 2, v{va}", f"buffer_load_dword a{areg}, v{va}, s[12:15], {soff} offen sc1")
    def acheck(m, soff, n, areg, va, vd):
        l = f"{m.n}_poll{m.npoll}_ok"
        m.a(f"v_accvgpr_read_b32 v{vd}, a{areg}", f"v_cmp_ne_u32 vcc, 0, v{vd}", f"s_cbranch_vccz {l}")
        m.poll(soff, n, va, vd)
    def code_pf_setup(m):
        a, n = m.a, m.n
        mode = m.o['cpf1']; nl = {0: 64, 1: 9, 2: 2, 3: 17}[mode]
        a("s_getpc_b64 s[100:101]", f"{n}_pc:", f"s_sub_u32 s100, s100, {n}_pc-{n}_go", "s_subb_u32 s101, s101, 0")
        if mode == 2: a("s_lshl_b32 s32, s2, 2", "s_add_u32 s32, s32, s3", "s_mul_i32 s32, s32, 144")
        else: a("s_lshr_b32 s32, s2, 1", f"s_and_b32 s32, s32, {(12, 124, 0, 60)[mode]}", "s_add_u32 s32, s32, s3", f"s_mul_i32 s32, s32, {128*nl}", f"s_add_u32 s32, s32, {(0x1000, 0, 0, 0)[mode]}")
        a(f"v_min_u32 v14, {nl-1}, v0", "v_lshl_add_u32 v14, v14, 7, s32", f"v_min_u32 v14, {n}_codeend-{n}_go-4, v14")
    def code_pf(m, v=14): return f"global_load_dword a243, v{v}, s[100:101]"
    def setflag(m, soff, va, vd):
        m.a(f"v_mov_b32 v{va}, 0", "s_mov_b64 exec, 1", f"buffer_store_dword v{va}, v{va}, s[12:15], {soff} offen sc1", "s_mov_b64 exec, -1")
    def publish(m, soff, va, vd, local=False):
        a = m.a; l = f"{m.n}_pub{m.npoll}"; m.npoll += 1
        a("s_waitcnt vmcnt(0)", "s_barrier", "s_cmp_lg_u32 s3, 0", f"s_cbranch_scc1 {l}")
        if local: a("s_cmp_lg_u32 s30, 0", f"s_cbranch_scc1 {l}_x", "buffer_wbl2 sc1", "s_waitcnt vmcnt(0)", f"{l}_x:")
        m.setflag(soff, va, vd)
        a(f"{l}:")

    def proj(m):
        a, name, o = m.a, m.n, m.o
        NP = o['NP']
        m.jitter()
        if m.st.on: a("v_mov_b32 v1, v0"); m.st.init(a); m.mark("entry"); a("v_mov_b32 v0, v1")
        if o.get('hold'): a("s_memrealtime s[96:97]")
        a("s_load_dwordx16 s[64:79], s[0:1], 0", "s_load_dwordx8 s[80:87], s[0:1], 64", "s_load_dwordx4 s[88:91], s[0:1], 96", "s_load_dwordx2 s[12:13], s[0:1], 112")
        a("v_lshrrev_b32 v1, 6, v0", "v_and_b32 v0, 63, v0", "v_readfirstlane_b32 s3, v1",
          f"s_and_b32 {sX}, s2, 7", f"s_bfe_u32 {sI}, s2, 0x30003", f"s_bfe_u32 {sH}, s2, 0x10006", f"s_lshl_b32 s37, {sX}, 1", f"s_add_u32 {sH}, {sH}, s37",
          f"s_lshr_b32 {sROLE}, s2, 7", f"s_bfe_u32 {sJJ}, s2, 0x40003", f"s_lshl_b32 {sW1K}, s3, 10",
          "s_and_b32 s39, s3, 1", "s_lshr_b32 s40, s3, 1")
        if o['jjmap']:
            a(f"s_cmp_eq_u32 {sROLE}, 0", f"s_cselect_b32 s37, {7 - o['jjB']}, {8 - o['jjmap']}", f"s_add_u32 s37, s37, {sI}", "s_and_b32 s37, s37, 7", "s_lshl_b32 s37, s37, 1", f"s_lshr_b32 {sJJ}, {sJJ}, 3", f"s_add_u32 {sJJ}, {sJJ}, s37")
        m.code_pf_setup()
        if o['pf']: a(m.code_pf())
        def wrow(j): return 4 * (j & 1) + 16 * ((j >> 1) & 1) + 32 * (j >> 2)
        for j in range(1, 8): a(f"s_mov_b32 s{40+j}, {65536*j}", f"s_mov_b32 s{47+j}, {wrow(j)*8192}")
        ysoff = lambda j: "0" if j == 0 else f"s{40+j}"
        xsoff = lambda j: "0" if j == 0 else f"s{47+j}"
        a("s_lshl_b32 s56, s39, 1", "s_lshl_b32 s57, s40, 3", "s_add_u32 s56, s56, s57")
        VY, VX, VST, VQ, VXA, VONE = 1, 2, 1, 2, 15, 11
        yaddr = [Reg('v', 4, 1), Reg('v', 5, 1)]
        xaddr = [Reg('v', 6 + i, 1) for i in range(8)]
        a(f"s_lshl_b32 s60, {sI}, 8", "s_lshl_b32 s58, s3, 3", "s_add_u32 s58, s58, s60", "v_lshrrev_b32 v14, 3, v0", "v_add_u32 v14, s58, v14", "v_lshlrev_b32 v14, 11, v14",
          "s_lshl_b32 s58, s39, 2", "v_lshrrev_b32 v15, 4, v0", "v_add_u32 v15, s58, v15", "v_xor_b32 v15, v0, v15", "v_and_b32 v15, 7, v15", f"v_lshl_add_u32 v{VY}, v15, 4, v14")
        a("v_lshrrev_b32 v14, 5, v0", "s_lshl_b32 s58, s3, 1", "v_add_u32 v15, s58, v14",
          "v_lshlrev_b32 v15, 1, v15", "v_xor_b32 v15, v0, v15", "v_and_b32 v15, 31, v15", "v_lshlrev_b32 v15, 4, v15",
          "v_add_u32 v14, s56, v14", "v_lshl_add_u32 v14, v14, 13, v15", f"s_lshl_b32 s58, {sH}, 9", f"v_add_u32 v{VX}, s58, v14")
        a("s_waitcnt lgkmcnt(0)")
        m.mark("e_args")
        a(f"s_cmp_eq_u32 {sROLE}, 0", f"s_cselect_b32 s8, s{pWuk}, s{pWuv}", f"s_cselect_b32 s9, s{pWuk+1}, s{pWuv+1}", "s_mov_b32 s10, 8388608", "s_mov_b32 s11, 0x20000")
        srd(a, 4, pC, 4194304); a(f"s_mov_b32 s14, {WS_BYTES}", "s_mov_b32 s15, 0x20000")
        def dmas(p):
            y = [(f"s_add_u32 m0, {sW1K}, {p*32768 + j*4096}", f"buffer_load_dwordx4 v{VY}, s[4:7], {ysoff(j)} offen {o['yfl']} lds") for j in range(8)]
            x = [(f"s_add_u32 m0, {sW1K}, {65536 + p*32768 + j*4096}", f"buffer_load_dwordx4 v{VX}, s[8:11], {xsoff(j)} offen {o['xfl']} lds") for j in range(8)]
            return [d for pr in zip(x, y) for d in pr]
        adv = [f"v_add_u32 v{VY}, 128, v{VY}", f"v_add_u32 v{VX}, 0x80000, v{VX}"]
        real = a; a = Asm()
        a(f"s_lshl_b32 s58, {sROLE}, 3", f"s_add_u32 s59, s58, {sI}", "s_lshl_b32 s59, s59, 2", f"s_lshl_b32 {sFKV}, {sH}, 7", f"s_add_u32 {sFKV}, {sFKV}, s59", f"s_add_u32 {sFKV}, {sFKV}, {F_KV}",
          f"s_add_u32 s58, s58, {sX}", f"s_mul_i32 {sIDX}, s58, 14", f"s_add_u32 {sIDX}, {sIDX}, {sJJ}",
          f"s_sub_u32 s63, 15, {sI}", f"s_cmp_eq_u32 {sROLE}, 0", f"s_cselect_b32 s63, {sI}, s63",
          f"s_lshl_b32 {sFCTX}, s63, 7", f"s_lshl_b32 s59, {sH}, 2", f"s_add_u32 {sFCTX}, {sFCTX}, s59", f"s_add_u32 {sFCTX}, {sFCTX}, {F_CTX}",
          f"s_and_b32 {sFPO}, s2, 127", f"s_lshl_b32 {sFPO}, {sFPO}, 7", f"s_add_u32 {sFPO}, {sFPO}, {F_PO}")
        a("s_cmp_lg_u32 s3, 0", f"s_cbranch_scc1 {name}_noclr")
        a(f"s_lshl_b32 s58, {sIDX}, 2", f"s_add_u32 s59, s58, {F_Y}", f"s_add_u32 s58, s58, {F_U}", f"s_lshl_b32 s61, {sROLE}, 2", f"s_add_u32 s61, s61, {sFPO}",
          f"s_cmp_lt_u32 {sJJ}, 14", f"s_cselect_b32 s58, s58, {sFKV}", f"s_cselect_b32 s59, s59, {sFKV}",
          f"v_mov_b32 v14, {sFKV}", f"v_writelane_b32 v14, {sFCTX}, 1", "v_writelane_b32 v14, s61, 2", "v_writelane_b32 v14, s58, 3", "v_writelane_b32 v14, s59, 4",
          f"s_add_u32 s58, {sFCTX}, 64", "v_writelane_b32 v14, s58, 5", "v_mov_b32 v15, 1", "s_mov_b64 exec, 63", "buffer_store_dword v15, v14, s[12:15], 0 offen sc1", "s_mov_b64 exec, -1")
        a(f"{name}_noclr:")
        a("s_cmp_eq_u32 s3, 0", "s_cselect_b32 s58, 0, 0x80000000", "v_bfrev_b32 v14, 1", "v_writelane_b32 v14, s58, 0", "v_accvgpr_write_b32 a245, v14")
        a("s_lshl_b32 s58, s39, 7", "s_lshl_b32 s59, s40, 3")
        a("v_and_b32 v14, 15, v0", "v_lshrrev_b32 v15, 4, v0",
          "s_lshl_b32 s60, s63, 7", "s_lshl_b32 s62, s3, 4", "s_add_u32 s60, s60, s62", "v_lshrrev_b32 v13, 3, v0", "v_lshlrev_b32 v13, 1, v13", "v_add_u32 v12, s60, v13", "v_mul_u32_u24 v12, 896, v12", "v_lshrrev_b32 v13, 1, v13", "v_xor_b32 v13, v0, v13", "v_and_b32 v13, 7, v13",
          "v_lshl_add_u32 v13, v13, 4, v12", "v_accvgpr_write_b32 a240, v13",
          "v_lshrrev_b32 v13, 1, v14", "v_xor_b32 v12, v13, v15", "v_lshlrev_b32 v12, 4, v12", "v_lshl_add_u32 v12, v13, 7, v12", "v_and_b32 v13, 1, v14", "v_lshl_add_u32 v12, v13, 10, v12",
          "s_lshl_b32 s33, s3, 13", "s_add_u32 s33, s33, 0x20000", "v_add_u32 v12, s33, v12", "v_accvgpr_write_b32 a242, v12",
          f"v_lshrrev_b32 {yaddr[1]}, 1, v14", f"v_xor_b32 {yaddr[1]}, {yaddr[1]}, v15",
          f"v_add_u32 v14, s58, v14", "v_lshlrev_b32 v14, 7, v14", f"v_lshl_add_u32 {yaddr[0]}, {yaddr[1]}, 4, v14", f"v_xor_b32 {yaddr[1]}, 64, {yaddr[0]}")
        a("v_bfe_u32 v14, v0, 2, 3", "v_lshrrev_b32 v15, 5, v0", "v_lshl_add_u32 v13, v15, 4, v14", "v_lshlrev_b32 v13, 9, v13",
          "v_xor_b32 v14, s59, v14", "v_lshl_add_u32 v13, v14, 5, v13", "v_and_b32 v14, 3, v0", "v_lshl_add_u32 v13, v14, 3, v13",
          f"v_add_u32 {xaddr[0]}, 0x10000, v13")
        for nb in range(1, 8): a(f"v_xor_b32 {xaddr[nb]}, {nb*32}, {xaddr[0]}")
        srd(a, 16, pWq, 448 * 8192); srd(a, 20, pX, 2048 * 896)
        cq = fbits(LOG2E / 16)
        a("s_and_b32 s62, s2, 127", "s_lshl_b32 s62, s62, 2", "s_add_u32 s62, s62, s3", f"s_mul_i32 s62, s62, {m.IS}", f"s_add_u32 s62, s62, {WS_CTX}",
          f"s_mul_i32 s58, {sH}, {m.HS}", f"s_mul_i32 s59, {sI}, {4*m.TS}", "s_add_u32 s58, s58, s59", f"s_mul_i32 s59, s39, {2*m.TS}", "s_add_u32 s58, s58, s59",
          "s_lshl_b32 s59, s40, 12", f"s_lshl_b32 s59, s59, {sROLE}", "s_add_u32 s58, s58, s59", f"s_mul_i32 s59, {sROLE}, {m.VB}", "s_add_u32 s58, s58, s59",
          f"s_mov_b32 s57, {64*896}", "s_lshl_b32 s60, s40, 8", "s_add_u32 s60, s60, 0x10000", f"s_mov_b32 s34, {cq}", f"s_mov_b32 s35, {cq}")
        niter = (16 - NP) // 2
        HEAD = o['head']
        a(f"s_mul_i32 s55, {sI}, {niter - 1}", "s_lshr_b32 s55, s55, 3", "s_add_u32 s55, s55, 1", "s_cmp_lg_u32 s3, 0", f"s_cmov_b32 s55, {niter}", "v_mov_b32 v15, 1")
        a(
          f"s_cmp_ge_u32 {sI}, {(33 - o['nA']) // 2}", "s_cmov_b32 s62, 2.0")
        selops = lambda b: ([f"v_mov_b32 v{b}, 0", f"v_mov_b32 v{b+1}, 0", f"v_mov_b32 v{b+4}, 0", f"v_mov_b32 v{b+5}, 0", f"v_and_b32 v{b+6}, 1, v0", f"v_lshlrev_b32 v{b+6}, 4, v{b+6}", f"v_mov_b32 v{b+7}, 0x3f80",
                             f"v_lshlrev_b32 v{b+6}, v{b+6}, v{b+7}", f"v_bfe_u32 v{b+7}, v0, 1, 3", f"v_lshrrev_b32 v{b+8}, 4, v0", f"v_lshlrev_b32 v{b+8}, 1, v{b+8}", f"v_sub_u32 v{b+7}, v{b+7}, v{b+8}",
                             f"v_cmp_eq_u32 s[0:1], 0, v{b+7}", f"v_cmp_eq_u32 vcc, 1, v{b+7}"],
                            [f"v_cndmask_b32 v{b+2}, 0, v{b+6}, s[0:1]", f"v_cndmask_b32 v{b+3}, 0, v{b+6}, vcc"])
        so = selops(20); keep = m.a; m.a = Asm(); m.op_setup(30, 31); ops_ = m.a.L[:-4]; m.a = keep
        a(*so[0]); a(*[x.replace("s78", "s31") for x in ops_[:8]]); a(*so[1]); a(*[f"v_accvgpr_write_b32 a{248+i}, v{20+i}" for i in range(6)])
        a("v_accvgpr_write_b32 a241, v30", f"s_lshl_b32 s31, {sROLE}, 3", f"s_add_u32 s31, s31, {sI}", f"s_cmp_lt_u32 s31, {(33 - o['nA']) // 2}", "s_cselect_b64 vcc, -1, 0", "v_lshlrev_b32 v31, 4, v0",
          "v_cndmask_b32 v30, v30, v31, vcc", "v_accvgpr_write_b32 a244, v30")
        a(*m.op_addr0(30, 31)); a("v_accvgpr_write_b32 a254, v30")
        m.wo_scalars = ops_[8:]
        lean = o['lean']
        a(f"s_lshl_b32 s31, {sI}, 16", f"s_lshl_b32 s32, {sH}, 9", "s_add_u32 s31, s31, s32")
        if lean: a("v_bfe_u32 v15, v0, 2, 3", "v_lshlrev_b32 v15, 13, v15", "v_and_b32 v14, 3, v0", "v_lshlrev_b32 v14, 7, v14", "v_add3_u32 v16, v14, v15, s31", "v_lshrrev_b32 v18, 5, v0", "v_lshl_add_u32 v16, v18, 30, v16")
        else: a("v_lshrrev_b32 v15, 3, v0", "v_lshlrev_b32 v15, 13, v15", "v_and_b32 v14, 7, v0", "v_lshlrev_b32 v14, 6, v14", "v_add3_u32 v16, v14, v15, s31")
        a(f"s_lshl_b32 s31, {sI}, 2", "s_lshr_b32 s32, s2, 6", "s_add_u32 s31, s31, s32", "s_lshl_b32 s31, s31, 17", "v_lshlrev_b32 v17, 11, v0", "v_add_u32 v17, s31, v17")
        if lean == 2: a("v_lshrrev_b32 v14, 3, v0", f"v_xor_b32 v14, {sX}, v14", "v_lshl_add_u32 v17, v14, 27, v17")
        PD = o['PD']; units = [pWq, pWq, pX, pAk, pAv, pWo, pWo, pAssm, pAq][:o['nunits']]
        a("s_mul_i32 s36, s2, 7282", "s_lshr_b32 s36, s36, 16", "s_mul_i32 s37, s36, 9", "s_sub_u32 s37, s2, s37", "s_lshl_b32 s38, s36, 16",
          f"s_mov_b64 s[30:31], s[{pWq}:{pWq+1}]")
        for u, pp in list(enumerate(units))[2:]: a(f"s_cmp_eq_u32 s37, {u}", f"s_cmov_b64 s[30:31], s[{pp}:{pp+1}]")
        a("s_add_u32 s32, s38, 1835008", "s_cmp_eq_u32 s37, 1", "s_cmov_b32 s38, s32", "s_cmp_eq_u32 s37, 6", "s_cmov_b32 s38, s32",
          "s_lshl_b32 s32, s39, 15", "s_add_u32 s38, s38, s32",
          f"s_cmp_ge_u32 s37, {len(units)}", "s_cmov_b32 s36, 28", "s_cmp_lt_u32 s36, 28", "s_cselect_b32 s32, 0x8000, 0", "s_cselect_b32 s38, s38, 0",
          "s_add_u32 s36, s30, s38", "s_addc_u32 s37, s31, 0", "s_mov_b32 s38, s32", "s_mov_b32 s39, 0x20000",
          "v_lshlrev_b32 v14, 6, v0" if not lean else "v_lshlrev_b32 v14, 7, v0", f"s_mov_b32 s56, {(-(o['pfdelay'] + max(PD, 1)) * 0x1000) & 0xffffffff:#x}", "s_movk_i32 s30, 0x1000")
        if lean: a("v_and_b32 v14, 0xfff, v14", "v_lshl_add_u32 v14, v18, 20, v14")
        a("s_cmp_ge_u32 s3, 2", f"s_cbranch_scc1 {name}_pfset", "s_mov_b32 s38, 0")
        if PD:
            a("s_cmp_eq_u32 s3, 0", "s_cselect_b64 s[36:37], s[8:9], s[4:5]", "s_cselect_b32 s38, s10, s6", "s_movk_i32 s30, 128", "s_cmov_b32 s30, 0x80000", "s_cselect_b64 vcc, -1, 0",
              "s_lshl_b32 s56, s30, 1", "v_cndmask_b32 v14, v17, v16, vcc")
        a(f"{name}_pfset:", "v_mov_b32 v15, 1", "v_mov_b32 v3, 0")
        if not HEAD:
            for i in range(16, 256, 2): a(f"v_mov_b64 v[{i}:{i+1}], 0")
            for i in range(224, 240): a(f"v_accvgpr_write_b32 a{i}, 0")
        fill = a.L; a = real
        half = o['ehalf']; assert fill.index(f"{name}_noclr:") < half
        half = max(half, fill.index(f"{name}_pfset:") + 2)
        print("prologue fill", len(fill), half)
        grp = lambda p: [[m0, "s_nop 0", t] for m0, t in dmas(p)]
        if HEAD:
            g0 = grp(0); g0[-1] = g0[-1] + adv
            interleave(a, fill, g0 + grp(1)[:o['pre1']]); m.mark("e_t0")
        else:
            interleave(a, fill[:half], grp(0)); a(*adv); m.mark("e_t0")
            interleave(a, fill[half:], grp(1)); a(*adv); m.mark("e_t1")
        NPRE = 0 if (HEAD and o['pfhead']) else max(PD, 1)
        for k in range(NPRE): a("buffer_load_dword a243, v14, s[36:39], s56 offen", "s_add_u32 s56, s56, s30")
        pfs = [("buffer_load_dword a243, v14, s[36:39], s56 offen", "s_add_u32 s56, s56, s30")] * 2 if o['pf'] else None
        xreg = lambda p, x, s_: Reg('a', (x * 2 + s_) * 4, 4)
        yreg = lambda p, y, s_: Reg('a', 64 + (y * 2 + s_) * 4, 4)
        G = []
        for ty in range(2):
            key = (lambda x, y: (x // 2, y)) if ty == 0 else (lambda x, y: (x, y // 2))
            done = {}
            for n, (x, y, st) in enumerate(quad_order(8, 8, 1)): done[key(x, y)] = n
            order = sorted(done, key=lambda k: done[k])
            preg = {}; nv = 0
            for pi, k in enumerate(order):
                if pi in (2, 3): preg[k] = Reg('a', 224 + 8 * (pi - 2), 8)
                else: preg[k] = Reg('v', 16 + 8 * nv, 8); nv += 1
            half = (lambda x, y: x % 2) if ty == 0 else (lambda x, y: y % 2)
            acc = lambda x, y, preg=preg, key=key, half=half: preg[key(x, y)][4 * half(x, y):4 * half(x, y) + 4]
            g = Gemm(8, 8, acc, ty == 1, xreg, yreg, xaddr, yaddr, dmas, adv, o['b1'], o['b2'], o['gstep'], pf=pfs)
            g.order, g.preg, g.done = order, preg, done
            G.append(g)
        m.mark("e_wait")
        a("s_mov_b32 s61, 0", f"s_waitcnt vmcnt({(o['pre1'] if HEAD else 16)+NPRE})"); m.mark("e_land"); a("s_barrier")
        a(*G[0].preload[0])
        m.mark("kv_go")
        a(f"s_cmp_eq_u32 {sROLE}, 0", "s_waitcnt lgkmcnt(0)", f"s_cbranch_scc0 {name}_vloop{'_head' if HEAD else ''}")
        def head(g, lab):
            T = 128; b1, b2 = o['b1'], o['b2']
            B = Body(T + 8, cyclic=False); seen = set()
            for n in range(T + 8):
                tx, src, dst = g.B.m[n]; key = min(dst)
                if key not in seen: seen.add(key); tx = tx[:tx.rindex(",")] + ", 0"
                B.m[n] = (tx, src, dst)
            for q, rel, txt, reg in g.dl:
                if 0 <= q * T + rel < T: B.put(q * T + rel, 'd', txt, reg)
            B.put(b1 - 1, 's', "s_waitcnt lgkmcnt(0)"); B.put(b1, 's', "s_barrier"); B.vmwait(b2 - 1, ["t1"]); B.put(b2, 's', "s_barrier")
            B.auto_lgkm(look=2)
            def G1(t, txt, tag, sc):
                while B.has(t, 'v') or B.pre[t - 1] or not all(x.startswith("s_waitcnt") for x in B.pre[t]): t += 1
                B.putg(t, txt, tag, sc); return t
            t = 1
            for m0, tx in dmas(1)[o['pre1']:]: t = G1(t, tx, "t1", m0) + 4
            for x in adv: t = max(t, B.place(max(t - 3, 0), T, 'v', x) + 2)
            if o['pfhead'] == 1:
                for k in range(PD):
                    t = G1(t, pfs[0][0], "pf", None)
                    while B.pre[t + 1]: t += 1
                    B.put(t + 1, 's', pfs[0][1]); t += 4
            t = max(t, b1 + 2); st = 4 if t > 46 else 5
            for m0, tx in dmas(0): t = G1(t, tx, "t2", m0) + st
            t -= st; assert t < T
            B.resolve_vm(["t1"])
            print("head pattern:", B.pattern())
            a(f"{lab}_head:"); a(*B.lines(0, T)); a(*adv)
            if pfs and o['pfhead'] >= 2:
                for k in range(PD): a(pfs[0][1]) if k < o['pfhead'] - 1 else a(*pfs[0])
            if pfs: a(*pfs[0])
            a(f"s_branch {lab}_mid")

        def tail(g, ty, late=None):
            T = 128; H = 256; Z = H + NP * T; N = Z + 448
            b1, b2 = o['b1'], o['b2']
            B = Body(N, cyclic=False)
            for u in range(NP + 2):
                p = u % 2
                for n in range(T): B.m[u * T + n] = g.B.m[p * T + n]
                for q, rel, txt, reg in g.dl:
                    if q == p and u * T + rel >= 0: B.put(u * T + rel, 'd', txt, reg)
                B.put(u * T + b1 - 1, 's', "s_waitcnt lgkmcnt(0)"); B.put(u * T + b1, 's', "s_barrier")
            hi = lambda pi: g.preg[g.order[pi]][4:8]; lo = lambda pi: g.preg[g.order[pi]][0:4]
            qlist = [('hi', 1), ('hi', 5), ('hi', 6), ('hi', 7), ('hi', 0), ('hi', 4)] + [('hi', k) for k in range(8, 32)] + [('lo', 0), ('lo', 1)]
            qacc = lambda db, qs: (hi if qlist[2 * db + qs][0] == 'hi' else lo)(qlist[2 * db + qs][1])
            xf = lambda ks, qs: Reg('a', (128 + (ks * 2 + qs) * 4) if ks < 12 else (112 + ((ks - 12) * 2 + qs) * 4), 4)
            groups = o['groups']; region = [0, 0x10000, 0x8000, 0x18000, 0x20000, 0, 0x10000]
            ring = lambda f: Reg('a', 64 + 4 * (f % 12), 4)
            n = Z; f = 0; LW = o['LW']; gstart = []; qdone = {}; xors = []; na = 0
            for gi, grp in enumerate(groups):
                kss = [2 * t + h for t in grp for h in range(2)]
                gstart.append(Z + 2 * f - LW)
                for db in range(16):
                    for qs in range(2):
                        for j, ks in enumerate(kss):
                            B.set_mfma(n, qacc(db, qs), ring(f + j), xf(ks, qs), 0 if (gi == 0 and j == 0) else qacc(db, qs)); n += 1
                        qdone[db, qs] = n - 1
                    for j, ks in enumerate(kss):
                        if ks % 2 == 0:
                            va = 7 + na % 4; na += 1
                            xors.append((Z + 2 * (f + j) - LW, f"v_xor_b32 v{va}, {db*32 | region[ks//2]}, v6"))
                        for e in range(2):
                            B.put(Z + 2 * (f + j) - LW + e, 'd', f"ds_read_b64_tr_b16 {ring(f+j)[2*e:2*e+2]}, v{va} offset:{(ks%2)*16384 + e*4096}", ring(f + j)[2*e:2*e+2])
                    f += len(kss)
            lastread = Z + 2 * f - LW
            assert NP >= 4
            for u in range(NP + 2):
                kt = 16 - NP - 2 + u; p = u % 2
                if kt + 2 < 16:
                    for (m0, txt), gp in zip(dmas(p), g.gpos[p]): B.putg(gp - p * T + u * T, txt, f"kv{kt+2}", m0)
                    for gp, txt in g.advpos:
                        if gp // T == p: B.put(gp - p * T + u * T, 'v', txt)
            if pfs: B.putg(g.gpos[1][-1] + 3, pfs[1][0], "pf")
            t12 = (NP - 2) * T; xlast = {}
            for rnd in range(4):
                t = t12 + rnd * T + b2 if rnd < 3 else Z
                for tt in range(2 * rnd, min(2 * rnd + 2, 7)):
                    for qs in range(2):
                        for h in range(2):
                            tx = f"ds_read_b128 {xf(2*tt+h, qs)}, v{3 if h else 14} offset:{(tt%2)*4096 + qs*2048}"
                            if rnd == 2 and (t + 1 - b1 - 3) % 5 == 0: t += 1
                            if rnd < 3: t = B.place(t + 1, t + 12, 'd', tx, xf(2 * tt + h, qs))
                            else: t += 2; B.put(t, 'd', tx, xf(2 * tt + h, qs))
                xlast[rnd] = t
            def lgkm_cover(pos, lastpos):
                cnt = sum(1 for k in range(lastpos + 1, pos) for it in B.vec[k] if it[0] == 'd')
                B.put(pos, 's', f"s_waitcnt lgkmcnt({min(cnt, 15)})")
            xstart = {0: t12 + o['x0']}
            for rnd in range(1, 4):
                pos = max(t12 + rnd * T + 2, xlast[rnd - 1] + 8); lgkm_cover(pos, xlast[rnd - 1]); xstart[rnd] = pos + 1
            br4 = xlast[3] + 10; lgkm_cover(br4 - 1, xlast[3]); B.put(br4, 's', "s_barrier")
            bfree = gstart[1] + 10
            B.put(bfree - 1, 's', "s_waitcnt lgkmcnt(9)"); B.put(bfree, 's', "s_barrier")
            B.put(N - 3, 's', "s_waitcnt lgkmcnt(0)"); B.put(N - 2, 's', "s_barrier")
            bars = []
            for u in range(1, NP + 1): bars.append((u * T + b2, [f"kv{16-NP-2+u+1}"] + ([f"x{u-NP+2}"] if u >= NP - 2 else [])))
            for gi, grp in enumerate(groups): bars.append((gstart[gi] - 1, [f"wq{t}" for t in grp] + (["x3"], [], ["arm"])[gi]))
            for pos, tags in bars: B.vmwait(pos - 1, tags); B.put(pos, 's', "s_barrier")
            B.auto_lgkm(look=3, maxcnt=15)
            def gfree(t): return not B.has(t, 'g') and not any(k in 've' for k, *_ in B.vec[t]) and all(x.startswith("s_waitcnt") for x in B.pre[t]) and len(B.pre[t]) <= 1
            state = dict(last=-1)
            def G1(t, txt, tag, sc=None, mind=2):
                while True:
                    if gfree(t) and not any(B.has(k, 'g') for k in range(max(0, t - mind + 1), min(N, t + mind))) and (sc is None or not B.pre[t - 1] or (not B.pre[t - 2] and not B.has(t - 2, 'g'))): break
                    t += 1
                B.putg(t, txt, tag)
                if sc: B.put(t - 1 if not B.pre[t - 1] else t - 2, 's', sc)
                return t
            for pos, tx in xors: B.place(pos - 3, pos, 'v', tx, back=True)
            B.place((NP + 1) * T + b1, xors[0][0] - 3, 'v', "v_xor_b32 v6, s60, v6")
            wq = lambda t, j: (f"buffer_load_dwordx4 v{VQ}, s[16:19], {xsoff(j)} offen lds", f"wq{t}", f"s_add_u32 m0, {sW1K}, {region[t] + j*4096}")
            B.place(H, H + 5, 'v', f"v_accvgpr_read_b32 v{VXA}, a240")
            if o['pf'] and o['cpf2'] is not None:
                tq = B.place(H, H + 5, 'v', "v_accvgpr_read_b32 v14, a244"); tq = G1(max(tq + 1, H + o['cpf2']), m.code_pf(), "pf")
            else: tq = H
            if o['l2pf'] & 1:
                tq = B.place(max(tq + 1, H + o['l2at']), N, 'v', "v_accvgpr_read_b32 v14, a241"); tq = G1(tq + 1, "buffer_load_dword a243, v14, s[16:19], 0 offen", "pf")
            if o['l2pf'] & 2:
                tq = B.place(max(tq + 1, H + o['l2at']), N, 'v', "v_accvgpr_read_b32 v14, a253")
                for pp in (pAk, pAv): tq = G1(tq + 1, f"global_load_dword a243, v14, s[{pp}:{pp+1}]", "pf")
            assert tq < H + b2 - 6
            tq = B.place(tq + 1, tq + 20, 'v', "v_accvgpr_read_b32 v14, a242"); B.place(tq + 1, tq + 20, 'v', "v_xor_b32 v3, 64, v14")
            B.place(NP * T, NP * T + 20, 'v', f"v_lshlrev_b32 v{VST}, 4, v0")
            cur = [16]
            def wgroup(t, start, step):
                start = B.place(start - 2, start + 8, 'v', f"v_add_u32 v{VQ}, {((t - cur[0]) * 0x80000) & 0xffffffff:#x}, v{VQ}") + 1; cur[0] = t
                for j in range(8): start = G1(start, *wq(t, j)) + step
                return start
            for rnd in range(4):
                t = xstart[rnd]
                for tt in range(2 * rnd, min(2 * rnd + 2, 7)):
                    for qs in range(2):
                        for h in range(2):
                            im = h * 896 + tt * 128
                            t = G1(t, f"buffer_load_dwordx4 v{VXA}, s[20:23], {'s57' if qs else 0} offen offset:{im} lds", f"x{rnd}", f"s_add_u32 m0, s33, {((tt%2)*4096 + qs*2048 + h*1024 - im) & 0xffffffff:#x}") + 4
                assert t - 4 < t12 + rnd * T + b1 + 12, (rnd, t)
            t = wgroup(0, NP * T + b1 + 3, 5); t = wgroup(1, t, 5)
            plan = o['plan'][late] if o.get('plan') else None
            if not plan:
                w23 = o['w23'][late]
                t = wgroup(2, (NP + 1) * T + b1 + 3, w23); t = wgroup(3, t, w23)
                t = wgroup(4, max(t, br4 + 3), o['w4'])
                t = wgroup(5, max(t, bfree + 3), o['wstep']); t = wgroup(6, t, o['wstep'])
            def V1(t, txt): return B.place(t, N, 'v', txt)
            soff = (lambda k: (k[1] // 4) * m.TS + (k[1] % 4) * 8192 + k[0] * 1024) if ty == 0 else (lambda k: (k[1] // 2) * m.TS + (k[1] % 2) * 16384 + k[0] * 1024)
            base15 = (NP + 1) * T
            tv = 0; ready = {}; packed = {}
            def S1(t, txt):
                while B.pre[t] or B.has(t, 'g'): t += 1
                for y in (txt if isinstance(txt, tuple) else (txt,)): B.put(t, 's', y)
                return t
            S1(base15 - 20, (f"s_cmp_lt_u32 {sI}, 4", f"s_cselect_b32 s1, 2.0, {sFKV}")); S1(base15 - 30, "s_mov_b32 s56, s58")
            def store(t, pi, base, tag):
                r = {2: hi(0), 3: hi(4)}.get(pi) or lo(pi); off = soff(g.order[pi])
                return G1(t, f"buffer_store_dwordx4 {r}, v{VST}, s[12:15], s59 offen offset:{off % 4096}{o['stfl']}", tag, f"s_add_u32 s59, {base}, {off - off % 4096}")
            ts = Z + o['st0']; spos = {}; xslot = None
            if plan:
                todo = list(o['stord'] + tuple(range(6, 32))); rel = {2: base15 + b1 + 3, 3: 0, 4: br4 + 3, 5: bfree + 3, 6: 0}; tq_ = ts
                for it in plan.split():
                    if it[0] == 'S':
                        for k in range(int(it[1:])): pi = todo.pop(0); ts = spos[pi] = store(tq_, pi, "s56", "st"); tq_ = max(tq_ + o['cs'], ts + 2)
                    elif it[0] == 'W': t = tq_ = wgroup(int(it[1:]), max(tq_, rel[int(it[1:])]), o['cl'])
                    elif it[0] == '@': tq_ = max(tq_, Z + int(it[1:]))
                    elif it[0] == 'X': xslot = tq_; tq_ += 60
                assert not todo
                ts += o['ststep']
            for pi in (() if plan else o['stord'] + tuple(range(6, 32))):
                if late and pi >= 4:
                    if pi < 6: ts += o['ststep0']
                    continue
                ts = spos[pi] = store(ts, pi, "s56", "st")
                ts += o['ststep'] if ts >= Z + o['stsw'] else o['ststep0']
            if late and not plan:
                tl = Z + o['stl0']
                for pi in range(4, 32): tl = spos[pi] = store(tl, pi, "s56", "st"); tl += o['stlstep']
            print("stores end", spos[31] - Z)
            def cv(pi, dst, s0, s1):
                nonlocal tv
                for i, (x, y) in enumerate(((s0[0], s0[1]), (s0[2], s0[3]), (s1[0], s1[1]), (s1[2], s1[3]))): tv = V1(tv, f"v_cvt_pk_bf16_f32 {dst[i]}, {x}, {y}")
                packed[pi] = (dst, tv)
            for pi in (0, 1, 2, 4, 5, 3) + tuple(range(6, 32)):
                k = g.order[pi]; tv = max(tv, base15 + g.done[k] + 8)
                if pi in (2, 3):
                    ta, tb = (hi(0), hi(1)) if pi == 2 else (hi(4), hi(5))
                    for i in range(8): tv = V1(tv, f"v_accvgpr_read_b32 {(ta if i < 4 else tb)[i%4]}, {g.preg[k][i]}")
                    cv(pi, ta, ta, tb); ready['hi', 1 if pi == 2 else 5] = tv
                else:
                    cv(pi, lo(pi), lo(pi), hi(pi)); ready['hi', pi] = tv
            for pi in range(32):
                assert packed[pi][1] < spos[pi], (pi, packed[pi][1], spos[pi])
                ready[{2: ('hi', 0), 3: ('hi', 4)}.get(pi, ('lo', pi))] = spos[pi]
            for idx, kq in enumerate(qlist): assert ready[kq] < Z + 4 * idx - 1, (kq, ready[kq], Z + 4 * idx)
            tp = ts - o['ststep'] + o['pubgap']
            late_pub = tp > N - 12
            if not late:
                while B.pre[tp] or B.pre[tp - 1] or B.has(tp, 'g'): tp += 1
                B.vmwait(tp - 1, ["st"]); B.put(tp, 's', "s_barrier")
                B.place(Z, tp, 'v', f"v_accvgpr_read_b32 v{VONE}, a245")
                G1(tp + 1, f"buffer_store_dword v{VONE}, v{VONE}, s[12:15], {sFKV} offen sc1", "fl", mind=1)
            tz = B.place(Z + 20, N, 'v', "v_mov_b32 v12, 0"); tz = G1(tz + 1, f"global_load_dword v5, v12, s[{pDbg}:{pDbg+1}] offset:128 sc1", "arm")
            tz = B.place(tz + 1, N, 'v', "v_and_b32 v12, 11, v0"); B.place(tz + 1, N, 'v', "v_lshlrev_b32 v12, 2, v12")
            sc, ve, vm = m.s1a_ops(); tz = Z + 40
            for x in sc:
                tz += 1
                while B.pre[tz] or B.has(tz, 'g'): tz += 1
                B.put(tz, 's', x)
            tz = max(tz, spos[16])
            for x in ve: tz = B.place(tz + 1, N, 'v', x)
            tve = tz; tz = max(tz + 1, xslot or Z + o['s1gl' if late else 's1g'])
            for x in vm: tz = G1(tz, x, "s1") + 4
            ts1 = tz
            tz = max(t, tve) + 2
            for x in m.att_scalars(ty):
                tz += 1
                while B.pre[tz] or B.has(tz, 'g'): tz += 1
                for y in (x if isinstance(x, tuple) else (x,)): B.put(tz, 's', y)
            assert tz < N - o['kvlead']
            tz = max(tz, ts1)
            for x in m.att_scalars2(ty): tz = S1(tz + 1, x)
            assert tz < N - 4
            G1(N - o['kvlead'], "buffer_load_dword v13, v12, s[12:15], s58 offen sc1", "kvp")
            tz = B.place(Z + 130, N, 'v', f"v_add_u32 v{V_D1}, 4096, v{V_L16}")
            tz = Z + 40
            for x in m.rthr(): tz = B.place(tz + 1, N, 'v', x)
            for k in range(16):
                for j, x in enumerate((f"v_cmp_gt_i32 vcc, {16*(k//4) + k%4}, v{V_R}", "v_cndmask_b32 v3, 0, v15, vcc", f"v_accvgpr_write_b32 a{224+k}, v3")): tz = B.place(tz + (1 if j == 1 else 0), N, 'v', x)
            print("masks end", tz - Z)
            rest = []; tv = 0
            for s in range(8):
                for qs in range(2):
                    ra, rb = qacc(2 * s, qs), qacc(2 * s + 1, qs)
                    cvs = [f"v_cvt_pk_bf16_f32 {ra[i]}, {x}, {y}" for i, (x, y) in enumerate(((ra[0], ra[1]), (ra[2], ra[3]), (rb[0], rb[1]), (rb[2], rb[3])))]
                    wrs = [f"v_accvgpr_write_b32 {Q(qs,s)[i]}, {ra[i]}" for i in range(4)]
                    off = qs * 0x2000 + s * 1024
                    sto = (f"buffer_store_dwordx4 {ra}, v{VST}, s[12:15], s59 offen offset:{off % 4096}{o['qfl']}", "qst", f"s_add_u32 s59, s62, {off - off % 4096}")
                    tv = max(tv, qdone[2 * s + 1, qs] + 8)
                    free = sum(1 for k in range(min(tv, N), N - 4) if B.fits(k, 'v'))
                    if free >= 20 and not rest:
                        for r in (ra, rb):
                            for i in range(4): tv = V1(tv, f"v_mul_f32 {r[i]}, s34, {r[i]}")
                        for x in cvs: tv = V1(tv, x)
                        if ty == 1 and not o['qlate']: G1(tv + 1, *sto)
                        for x in wrs: tv = V1(tv, x)
                    else:
                        rest += [f"v_pk_mul_f32 {r[i:i+2]}, {r[i:i+2]}, s[34:35]" for r in (ra, rb) for i in (0, 2)] + cvs + ([sto[2], sto[0]] if ty == 1 and not o['qlate'] else []) + wrs
            vops = B.resolve_vm()
            print(f"tail{ty} pattern:", " ".join(B.pattern().split()[H:])); print("over", len([x for x in B.report() if x[0] >= H]), "rest", len(rest), "late_pub", late_pub)
            ts_on = o.get('tilestamp')
            if not late:
                g.common = B.lines(H, base15)
                for u in range(NP - 1):
                    if ts_on: m.st.mark(a, 20 + u)
                    a(*B.lines(H + u * T, H + (u + 1) * T))
                a(f"s_cmp_ge_u32 {sI}, 4", f"s_cbranch_scc1 {name}_late{ty}")
            else:
                assert g.common == B.lines(H, base15)
                a(f"{name}_late{ty}:")
            if ts_on: m.st.mark(a, 23)
            a(*B.lines(base15, Z)); m.mark("kv_end")
            for u in range(4):
                a(*B.lines(Z + 112 * u, Z + 112 * (u + 1)))
                if ts_on: m.st.mark(a, 24 + u)
            m.mark("q_end")
            assert not late_pub and vops.index("kvp") > max(i for i, x in enumerate(vops) if x == 's1')
            a(f"s_waitcnt vmcnt({len(vops) - 1 - vops.index('kvp')})", "v_cmp_ne_u32 s[16:17], 0, v13", "v_cmp_gt_u32 vcc, 256, v5", "s_or_b64 vcc, vcc, s[16:17]",
              f"s_mov_b32 m0, s{S_KM}", "s_cselect_b32 s48, 0, 1", f"s_cselect_b32 s52, 2.0, s{S_KP}")
            interleave(a, rest, [(["s_bitset1_b32 m0, 12", "s_nop 0"] if j == 4 else []) + [AT.dma(52, j).replace(" lds", " sc1 lds")] for j in range(8)])

        def loop(g, lab):
            B = g.B
            if o['kvbr']:
                n_ = B.n; fr = [i for i in range(n_ - 6, n_ - 1) if not B.pre[i] and not B.has(i, 'g')][-2:]
                assert not any(x.startswith("s_add") for i in range(fr[1], n_) for x in B.pre[i])
                one = lambda i: B.lines(i, i + 1)[:1] + ({fr[0]: ["s_add_u32 s61, s61, 1"], fr[1]: ["s_cmp_lt_u32 s61, s55"]}.get(i, [])) + B.lines(i, i + 1)[1:]
                L = B.lines(0, 128) + [f"{lab}_mid:"] + [x for i in range(128, n_) for x in one(i)] + [f"s_cbranch_scc1 {lab}", f"s_cmp_lt_u32 s61, {niter}", f"s_cbranch_scc1 {lab}_side"]
            else:
                k = [i for i in range(4, 40) if not B.pre[i] and not B.vec[i]][0]
                pre_k = list(B.pre[k])
                L = B.lines(0, k) + [B.m[k][0], "s_cmp_eq_u32 s61, s55", f"s_cbranch_scc1 {lab}_side", f"{lab}_back:"] + B.lines(k + 1, 128) + [f"{lab}_mid:"] + B.lines(128, B.n - 2)
                L += [B.m[B.n-2][0], "s_add_u32 s61, s61, 1"] + B.lines(B.n - 2, B.n - 1)[1:] + B.lines(B.n - 1, B.n) + [f"s_cmp_lt_u32 s61, {niter}", f"s_cbranch_scc1 {lab}"]
            if o.get('tilestamp'):
                def stp(off): return ["s_memrealtime s[96:97]", "s_memtime s[98:99]", "v_accvgpr_read_b32 v0, a255", "s_waitcnt lgkmcnt(0)", "s_lshl_b32 s97, s61, 2", f"s_add_u32 s97, s97, {off}", "s_add_u32 s99, s97, 1", "s_mov_b32 vcc_lo, m0",
                                      "s_mov_b32 m0, s97", "v_writelane_b32 v0, s96, m0", "s_mov_b32 m0, s99", "v_writelane_b32 v0, s98, m0", "s_mov_b32 m0, vcc_lo", "v_accvgpr_write_b32 a255, v0", "v_mbcnt_lo_u32_b32 v0, -1, 0", "v_mbcnt_hi_u32_b32 v0, -1, v0"]
                im = L.index(f"{lab}_mid:"); L = stp(16) + L[:im + 1] + stp(18) + L[im + 1:]
            if HEAD: head(g, lab)
            a(".p2align 6", f"{lab}:"); a(*L)
            if o.get('rerun'):
                a("s_add_u32 s97, s97, 1", f"s_cmp_gt_u32 s97, {o['rerun']}", f"s_cbranch_scc1 {lab}_norerun", "s_waitcnt vmcnt(0) lgkmcnt(0)", "s_barrier",
                  "s_lshl_b32 s58, s3, 6", "v_add_u32 v0, s58, v0", f"s_branch {name}_go", f"{lab}_norerun:")
        loop(G[0], f"{name}_kloop"); tail(G[0], 0, 0); a(f"s_branch {name}_kvdone"); tail(G[0], 0, 1)
        a(f"s_branch {name}_kvdone")
        for lab in ("kloop", "vloop"):
            a(f"{name}_{lab}_side:", "s_mov_b64 exec, 1", f"global_atomic_add v3, v15, s[{pDbg}:{pDbg+1}] offset:128 sc1", "s_mov_b64 exec, -1", f"s_mov_b32 s55, {niter}", f"s_branch {name}_{lab}{'' if o['kvbr'] else '_back'}")
        loop(G[1], f"{name}_vloop"); tail(G[1], 1, 0); a(f"s_branch {name}_kvdone"); tail(G[1], 1, 1)
        a(f"{name}_kvdone:")
        m.mark("q_stored")

    S1K = lambda m, j: 32 + 8 * j
    S1V = lambda m, j: 72 + 8 * j
    S1W = lambda m, j: 88 + 8 * j
    def s1a_ops(m):
        sc = [f"s_and_b32 s36, {sIDX}, 31", f"s_lshr_b32 s37, {sIDX}, 5", "s_lshl_b32 s38, s3, 4", "s_lshl_b32 s39, s36, 6", "s_add_u32 s38, s38, s39", "s_mul_i32 s38, s38, 896",
              "s_lshl_b32 s39, s37, 7", "s_add_u32 s38, s38, s39", "s_lshl_b32 s39, s37, 9"]
        t = Asm(); srd(t, 4, pAk, 2048 * 896); srd(t, 8, pAv, 2048 * 896); srd(t, 20, pAsh, 448 * 8); sc += t.L
        ve = ["v_lshrrev_b32 v120, 3, v0", "v_mul_u32_u24 v120, 1792, v120", "v_and_b32 v121, 7, v0", "v_lshl_add_u32 v120, v121, 4, v120", "v_add_u32 v120, s38, v120", "v_lshlrev_b32 v121, 6, v121",
              f"v_subrev_u32 v122, {896*3}, v120", f"v_subrev_u32 v123, {896*2}, v120", f"v_subrev_u32 v128, 896, v120"]
        q = lambda r: f"v[{r}:{r+3}]"
        vm = [f"buffer_load_dwordx4 {q(m.S1K(j))}, v{(122,123,128)[j]}, s[4:7], 0 offen" for j in range(3)]
        vm += [f"buffer_load_dwordx4 {q(m.S1K(3+j))}, v120, s[4:7], 0 offen offset:{896*j}" for j in range(2)]
        vm += [f"buffer_load_dwordx4 {q(m.S1V(j))}, v120, s[8:11], 0 offen offset:{896*j}" for j in range(2)]
        vm += [f"buffer_load_dwordx4 {q(m.S1W(j))}, v121, s[20:23], s39 offen offset:{16*j}" for j in range(4)]
        return sc, ve, vm
    def s1b(m):
        a, name = m.a, m.n
        a(f"s_cmp_ge_u32 {sJJ}, 14", f"s_cbranch_scc1 {name}_s1b", "s_mov_b32 s36, 0xffff0000", f"s_and_b32 s33, {sIDX}, 31", f"s_lshr_b32 s34, {sIDX}, 5")
        def unpack(dst, src, hi): a(f"v_and_b32 v{dst}, s36, v{src}" if hi else f"v_lshlrev_b32 v{dst}, 16, v{src}")
        T = 128
        for c2 in range(4):
            for j in range(5):
                for h in range(2): unpack(T + 2 * j + h, m.S1K(j) + c2, h)
            for j in range(2):
                for h in range(2): unpack(T + 10 + 2 * j + h, m.S1V(j) + c2, h)
            for j in range(4):
                for h in range(2): unpack(T + 14 + 2 * j + h, m.S1W(c2) + 2 * h + j // 2, j % 2)
            pr = lambda r: f"v[{T+r}:{T+r+1}]"
            for t in range(2):
                d = pr(22 + 2 * t)
                a(f"v_pk_mul_f32 {d}, {pr(2*t)}, {pr(20)}", f"v_pk_fma_f32 {d}, {pr(2+2*t)}, {pr(18)}, {d}", f"v_pk_fma_f32 {d}, {pr(4+2*t)}, {pr(16)}, {d}",
                  f"v_pk_fma_f32 {d}, {pr(6+2*t)}, {pr(14)}, {d}", f"v_pk_mul_f32 {d}, {d}, {pr(10+2*t)}", f"v_cvt_pk_bf16_f32 v{16+4*t+c2}, v{T+22+2*t}, v{T+23+2*t}")
        a("v_lshrrev_b32 v26, 3, v0", "v_lshlrev_b32 v26, 8, v26", "v_and_b32 v25, 7, v0", "v_lshl_add_u32 v26, v25, 4, v26", "s_lshl_b32 s35, s3, 11", "s_add_u32 s35, s35, 0x20000", "v_add_u32 v26, s35, v26")
        for t in range(2): a(f"ds_write_b128 v26, v[{16+4*t}:{19+4*t}] offset:{128*t}")
        a("v_bfe_u32 v24, v0, 2, 2", "v_bfe_u32 v28, v0, 4, 1", "v_lshl_add_u32 v24, v28, 3, v24", "v_lshlrev_b32 v24, 2, v24", "v_lshrrev_b32 v28, 5, v0", "v_add_u32 v24, v24, v28",
          "v_lshlrev_b32 v24, 7, v24", "v_and_b32 v28, 3, v0", "v_lshl_add_u32 v24, v28, 3, v24", "s_lshl_b32 s35, s3, 5", "s_add_u32 s35, s35, 0x20000", "v_add_u32 v24, s35, v24")
        a("v_and_b32 v25, 15, v0", f"v_mul_u32_u24 v25, {m.CS}, v25", "v_lshrrev_b32 v28, 4, v0", "v_lshl_add_u32 v25, v28, 4, v25",
          "s_lshl_b32 s35, s34, 2", "s_add_u32 s35, s35, s3", f"s_mul_i32 s35, s35, {16*m.CS}", "s_lshl_b32 s36, s33, 7", "s_add_u32 s35, s35, s36", f"s_add_u32 s35, s35, {WS_U}")
        a(f"{name}_s1b:")
    def s1c(m):
        a, name = m.a, m.n
        a(f"s_cmp_ge_u32 {sJJ}, 14", f"s_cbranch_scc1 {name}_s1c")
        for ph in range(2):
            for e in range(2): a(f"ds_read_b64_tr_b16 v[{16+4*ph+2*e}:{17+4*ph+2*e}], v24 offset:{(16*e + 2*ph)*128}")
        a("s_waitcnt lgkmcnt(0)")
        for ph in range(2): a(f"buffer_store_dwordx4 v[{16+4*ph}:{19+4*ph}], v25, s[12:15], s35 offen offset:{64*ph} sc1")
        a(f"{name}_s1c:")

    def rthr(m): return [f"v_and_b32 v{V_R}, 15, v0", "v_lshrrev_b32 v3, 4, v0", "v_lshlrev_b32 v3, 2, v3", f"v_sub_u32 v{V_R}, v{V_R}, v3", f"v_lshrrev_b32_e64 v3, 6, {sW1K}", f"v_add_u32 v{V_R}, v3, v{V_R}",
                         f"v_mov_b32 v15, {fbits(-1e30)}"]
    def att_scalars2(m, role):
        L = ["s_and_b32 s4, s2, 127", "s_lshl_b32 s4, s4, 2", "s_add_u32 s4, s4, s3"]
        if role: L += ["s_lshl_b32 s6, s4, 10", f"s_add_u32 s6, s6, {WS_PL}", f"s_mul_i32 s4, s4, {m.IS}", f"s_add_u32 s4, s4, {WS_PO}", "s_add_u32 s5, s4, 0x2000", "s_mov_b32 s7, 0", "s_mov_b32 s53, 0",
                       ("s_cmp_eq_u32 s38, 0", "s_cmov_b32 s4, 2.0"), ("s_cmp_eq_u32 s38, 0", "s_cmov_b32 s5, 2.0"), ("s_cmp_eq_u32 s38, 0", "s_cmov_b32 s6, 2.0")]
        else: L += [f"s_mul_i32 s5, s4, {m.IS}", f"s_add_u32 s5, s5, {WS_CTX}", "s_add_u32 s4, s5, 0x2000", "s_mov_b32 s6, 2.0", "s_min_u32 s7, s38, 1", (f"s_cmp_eq_u32 s{S_LEFT}, 1", "s_cselect_b32 s53, 1, 0"),
                    ("s_cmp_eq_u32 s38, 0", "s_cmov_b32 s4, 2.0"), ("s_cmp_eq_u32 s38, 0", "s_cmov_b32 s5, 2.0"), ("s_cmp_eq_u32 s38, 0", "s_cmov_b32 s60, s58")]
        return L + ["s_mov_b64 s[8:9], s[12:13]", "s_mov_b32 s10, s14", "s_mov_b32 s76, 0", "s_movk_i32 s77, 0x1000", "s_mov_b32 s51, 0"] + m.wo_scalars
    def att_scalars(m, role):
        L = [f"s_and_b32 s58, {sFKV}, ~127", f"s_lshl_b32 s37, {sI}, 1", f"s_sub_i32 s38, {32-m.o['nA']}, s37", "s_max_i32 s38, s38, 0",
             f"s_mul_i32 s49, {sH}, {m.HS}", "s_lshl_b32 s50, s3, 13", "s_add_u32 s49, s49, s50", f"s_mov_b32 s54, {2*role}"]
        if role: L += [f"s_sub_u32 s{S_LEFT}, 31, s37", f"s_sub_u32 s{S_LEFT}, s{S_LEFT}, s38", f"s_mul_i32 s55, s38, {m.TS}", f"s_add_u32 s{S_KP}, s55, s49", "s_add_u32 s60, s58, 16", f"s_sub_u32 s{S_THR}, 17, s37"]
        else: L += [f"s_add_u32 s{S_LEFT}, s37, 1", f"s_mov_b32 s{S_KP}, s49", f"s_add_u32 s60, {sFPO}, 4", f"s_mov_b32 s{S_THR}, 2"]
        if role and m.o['rot']:
            assert m.o['nA'] >= 19
            L += [f"s_sub_u32 s66, s{S_KP}, {m.TS}", f"s_add_u32 s{S_KP}, s49, {15*m.TS}", f"s_add_u32 s67, s49, {16*m.TS}", f"s_add_u32 s68, s66, {m.VB}", f"s_add_u32 s69, s67, {m.VB}",
                  f"s_mov_b32 s70, {-m.TS & 0xffffffff:#x}", "s_mov_b32 s71, s70"]
        else: L += ["s_mov_b32 s66, 1", "s_mov_b32 s68, 1", f"s_mov_b32 s70, {m.TS}", "s_mov_b32 s71, s70"]
        L += [f"s_add_u32 s{S_VP}, s{S_KP}, {m.VB}", f"s_mov_b32 s{S_KM}, s50", f"s_add_u32 s{S_VM}, s50, 0x10000",
              f"s_lshr_b32 s61, {sIDX}, 4", "s_lshl_b32 s61, s61, 7", f"s_add_u32 s61, s61, {F_U}", f"s_mov_b32 s{S_BIG}, {fbits(2.0**24)}",
              f"s_lshl_b32 s30, {sIDX}, 1", "s_lshr_b32 s31, s3, 1", "s_add_u32 s30, s30, s31", "s_min_u32 s30, s30, 223", "s_lshl_b32 s30, s30, 2"]
        return L
    def attn(m):
        a, name, o = m.a, m.n, m.o
        nA, L = o['nA'], o['L']
        sNB, sHB, sW8K, sMODE, sQB = "s38", "s49", "s50", "s54", "s51"
        dma = lambda sp, j: AT.dma(sp, j).replace(" lds", " sc1 lds")
        a(f"s_load_dword s31, s[{pAD}:{pAD+1}], s30")
        m.s1b()
        m.mark("s1_done")
        def issue(sm, sp, a):
            a(f"s_mov_b32 m0, s{sm}", "s_nop 0")
            for j in range(8):
                if j == 4: a("s_bitset1_b32 m0, 12", "s_nop 0")
                a(dma(sp, j))
            a(f"s_add_u32 s{sp}, s{sp}, s70", f"s_xor_b32 s{sm}, s{sm}, 0x8000")
        def qload(qb, dst, a):
            a(f"s_add_u32 s55, {qb}, s3", f"s_mul_i32 s55, s55, {m.IS}", f"s_add_u32 s55, s55, {WS_CTX}", "s_add_u32 s56, s55, 0x2000")
            for qs in range(2):
                for s in range(8): a(f"buffer_load_dwordx4 a[{dst+(qs*8+s)*4}:{dst+(qs*8+s)*4+3}], v{V_D0 if s < 4 else V_D1}, s[12:15], s{55+qs} offen offset:{(s%4)*1024} sc1")
        BIG = fbits(2.0**24)
        sFQ, sFU, sSSM = "s60", "s61", "s62"
        fill = [f"v_mov_b32 v{V_KA}, v{V_L16}", f"v_add_u32 v{V_VA}, 0x10000, v{V_L16}"] + [f"v_mov_b64 v[{i}:{i+1}], 0" for i in range(96, 256, 2)] + [f"v_mov_b32 {r}, 0" for r in LS + NM]
        fill += [f"v_mov_b32 v{V_T2}, v{V_L16}"]
        fill += [f"v_mul_u32_u24 v{V_T3}, {sROLE}, v12", "v_accvgpr_write_b32 a246, 1", "v_accvgpr_write_b32 a247, 1", f"s_cmp_lt_u32 {sJJ}, 14", f"s_cselect_b32 {sSSM}, 1, 0", f"s_andn2_b32 {sSSM}, {sSSM}, {sROLE}"]
        wosw = [f"v_accvgpr_read_b32 v{V_T2}, a241", f"s_mov_b64 s[8:9], s[{pWo}:{pWo+1}]", f"s_mov_b32 s10, {4096*896}"]
        if o['apf']:
            fill += ["s_mul_i32 s39, s2, 7168", "s_cmp_eq_u32 s3, 1", "s_cselect_b32 s36, 1835008, 0", "s_add_u32 s39, s39, s36",
                     f"s_mov_b64 s[4:5], s[{pWo}:{pWo+1}]", "s_cmp_eq_u32 s3, 2", f"s_cmov_b64 s[4:5], s[{pAssm}:{pAssm+1}]", "s_cmp_eq_u32 s3, 3", f"s_cmov_b64 s[4:5], s[{pAq}:{pAq+1}]",
                     "s_add_u32 s4, s4, s39", "s_addc_u32 s5, s5, 0", "s_movk_i32 s6, 7168", f"s_mov_b32 s39, {(-1024*o['apf']) & 0xffffffff:#x}",
                     f"v_lshrrev_b32 v{V_T3}, 3, v0", f"v_lshlrev_b32 v{V_T3}, 20, v{V_T3}", f"v_lshl_add_u32 v{V_T3}, v0, 7, v{V_T3}"]
        a("s_add_u32 s52, s52, s70", f"s_or_b32 m0, s{S_KM}, 0x8000", "s_nop 0")
        interleave(a, fill, [(["s_bitset1_b32 m0, 12", "s_nop 0"] if j == 4 else []) + [dma(52, j)] for j in range(8)])
        def mask(qs, park):
            a(f"v_mov_b32 v16, {fbits(-1e30)}")
            for kb in range(4):
                for i in range(4): a(f"v_cmp_gt_i32 s[{16+2*i}:{17+2*i}], {16*kb+i}, v{V_R}")
                for i in range(4): a(f"v_cndmask_b32 {'v%d' % (20+i) if park else C(kb,qs)[i]}, {NM[qs]}, v16, s[{16+2*i}:{17+2*i}]")
                if park: a(*[f"v_accvgpr_write_b32 a{224+4*kb+i}, v{20+i}" for i in range(4)])
        mread = lambda kb: [f"v_accvgpr_read_b32 {C(kb,0)[i]}, a{224+4*kb+i}" for i in range(4)]
        a(f"s_cmp_ge_u32 s{S_LEFT}, 2", f"s_cbranch_scc1 {name}_nomask0")
        for kb in range(4): a(*mread(kb))
        a(f"{name}_nomask0:", "v_accvgpr_read_b32 v27, a245", f"s_lshl_b32 s36, {sIDX}, 2", f"s_add_u32 s36, s36, {F_U}", f"s_cmp_lt_u32 {sJJ}, 14", "s_cselect_b32 s36, s36, 2.0",
          f"s_add_u32 s33, {sFPO}, 4", f"s_cmp_eq_u32 {sROLE}, 1", "s_cselect_b32 s33, s33, 2.0",
          "s_cmp_eq_u32 s48, 0", f"s_cbranch_scc1 {name}_kvlate", f"s_add_u32 s{S_KP}, s52, s70", f"{name}_kvok:", "s_waitcnt vmcnt(8) lgkmcnt(0)", "s_barrier")
        real = a; a = m.a = Asm()
        a(f"{name}_kvlate:", "v_cmp_gt_u32 vcc, 256, v5", "v_mov_b32 v29, 0", "s_mov_b32 s32, 0", f"s_cbranch_vccz {name}_armed",
          f"{name}_pollA:", f"global_load_dword v28, v29, s[{pDbg}:{pDbg+1}] offset:128 sc1", "s_add_u32 s32, s32, 1", "s_waitcnt vmcnt(0)", "v_cmp_gt_u32 vcc, 256, v28",
          "s_cmp_lt_u32 s32, 0x80000", "s_cselect_b64 vcc, vcc, 0", f"s_cbranch_vccnz {name}_pollA", f"{name}_armed:")
        m.poll("s58", 12, 28, 29)
        m.mark("kv_flag")
        issue(S_KM, S_KP, a); issue(S_KM, S_KP, a)
        a(f"s_branch {name}_kvok")
        late = a.L; a = m.a = real
        m.mark("att_go")
        B0 = Body(64, cyclic=False); set_qk(B0, 0)
        for n in range(8): a(fload(n))
        a("buffer_store_dword v27, v27, s[12:15], s1 offen sc1")
        a("buffer_store_dword v27, v27, s[12:15], s33 offen sc1")
        m.s1c()
        a(f"s_mov_b32 m0, s{S_VM}", "s_waitcnt lgkmcnt(0)")
        for n in range(8, 32): B0.put(2 * n - 16, 'd', fload(n), F(n))
        B0.auto_lgkm(look=2, maxcnt=15)
        for j in range(8):
            B0.put(1 + 4 * j, 'g', dma(S_VP, j))
            if j == 4: B0.put(4 * j, 's', "s_bitset1_b32 m0, 12")
        B0.put(32, 's', f"s_add_u32 s{S_VP}, s{S_VP}, s71"); B0.put(34, 's', f"s_xor_b32 s{S_VM}, s{S_VM}, 0x8000")
        rest = []; te = 0; ta = 0; epos = {}
        els = [(kb, qs, i) for kb in range(4) for qs in range(2) for i in range(4)]
        ex = lambda kb, qs, i: f"v_exp_f32 {E(kb,qs)[i]}, {S(kb,qs)[i]}"
        ad = lambda kb, qs, i: f"v_add_f32 {TS[qs]}, {E(0,qs)[0] if (kb == 0 and i == 1) else TS[qs]}, {E(kb,qs)[i]}"
        for el in els:
            try: te = B0.place(max(te, 16 * el[0] + 8 * el[1] + 13), 64, 'e', ex(*el)); epos[el] = te
            except RuntimeError: te = 64; rest.append(ex(*el))
        rest2 = []
        for el in els:
            if el[0] == 0 and el[2] == 0: continue
            try: ta = B0.place(max(ta + 1, epos.get(el, 64) + 1), 64, 'v', ad(*el))
            except RuntimeError: ta = 64; rest2.append(ad(*el))
        print("first pattern:", B0.pattern(), len(rest), len(rest2))
        a(*B0.lines())
        a(f"v_xor_b32 v{V_KA}, 0x8000, v{V_KA}", "s_waitcnt vmcnt(8)", "s_barrier")
        for n in range(L // 2): a(fload(n))
        a("buffer_store_dword v27, v27, s[12:15], s36 offen sc1")
        a(*rest); a(*rest2)
        a(f"{name}_first:", f"v_add_f32 v{V_T0}, {TS[0]}, {TS[1]}", f"v_min_f32 v{V_T1}, {TS[0]}, {TS[1]}", f"v_cmp_nge_f32 vcc, s{S_BIG}, v{V_T0}",
          f"s_mov_b32 s{S_FLOOR}, 0xff800000", f"s_cbranch_vccnz {name}_slow2", f"v_cmp_gt_f32 vcc, {fbits(2.0**-24)}, v{V_T1}", f"s_cbranch_vccnz {name}_rowchk",
          f"{name}_firstok:", f"s_mov_b32 s{S_FLOOR}, 0", "s_waitcnt lgkmcnt(0)", f"s_cmp_gt_u32 s{S_LEFT}, s{S_THR}", f"s_cbranch_scc0 {name}_ret2")
        front = a; a = m.a = Asm()
        a(*late)
        a(f"{name}_rowchk:", f"v_mov_b32 v16, {TS[0]}", f"v_mov_b32 v17, {TS[1]}")
        for sw in ("v_permlane32_swap_b32", "v_permlane16_swap_b32"):
            a("v_mov_b32 v18, v16", "v_mov_b32 v19, v17", "s_nop 0", f"{sw} v16, v18", f"{sw} v17, v19", "s_nop 0", "v_add_f32 v16, v16, v18", "v_add_f32 v17, v17, v19")
        a("v_min_f32 v16, v16, v17", f"v_cmp_gt_f32 vcc, {fbits(2.0**-24)}, v16", f"s_cbranch_vccz {name}_firstok", f"s_branch {name}_slow2")
        a(f"{name}_slow:", f"s_cmp_lg_u32 s{S_BIG}, {BIG}", f"s_cbranch_scc1 {name}_switched", "s_nop 5", f"{name}_slow2:")
        for qs in range(2):
            mx, t = f"v{V_T0+qs}", "v16"
            el = [S(kb, qs)[i] for kb in range(4) for i in range(4)]
            a(f"v_max3_f32 {mx}, {el[0]}, {el[1]}, {el[2]}")
            for k in range(3, 15, 2): a(f"v_max3_f32 {mx}, {mx}, {el[k]}, {el[k+1]}")
            a(f"v_max_f32 {mx}, {mx}, {el[15]}")
            for sw in ("v_permlane32_swap_b32", "v_permlane16_swap_b32"):
                a(f"v_mov_b32 {t}, {mx}", "s_nop 1", f"{sw} {mx}, {t}", "s_nop 1", f"v_max_f32 {mx}, {mx}, {t}")
            a(f"v_max_f32 {mx}, s{S_FLOOR}, {mx}", f"v_sub_f32 {NM[qs]}, {NM[qs]}, {mx}")
            for e in el: a(f"v_sub_f32 {e}, {e}, {mx}")
            for kb in range(4):
                for i in range(4): a(f"v_exp_f32 {E(kb,qs)[i]}, {S(kb,qs)[i]}", f"v_mov_b32 {C(kb,qs)[i]}, {NM[qs]}")
            ee = [E(kb, qs)[i] for kb in range(4) for i in range(4)]
            a(f"v_add_f32 {TS[qs]}, {ee[0]}, {ee[1]}")
            for k in range(2, 16): a(f"v_add_f32 {TS[qs]}, {TS[qs]}, {ee[k]}")
        mask(0, True)
        a("s_waitcnt lgkmcnt(0)", f"s_cmp_lg_u32 s{S_FLOOR}, 0", f"s_mov_b32 s{S_FLOOR}, 0", f"s_cbranch_scc1 {name}_ret")
        for qs in range(2):
            f = f"v{V_T0+qs}"
            a(f"v_exp_f32 {f}, -{f}", "s_nop 0", f"v_mul_f32 {LS[qs]}, {LS[qs]}, {f}")
            for db in range(16):
                for i in range(4): a(f"v_mul_f32 {O(db,qs)[i]}, {O(db,qs)[i]}, {f}")
        a(f"s_branch {name}_ret")
        rare = a.L; a = m.a = front
        B = AT.main_body(name, L, kg=o['kg'], vg=o['vg'], look=o['look'], down=((66, 67, 70), (68, 69, 71)), kgen=(V_T2, 39, 76, 77), tstride=m.TS, bclean=o['bclean'], onebr=o['onebr'],
                         pfslot=(45, f"buffer_load_dword a243, v{V_T3}, s[4:7], s39 offen", "s_add_u32 s39, s39, 1024") if o['apf'] else None, pollslot=(o['pgap'], f"buffer_load_dword a246, v{V_T3}, s[12:15], {sFQ} offen sc1"))
        for i in range(B.n): B.vec[i] = [(k, t.replace(" lds", f" {o['afl']} lds") if k == 'g' else t, d, s_) for k, t, d, s_ in B.vec[i]]
        ab = o.get('aabl', '')
        for i in range(B.n):
            B.vec[i] = [it for it in B.vec[i] if it[0] not in ab]
            if 'b' in ab: B.pre[i] = [x for x in B.pre[i] if x != "s_barrier"]
            if 'w' in ab: B.pre[i] = [x for x in B.pre[i] if not x.startswith("s_waitcnt lgkm")]
        print("attn pattern:", B.pattern()); print("over:", B.report())
        a(".p2align 6", f"{name}_loop:")
        if o.get('attstamp'):
            a("s_memrealtime s[96:97]", "s_memtime s[98:99]", "v_accvgpr_read_b32 v0, a255", "s_waitcnt lgkmcnt(0)", "s_mov_b32 m0, s0", "s_add_u32 s0, s0, 1", "v_writelane_b32 v0, s96, m0", "s_mov_b32 m0, s0",
              "s_add_u32 s0, s0, 1", "v_writelane_b32 v0, s98, m0", "v_accvgpr_write_b32 a255, v0", "v_mbcnt_lo_u32_b32 v0, -1, 0", "v_mbcnt_hi_u32_b32 v0, -1, v0")
        a(*B.lines())
        def lsum_ops(t):
            out = []
            for sw in ("v_permlane32_swap_b32", "v_permlane16_swap_b32"):
                out.append([f"v_mov_b32 v{t+qs}, {LS[qs]}" for qs in range(2)])
                out.append([f"{sw} {LS[qs]}, v{t+qs}" for qs in range(2)])
                out.append([f"v_add_f32 {LS[qs]}, {LS[qs]}, v{t+qs}" for qs in range(2)])
            return out
        sel = lambda qs: "op_sel:[0,0] op_sel_hi:[1,0]" if qs == 0 else "op_sel:[0,1] op_sel_hi:[1,1]"
        cv = lambda qs, s: [f"v_cvt_pk_bf16_f32 v{O(2*s,qs).lo+i}, v{O(2*s,qs).lo+2*i}, v{O(2*s,qs).lo+2*i+1}" for i in range(4)]
        poadr = ["s_and_b32 s55, s2, 127", "s_lshl_b32 s57, s55, 2", "s_add_u32 s57, s57, s3", f"s_mul_i32 s55, s57, {m.IS}", f"s_add_u32 s55, s55, {WS_PO}", "s_lshl_b32 s57, s57, 10", f"s_add_u32 s57, s57, {WS_PL}"]
        H = 16; G1_, G2_, N = H + 128, H + 224, H + 288
        FB = Body(N, cyclic=False); R16 = lambda f: F(f % 16); first = {}; last = {}; sdone = {}; odone = {}; ltx = {}; cuse = {}
        for k in range(H): FB.m[k] = ("s_nop 0", set(), set())
        SELA = [Reg('a', 250, 4), Reg('a', 248, 4)]
        HX = lambda s: Reg('a', 128 + 4 * s, 4); HY = lambda s: Reg('a', 4 * s, 4)
        def M(n, d, f, b, c):
            FB.set_mfma(n, d, R16(f) if isinstance(f, int) else f, b, c)
            if isinstance(f, int): first.setdefault(f, n); last[f] = n
        kadr = lambda n: f"v{V_KA} offset:{n*1024}"; vadr = lambda db, ks: f"v{V_VA} offset:{(ks*16+db)*1024}"
        snake = ((0, 0), (1, 0), (1, 1), (0, 1))
        for kb in range(4):
            for k, qs in enumerate((1, 0)):
                for s in range(8): M(H + 16 * kb + 8 * k + s, S(kb, qs), 8 * kb + s, Q(qs, s), C(kb, qs) if s == 0 else S(kb, qs)); ltx[8 * kb + s] = kadr(8 * kb + s)
                sdone[0, kb, qs] = H + 16 * kb + 8 * k + 7; cuse[0, kb, qs] = H + 16 * kb + 8 * k
        for db in range(16):
            for k, (ks, qs) in enumerate(snake): M(H + 64 + 4 * db + k, O(db, qs), 32 + 2 * db + ks, P(ks, qs), O(db, qs)); ltx[32 + 2 * db + ks] = vadr(db, ks)
        for kb in range(4):
            b0 = G1_ + 24 * kb; f0 = 64 + 16 * kb
            for s in range(8): M(b0 + s, S(kb, 1), f0 + s, Q(1, s), C(kb, 1) if s == 0 else S(kb, 1)); ltx[f0 + s] = kadr(8 * kb + s)
            sdone[1, kb, 1] = b0 + 7; cuse[1, kb, 1] = b0
            order = [(d4, ks, qs) for qs in range(2) for d4 in range(4) for ks in range(2)] if kb == 0 else [(d4, ks, qs) for d4 in range(4) for ks, qs in snake]
            for k, (d4, ks, qs) in enumerate(order): M(b0 + 8 + k, O(4 * kb + d4, qs), f0 + 8 + 2 * d4 + ks, P(ks, qs), O(4 * kb + d4, qs)); ltx[f0 + 8 + 2 * d4 + ks] = vadr(4 * kb + d4, ks)
        for db in range(16):
            M(G2_ + db, O(db, 0), SELA[db % 2], HX(db // 2), O(db, 0)); odone[db, 0] = G2_ + db
            for ks in range(2): M(G2_ + 16 + 3 * db + ks, O(db, 1), 128 + 2 * db + ks, P(ks, 1), O(db, 1)); ltx[128 + 2 * db + ks] = vadr(db, ks)
            M(G2_ + 18 + 3 * db, O(db, 1), SELA[db % 2], HY(db // 2), O(db, 1)); odone[db, 1] = G2_ + 18 + 3 * db
        fl = lambda f: f"ds_read_b128 {R16(f)}, {ltx[f]}"
        bv, bk, bv2, bk2, bv3 = H + 47, H + 111, H + 115, G1_ + 81, G2_ + o['bv3']
        pos = {}
        for f in range(72): pos[f] = H + 2 * f - 16
        for k in range(6): pos[72 + k] = H + 117 + 2 * k
        t = G1_ - 1
        for f in range(78, 160):
            t = max(t + 1 + (1 if f % 2 == 0 and f > 80 else 0), last[f - 16], first[f] - 22, bv3 if f >= 128 else 0); pos[f] = t
            if f == 127:
                for n in range(8): t = max(t + 1, bk2 + 1 + int(1.6 * n)); FB.put(t, 'd', fload(n), F(n))
                assert t < G2_
        for f, t in pos.items():
            assert f < 16 or (last[f - 16] <= t <= first[f] - 6), (f, t, first[f])
            FB.put(t, 'd', fl(f), R16(f))
        FB.put(H - 2, 's', "s_waitcnt lgkmcnt(5)")
        for b, tags in ((bv, ["old"]), (bk, ["k"]), (bv2, ["v0"]), (bk2, ["kw", "x"]), (bv3, ["v1"])): FB.vmwait(b - 1, tags); FB.put(b, 's', "s_barrier")
        FB.vmwait(G2_ + 16, ["y"]); FB.put(G1_ + 26, 's', "s_barrier")
        FB.auto_lgkm(look=2, maxcnt=15)
        assert not FB.pre[H - 1]
        lastg = [-1]
        def GF(t, txt, tag, sc=()):
            ok = lambda k: all(x.startswith("s_waitcnt") for x in FB.pre[k]) and not FB.has(k - 1, 'g') and not FB.has(k, 'v') and sum(1 for q in range(max(k - 3, lastg[0] + 1), k) if not FB.pre[q]) >= len(sc)
            c = [k for k in range(t, t + 8) if ok(k)]
            c0 = [k for k in c if k < t + 2 and not FB.vec[k]]
            t = (c0 or c)[0]; FB.putg(t, txt, tag)
            fr = [q for q in range(max(t - 3, lastg[0] + 1), t) if not FB.pre[q]]
            for q, y in zip(fr[::-1], sc): FB.put(q, 's', y)
            lastg[0] = t; return t
        def SF(t, *txt):
            while FB.pre[t] or FB.has(t, 'g'): t += 1
            for y in txt: FB.put(t, 's', y)
            return t
        def VF(lo, hi, txt, kind='v'):
            c = [k for k in range(lo, hi) if FB.fits(k, kind)]
            if kind == 'v' and lo >= H + 12 and hi <= G1_ - 10: c = [k for k in c if FB.vec[k]] or c
            k = c[0] if c else min((k for k in range(lo, hi) if not FB.has(k, 'g')), key=lambda k: (FB.vcost(k), k))
            FB.put(k, kind, txt); return k
        m0s = lambda sm: (lambda j: {0: [f"s_mov_b32 m0, s{sm}"], 4: ["s_bitset1_b32 m0, 12"]}.get(j, []))
        hl = lambda r, sp, s: f"buffer_load_dwordx4 {r}, v{V_D0 if s < 4 else V_D1}, s[12:15], {sp} offen offset:{(s%4)*1024} sc1"
        xl = [f"buffer_load_dwordx4 a[192:195], v{V_L16}, s[12:15], s57 offen sc1"] + [hl(HX(s), "s55", s) for s in range(8)]
        lastg[0] = H - 1
        for j in range(8): t = GF(H + 1 + 6 * j, dma(S_KP, j), "k", m0s(S_KM)(j))
        t = FB.place(bv + 1, bv + 3, 'v', f"v_accvgpr_read_b32 v{V_T1}, a246"); t = FB.place(t + 2, bv + 6, 'v', f"v_cmp_ne_u32 s[20:21], 0, v{V_T1}"); tlook = t
        for j in range(8): t = GF(bv + 2 + 4 * j, dma(S_VP, j), "v0", m0s(S_VM)(j))
        tv0 = t
        pick = ["s_cselect_b32 s51, 1, 0", "s_cselect_b32 s55, s4, 2.0", "s_cselect_b32 s56, s5, 2.0", "s_cselect_b32 s57, s6, 2.0"]
        q = tlook + 1
        for x in ["s_cmp_eq_u64 s[20:21], 0"] + pick: q = SF(q, x)
        assert q < tv0
        for k, x in enumerate(xl): t = GF(t + 4, x, "x")
        q = SF(tv0 + 1, f"s_add_u32 s{S_VP}, s{S_VP}, {m.TS}"); q = SF(q, f"s_xor_b32 s{S_VM}, s{S_VM}, 0x8000"); q = SF(q, f"s_xor_b32 s{S_KM}, s{S_KM}, 0x8000")
        redir = [f"s_add_u32 s52, {sW8K}, {m.OPR[0]}", f"s_mul_i32 s58, s3, {56*896}", "s_sub_u32 s58, 128, s58", "s_cmp_eq_u32 s7, 0", f"s_cselect_b32 s{S_KP}, s78, {sHB}", f"s_cmov_b32 s{S_KM}, s52",
                 f"s_cmov_b64 s[8:9], s[{pWo}:{pWo+1}]", f"s_cmov_b32 s10, {4096*896}", "s_cmov_b32 s76, 6144", "s_cmov_b32 s77, 10240", f"s_mov_b32 s{S_LEFT}, 1"]
        for x in redir: q = SF(q, x)
        q = SF(q, "s_cmp_eq_u32 s51, 1"); qsel = q
        assert t < G1_ and q < G1_ - 3, (t, q)
        lastg[0] = G1_ - 1
        for j in range(8):
            t = GF(G1_ + 1 + int(3.7 * j), f"buffer_load_dwordx4 v{V_T2}, s[8:11], s{39 if j else S_KP} offen offset:{(j%4)*1024} sc1 lds", "kw",
                   ([f"s_add_u32 s39, s{39 if j > 1 else S_KP}, s{77 if j == 4 else 76}"] if j else []) + m0s(S_KM)(j))
        gv = [(dma(S_VP, j), "v1", m0s(S_VM)(j)) for j in range(8)]; gy = [(hl(HY(s), "s56", s), "y", []) for s in range(8)]
        assert t > G1_ + 26
        for k, x in enumerate(gy + gv if o['yfirst'] else gv + gy): t = GF(max(t + 2, G1_ + 1 + int(3.7 * (8 + k))), *x)
        assert t < G2_ - 1
        SF(G1_ + 70, f"s_mov_b32 s{S_LEFT}, 0")
        t = bv3 + 2
        for j in range(8): m0, tx = m.wo(1, j); t = GF(t, tx, "w", [m0]) + 4
        FB.place(t - 3, N, 'v', m.woadv)
        kx, vx = f"v_xor_b32 v{V_KA}, 0x8000, v{V_KA}", f"v_xor_b32 v{V_VA}, 0x8000, v{V_VA}"
        VF(pos[31], bk, kx); VF(pos[63], bv2, vx); VF(pos[119], bk2, kx); VF(pos[127], G2_, vx)
        VF(H + 60, G1_, f"v_accvgpr_read_b32 v{V_T2}, a244")
        cvl = cvts(); cvq = lambda kb, qs: cvl[(kb * 2 + qs) * 2:(kb * 2 + qs) * 2 + 2]
        ladd = lambda q: f"v_add_f32 {LS[q]}, {LS[q]}, {TS[q]}"
        cpos = {}; t = H
        for kb in range(4):
            for x in mread(kb): VF(max(H, cuse[0, kb, 0] - 22), cuse[0, kb, 0] - 1, x)
            for qs in (1, 0):
                for x in cvq(kb, qs): t = cpos[kb, qs] = VF(t, min(H + 61, max(t + 8, sdone[0, kb, qs] + 12)), x)
            if kb == 0: tl = max(VF(t, t + 8, ladd(q)) for q in range(2))
        assert t < H + 62
        te = H; epos = {}
        for kb in range(4):
            for qs in (1, 0):
                for i in range(4): te = epos[kb, qs, i] = VF(max(te + 1, sdone[0, kb, qs] + 5, cpos[kb, qs] + 1), max(te + 1, sdone[0, kb, qs] + 5, cpos[kb, qs] + 1) + o['dse'], ex(kb, qs, i), 'e')
        ta = tl
        for kb in range(4):
            for qs in (1, 0):
                for i in range(4):
                    if kb or i: lo = max(ta, epos[kb, qs, i]) + 1; ta = VF(lo, lo + (4 if lo < H + 100 else 2), ad(kb, qs, i))
        ta = VF(ta + 1, ta + 3, f"v_add_f32 v{V_T0}, {TS[0]}, {TS[1]}"); ta = VF(ta + 1, ta + 3, f"v_cmp_nge_f32 vcc, s{S_BIG}, v{V_T0}")
        q = SF(max(ta + 1, qsel + 1), "s_cselect_b64 vcc, vcc, -1"); assert q < G1_, q
        assert not any(x.startswith(("s_add", "s_xor", "s_sub", "s_cmp")) for k in range(qsel + 1, q) for x in FB.pre[k])
        t = VF(H + 60, H + 70, f"v_sub_f32 v{V_T1}, {NM[1]}, {NM[0]}")
        for kb in range(4):
            for i in range(4): VF(max(t + 1, H + 64), G1_ - 1, f"v_add_f32 {C(kb,1)[i]}, {C(kb,0)[i]}, v{V_T1}")
        t = G1_
        for qs in range(2):
            for kb in range(4):
                for x in cvq(kb, qs): cpos[kb, qs] = VF(G1_, G1_ + 6 + 8 * qs, x)
        tl = max(VF(G1_, G1_ + 18, ladd(q)) for q in range(2)); te = G1_ + 13; ta = tl
        for kb in range(4):
            for i in range(4):
                lo = max(te + 1, sdone[1, kb, 1] + 5); te = VF(lo, lo + (3 if kb < 3 else 2), ex(kb, 1, i), 'e')
                if kb or i: lo = max(ta, te) + 1; ta = VF(lo, lo + 2, ad(kb, 1, i))
        ta = VF(ta + 1, G2_, f"v_cmp_nge_f32 vcc, s{S_BIG}, {TS[1]}")
        RL = 64; ST = Reg('v', 32, 4); tv = G2_
        for x in [y for kb in range(4) for y in cvq(kb, 1)] + [ladd(1)]: tv = FB.place(tv, G2_ + 14, 'v', x)
        tl = tv
        for grp in lsum_ops(40) + [[f"v_add_f32 {LS[q]}, {LS[q]}, {ST[q]}" for q in range(2)]]:
            tl += 2
            for x in grp: tl = FB.place(tl, N, 'v', x)
        t = G2_
        for x in m.op_addr(): t = FB.place(t, N, 'v', x)
        pre1 = m.op_pre(1)
        restf = [f"v_rcp_f32 v{RL+q}, {LS[q]}" for q in range(2)]
        for qs in range(2):
            for s in range(8):
                tv = max(tv, odone[2 * s + 1, qs] + 5)
                for x in cv(qs, s):
                    try:
                        if len(restf) > 2: raise RuntimeError
                        tv = FB.place(tv, N, 'v', x)
                    except RuntimeError: restf.append(x)
        FB.resolve_vm(["old"])
        print("ds pattern:", FB.pattern(), len(FB.report()), sum(u - 2 for _, u in FB.report()), len(restf))
        a(f"{name}_ret2:", f"s_cmp_lg_u32 s{S_LEFT}, 2", f"s_cbranch_scc1 {name}_disp")
        a(*FB.lines(H, G1_)); a(f"s_cbranch_vccnz {name}_g0x", f"{name}_p1:")
        a(*FB.lines(G1_, G2_)); a(f"s_cbranch_vccnz {name}_slow", f"{name}_p2:", "s_cmp_lg_u32 s7, 0", f"s_cbranch_scc1 {name}_switch"); m.mark("tail_go")
        m.apoll(sFU, 32, 247, V_T0)
        a(*[f"v_accvgpr_read_b32 {ST[i]}, a{192+i}" for i in range(4)])
        a(f"v_add_u32 v2, s58, v{V_T2}", f"v_cmp_neq_f32 vcc, {ST[2]}, {NM[0]}", f"v_cmp_neq_f32 s[20:21], {ST[3]}, {NM[1]}", "s_or_b64 vcc, vcc, s[20:21]",
          "s_cmp_eq_u32 s51, 1", "s_cselect_b64 vcc, vcc, -1", f"s_cmp_eq_u32 {sNB}, 0", "s_cselect_b64 vcc, 0, vcc", f"s_cbranch_vccnz {name}_fagen")
        a(*FB.lines(G2_, N)); m.mark("tail_end"); a(*pre1); a("s_nop 1"); a(*restf)
        a(f"s_cmp_lg_u32 {sROLE}, 0", f"s_cbranch_scc1 {name}_op1in", "s_waitcnt vmcnt(0) lgkmcnt(0)", "s_mov_b32 s59, 2.0", f"s_cmp_eq_u32 {sSSM}, 0", f"s_cbranch_scc1 {name}_t1park")
        m.acheck(sFU, 32, 247, V_T0, V_T1)
        a(f"s_branch {name}_t1park")
        a(*rare)
        a(f"{name}_ret:"); m.jitter()
        a(f"s_cmp_gt_u32 s{S_LEFT}, s{S_THR}", f"s_cbranch_scc1 {name}_loop", f"s_branch {name}_ret2")
        a(f"{name}_disp:"); m.jitter()
        a(f"s_cmp_lt_u32 s{S_LEFT}, 2", f"s_cbranch_scc1 {name}_d1")
        a("s_waitcnt vmcnt(0)")
        m.acheck(sFQ, 12, 246, V_T0, V_T1)
        a(f"s_cmp_eq_u32 {sNB}, 0", f"s_cselect_b32 {sFQ}, {sFQ}, {sFPO}", f"v_mov_b32 v{V_T3}, 0", f"s_mov_b32 s{S_THR}, 2", f"s_branch {name}_loop")
        a(f"{name}_d1:", f"s_cmp_eq_u32 {sMODE}, 1", f"s_cbranch_scc1 {name}_seg2", f"s_cmp_eq_u32 s{S_LEFT}, 0", f"s_cbranch_scc1 {name}_p2")
        a("s_cmp_eq_u32 s53, 0", f"s_cbranch_scc1 {name}_g0y", "s_mov_b32 s53, 0"); a(*redir)
        a("s_waitcnt vmcnt(0)", "s_barrier"); a(*[fl(f) for f in range(72, 78)])
        a(f"s_branch {name}_g0y", f"{name}_g0x:", f"v_cmp_nge_f32 vcc, s{S_BIG}, v{V_T0}", f"s_cbranch_vccnz {name}_slow", f"{name}_g0y:")
        mask(1, False)
        a("s_waitcnt lgkmcnt(0)", "s_cmp_eq_u32 s51, 1", f"s_cbranch_scc1 {name}_p1", "s_cmp_eq_u32 s7, 0", f"s_cbranch_scc1 {name}_g0z")
        sl = o['sleep']; o['sleep'] = 1; m.poll(sFQ, 1, V_T0, V_T1); o['sleep'] = sl
        a(f"s_branch {name}_g0w", f"{name}_g0z:", f"buffer_load_dword v{V_T1}, v{V_T3}, s[12:15], {sFQ} offen sc1", "s_waitcnt vmcnt(0)", f"v_cmp_ne_u32 vcc, 0, v{V_T1}", f"{name}_g0w:", "s_cmp_eq_u64 vcc, 0")
        a(*pick); a(*xl); a(f"s_branch {name}_p1")
        a(f"{name}_seg2:", f"s_cmp_eq_u32 s{S_LEFT}, 0", f"s_cbranch_scc1 {name}_tail", f"{name}_last:")
        m.apoll(sFU, 32, 247, V_T0)
        a(*wosw)
        a(f"s_mov_b32 s{S_KP}, s78", f"s_add_u32 s{S_KM}, {sW8K}, {m.OPR[0]}", "s_movk_i32 s76, 6144", "s_movk_i32 s77, 10240", f"s_branch {name}_loop")
        a(f"{name}_switch:")
        for i in range(32): a(f"v_accvgpr_mov_b32 a{32+i}, a{128+i}")
        for i in range(96, 128, 2): a(f"v_mov_b64 v[{i}:{i+1}], 0")
        for kb in range(4): a(*[f"v_mov_b64 {E(kb,0)[i:i+2]}, 0" for i in (0, 2)])
        a(f"v_mov_b32 {TS[0]}, 0", f"s_add_u32 s{S_KP}, {sHB}, {m.TS}", f"s_xor_b32 s{S_KM}, s{S_KM}, 0x8000", f"s_xor_b32 s{S_VM}, s{S_VM}, 0x8000",
          f"s_add_u32 s{S_VP}, {sHB}, {m.VB}", f"s_mov_b32 s{S_LEFT}, {sNB}", f"s_mov_b32 s{S_THR}, 1", f"s_mov_b32 s{S_BIG}, -1.0", f"s_waitcnt vmcnt({8 if o['yfirst'] else 0}) lgkmcnt(0)",
          f"s_cmp_eq_u32 {sNB}, 1", f"s_cbranch_scc1 {name}_last", f"s_branch {name}_loop")
        a(f"{name}_switched:")
        m.mark("seg1_end")
        for grp in lsum_ops(18): a(*grp); a("s_nop 0")
        for qs in range(2): a(f"v_rcp_f32 v{16+qs}, {LS[qs]}")
        a(f"s_mov_b32 s{S_BIG}, {BIG}", f"s_mov_b32 {sMODE}, 1")
        for qs in range(2):
            a(f"v_accvgpr_write_b32 a{200+qs}, v{16+qs}")
            for s in range(8): a(*cv(qs, s)); a(*[f"v_accvgpr_write_b32 a{128+(qs*8+s)*4+i}, {O(2*s,qs)[i]}" for i in range(4)])
        for i in range(128, 256, 2): a(f"v_mov_b64 v[{i}:{i+1}], 0")
        for r in LS + NM: a(f"v_mov_b32 {r}, 0")
        m.mark("seg1_fin")
        a(f"s_branch {name}_first")
        a(f"{name}_fagen:", f"v_mov_b32 {TS[0]}, 0", f"buffer_load_dword a246, v{V_T3}, s[12:15], {sFQ} offen sc1")
        for kb in range(4): a(*[f"v_mov_b32 {E(kb,0)[i]}, 0" for i in range(4)])
        a(f"{name}_tail:"); m.mark("tail_go")
        a(*poadr)
        a(f"s_mul_i32 s58, s3, {56*896}", "s_sub_u32 s58, 128, s58", f"v_add_u32 v2, s58, v{V_T2}")
        a(*cvts())
        for q in range(2): a(f"v_add_f32 {LS[q]}, {LS[q]}, {TS[q]}")
        a("s_waitcnt vmcnt(0) lgkmcnt(0)", "s_barrier")
        for n in range(32, 40): a(fload(n))
        RL = 64; ST = Reg('v', 68, 4)
        def tail_body():
            BT = Body(64, cyclic=False); set_pv(BT, 0)
            for n in range(40, 64): BT.put(2 * (n - 32) - 16, 'd', fload(n), F(n))
            BT.auto_lgkm(look=2, maxcnt=15)
            return BT
        def put_lsum(BT):
            t = 3
            for grp in lsum_ops(72):
                for x in grp: BT.put(t, 'v', x)
                t += 4
            return t
        poa = lambda qs, s: f"v{V_D0 if s < 4 else V_D1}, s[12:15], s{55+qs} offen offset:{(s%4)*1024} sc1"
        a(f"s_cmp_lg_u32 {sNB}, 0", f"s_cselect_b32 s58, {sMODE}, 0", "s_cmp_eq_u32 s58, 2", f"s_cbranch_scc1 {name}_tail2")
        a(f"s_cmp_eq_u32 {sSSM}, 0", f"s_cbranch_scc1 {name}_nou")
        m.acheck(sFU, 32, 247, V_T0, V_T1)
        a(f"{name}_nou:", f"s_cmp_eq_u32 {sMODE}, 1", "s_cselect_b32 s55, s55, 2.0", "s_cselect_b32 s57, s57, 2.0", f"s_cselect_b32 s59, {sFPO}, 2.0", "s_add_u32 s56, s55, 0x2000", "s_waitcnt lgkmcnt(0)")
        BT = tail_body()
        for j in range(8):
            gp = (1, 5, 9, 11, 13, 17, 19, 21)[j] if o['t1fast'] else 4 * j + 1
            m0, tx = m.wo(1, j); BT.put(gp, 'g', tx); BT.put(gp - 1, 's', m0)
        BT.put(22 if o['t1fast'] else 30, 'v', m.woadv)
        if o['t1fast']:
            for grp, gp in zip(lsum_ops(72), ((0, 2), (3, 3), (6, 7), (8, 10), (14, 15), (18, 20))):
                for x, k in zip(grp, gp): BT.put(k, 'v', x)
        else: put_lsum(BT)
        t = 4
        for x in m.op_addr(): t = BT.place(t, 48, 'v', x)
        pre = m.op_pre(0)
        rest = []; tv = 0; tg = 25 if o['t1fast'] else 33
        for s in range(8):
            for qs in range(2):
                tv = max(tv, 8 * s + 15); sto = f"buffer_store_dwordx4 {O(2*s,qs)}, {poa(qs,s)}"
                slots = [k for k in range(min(tv, 64), 64) if k % 4 != 1 for _ in range(max(0, 2 - BT.vcost(k)))]
                if len(slots) >= 4 and not any(x.startswith("v_") for x in rest):
                    for x, k in zip(cv(qs, s), slots): BT.put(k, 'v', x); tv = k
                    while tg <= tv: tg += 4
                    if tg < 64: BT.put(tg, 'g', sto); tg += 4
                    else: rest.append(sto)
                else: rest += cv(qs, s) + [sto]
        print("tail1pv pattern:", BT.pattern(), len(rest))
        a(*BT.lines())
        m.mark("tail_end")
        a(*pre)
        a(f"v_mov_b32 {ST[0]}, {LS[0]}", f"v_mov_b32 {ST[1]}, {LS[1]}", f"v_mov_b32 {ST[2]}, {NM[0]}", f"v_mov_b32 {ST[3]}, {NM[1]}")
        for qs in range(2): a(f"v_accvgpr_read_b32 v{RL+qs}, a{200+qs}")
        a(*[x for x in rest if x.startswith("v_")])
        m.po_rest = [f"buffer_store_dwordx4 {ST}, v{V_L16}, s[12:15], s57 offen sc1"] + [x for x in rest if x.startswith("buffer_")]
        a(f"s_branch {name}_op0in", f"{name}_t1park:")
        for s in range(8):
            for qs in range(2): a(*[f"v_accvgpr_write_b32 a{128+(qs*8+s)*4+i}, {O(2*s,qs)[i]}" for i in range(4)])
        a(f"s_branch {name}_opB")
        PB = lambda qs, s: Reg('v', (96 if qs else 32) + s * 4, 4)
        pol = [f"buffer_load_dwordx4 {ST}, v{V_L16}, s[12:15], s57 offen sc1"] + [f"buffer_load_dwordx4 {PB(qs,s)}, {poa(qs,s)}" for s in range(8) for qs in range(2)]
        a(f"{name}_tail2:", f"v_accvgpr_read_b32 v{V_T0}, a246", "s_mov_b32 s52, s55", "s_mov_b32 s53, s57", f"v_readfirstlane_b32 s58, v{V_T0}", "s_mov_b32 s59, 2.0", "s_nop 1",
          "s_cmp_eq_u32 s58, 0", "s_cselect_b32 s55, s55, 2.0", "s_cselect_b32 s57, s57, 2.0", "s_add_u32 s56, s55, 0x2000", pol[0], "s_waitcnt lgkmcnt(0)")
        BT = tail_body()
        for k in range(16): BT.put(max(4 * k - 3, 0) if k else 63, 'g', pol[k if k else 16])
        t = put_lsum(BT)
        print("tail2pv pattern:", BT.pattern())
        a(*BT.lines())
        m.mark("tail_end")
        a("s_cmp_eq_u32 s58, 0", f"s_cbranch_scc1 {name}_merge2")
        m.poll(sFPO, 1, V_T0, V_T1)
        m.mark("po_flag")
        a("s_mov_b32 s55, s52", "s_mov_b32 s57, s53", "s_add_u32 s56, s55, 0x2000"); a(*pol)
        a(f"{name}_merge2:", "s_waitcnt vmcnt(14)", f"v_cmp_neq_f32 vcc, {ST[2]}, {NM[0]}", f"v_cmp_neq_f32 s[20:21], {ST[3]}, {NM[1]}", "s_or_b64 vcc, vcc, s[20:21]", f"s_cbranch_vccnz {name}_mslow")
        BM = Body(32, cyclic=False); SEL = [Reg('a', 250, 4), Reg('a', 248, 4)]
        for s in range(8):
            for qs in range(2):
                for e in range(2): BM.set_mfma(4 * s + 2 * qs + e, O(2 * s + e, qs), SEL[e], PB(qs, s), O(2 * s + e, qs))
        for j in range(8):
            m0, tx = m.wo(1, j); BM.put(4 * j + 1, 'g', tx); BM.put(4 * j, 's', m0)
            if j < 7: BM.put(4 * j + 3, 's', f"s_waitcnt vmcnt({14 - 2*(j+1) + j + 1})")
        for qs in range(2): BM.put(0, 'v', f"v_add_f32 {LS[qs]}, {LS[qs]}, {ST[qs]}"); BM.put(2 + qs, 'e', f"v_rcp_f32 v{RL+qs}, {LS[qs]}")
        rest = []; tv = 0
        for s in range(8):
            for qs in range(2):
                tv = max(tv, 4 * s + 2 * qs + 6)
                for x in cv(qs, s):
                    try:
                        if rest: raise RuntimeError
                        tv = BM.place(tv, 32, 'v', x)
                    except RuntimeError: rest.append(x)
        print("merge pattern:", BM.pattern(), len(rest))
        a(*BM.lines()); a(m.woadv); a(*rest)
        a("s_waitcnt vmcnt(0)", f"s_branch {name}_attdone")
        a(f"{name}_mslow:")
        for j in range(8): a(m.wo(1, j)[0], "s_nop 0", m.wo(1, j)[1])
        a(m.woadv, "s_mov_b32 s58, 0xffff0000", "s_waitcnt vmcnt(0)")
        for qs in range(2):
            a(f"v_min_f32 v20, {ST[2+qs]}, {NM[qs]}", f"v_sub_f32 v21, v20, {NM[qs]}", f"v_sub_f32 v22, v20, {ST[2+qs]}", f"v_exp_f32 v{16+qs}, v21", f"v_exp_f32 v{18+qs}, v22", "s_nop 0",
              f"v_mul_f32 {LS[qs]}, {LS[qs]}, v{16+qs}", f"v_fmac_f32 {LS[qs]}, {ST[qs]}, v{18+qs}", f"v_rcp_f32 v{RL+qs}, {LS[qs]}")
        for qs in range(2):
            sel3 = "op_sel:[0,0,0] op_sel_hi:[1,0,1]" if qs == 0 else "op_sel:[0,1,0] op_sel_hi:[1,1,1]"
            for s in range(8):
                r = Reg('v', O(2 * s, qs).lo, 8)
                for k in range(4):
                    pb = PB(qs, s)[k]; t = Reg('v', 24 + 2 * k, 2)
                    a(f"v_lshlrev_b32 {t[0]}, 16, {pb}", f"v_and_b32 {t[1]}, s58, {pb}", f"v_pk_mul_f32 {t}, {t}, v[18:19] {sel(qs)}",
                      f"v_pk_fma_f32 {r[2*k:2*k+2]}, {r[2*k:2*k+2]}, v[16:17], {t} {sel3}")
                a(*cv(qs, s))
        a(f"{name}_attdone:")

    OPR = [0x20000, 0, 0x8000, 0x10000, 0x18000, 0x20000, 0]
    def op_setup(m, v, t):
        a = m.a
        a(f"v_lshrrev_b32 v{t}, 3, v0", "s_lshl_b32 s78, s3, 6", f"v_add_u32 v{v}, s78, v{t}", f"v_mul_u32_u24 v{v}, 896, v{v}", f"v_and_b32 v{t}, 6, v{t}", f"v_xor_b32 v{t}, v{t}, v0", f"v_and_b32 v{t}, 7, v{t}",
          f"v_lshl_add_u32 v{v}, v{t}, 4, v{v}", f"s_mul_i32 s78, {sH}, {256*896}")
        for j in range(1, 8): a(f"s_add_u32 s{78+j}, s78, {32*896*j}")
        srd(a, 8, pWo, 4096 * 896)
    def wo(m, c, j, v=2): return (f"s_add_u32 m0, {sW1K}, {m.OPR[c] + j*4096}", f"buffer_load_dwordx4 v{v}, s[8:11], s{78+j} offen lds")
    woadv = "v_add_u32 v2, 128, v2"
    def red_addr(m):
        return [f"s_lshl_b32 s44, {sX}, 7", f"s_add_u32 s44, s44, {F_CTX}", f"s_lshl_b32 s40, {sX}, 1", f"s_and_b32 s41, {sJJ}, 1", "s_add_u32 s40, s40, s41", f"s_lshr_b32 s41, {sJJ}, 1",
                "s_lshl_b32 s42, s40, 2", "s_add_u32 s42, s42, s3", f"s_mul_i32 s37, s42, {14*m.PS}", f"s_mul_i32 s43, s41, {m.PS}", "s_add_u32 s37, s37, s43", f"s_add_u32 s37, s37, {WS_PP}"]
    OA = 44
    def op_ring(m, role): return lambda f: Reg('a', (160 if role else 0) + 4 * (f % 16), 4)
    def op_addr(m): return [f"v_accvgpr_read_b32 v{m.OA}, a254"]
    def op_addr0(m, v, t):
        return [f"v_lshrrev_b32 v{t}, 2, v0", f"v_lshlrev_b32 v{v}, 7, v{t}", f"v_bfe_u32 v{t}, v{t}, 1, 2", f"v_lshl_add_u32 v{v}, v{t}, 5, v{v}", f"v_and_b32 v{t}, 3, v0", f"v_lshl_add_u32 v{v}, v{t}, 3, v{v}",
                f"v_add_u32 v{v}, {m.OPR[0]}, v{v}"]
    def op_pre(m, role): return [f"ds_read_b64_tr_b16 {m.op_ring(role)(k//2)[2*(k%2):2*(k%2)+2]}, v{m.OA} offset:{(k//2)*4096 + (k%2)*2048}" for k in range(m.o['LO'])]
    def oproj(m, role):
        a, name, o = m.a, m.n, m.o
        LO = o['LO']; VFL = 9
        m.mark("att_fin")
        a(*m.op_addr()); a(*m.op_pre(role)); a(f"{name}_op{role}in:")
        ring = m.op_ring(role); OA = m.OA
        CF = (lambda qs, s: O(2 * s, qs)) if role else (lambda qs, s: Reg('a', 128 + (qs * 8 + s) * 4, 4))
        AC = lambda mb, qs: Reg('v', 72 + ((mb // 2) % 3) * 16 + qs * 8 + (mb % 2) * 4, 4)
        H = 16; N = H + 448; B = Body(N, cyclic=False)
        for k in range(H): B.m[k] = ("s_nop 0", set(), set())
        n = H; done = {}
        for mb in range(28):
            for qs in range(2):
                for s in range(8): B.set_mfma(n, AC(mb, qs), ring(8 * mb + s), CF(qs, s), 0 if s == 0 else AC(mb, qs)); n += 1
                done[mb, qs] = n - 1
            c = mb // 4
            for s in range(8):
                for e in range(2):
                    B.put(H + 2 * (8 * mb + s) - LO + e, 'd', f"ds_read_b64_tr_b16 {ring(8*mb+s)[2*e:2*e+2]}, v{OA + mb%4} offset:{(m.OPR[c] & 0x8000) + s*4096 + e*2048}", ring(8 * mb + s)[2*e:2*e+2])
        cs = lambda c: H + 64 * c - LO
        def bar(pos, tags=None, lg=None):
            if tags: B.vmwait(pos - 1, tags)
            if lg is not None: B.put(pos - 1, 's', f"s_waitcnt lgkmcnt({lg})")
            B.put(pos, 's', "s_barrier")
        pub = H + o['oppub']
        if not role: assert pub < cs(1) - 1; bar(pub, ["po"]); bar(cs(5) + 10, lg=9)
        else: bar(cs(1) - 1, ["old"])
        SM = o['opsm']
        if SM:
            for c in range(2, 7): bar(cs(c) - 1, [f"w{c}"] + (["p0"] if role and c == o['opc0'] and not o['shb'] else []) + (["p1"] if role and c == o['sh2c'] else []) + (["st0"] if c == 5 else []))
        else: bar(cs(2) - 1, ["w2"]); bar(cs(2) + 10, lg=9); bar(cs(3) - 1, ["w3", "w4"] + (["p0"] if role else [])); bar(cs(5) - 1, ["w5", "w6", "st0"])
        B.auto_lgkm(look=3, maxcnt=15)
        def gfree(t): return not B.has(t, 'g') and not any(k in 've' for k, *_ in B.vec[t]) and all(x.startswith("s_waitcnt") for x in B.pre[t]) and len(B.pre[t]) <= 1
        def G1(t, txt, tag, sc=None):
            while not (gfree(t) and not B.has(t - 1, 'g') and not (t + 1 < N and B.has(t + 1, 'g')) and (sc is None or not B.pre[t - 1] or (not B.pre[t - 2] and not B.has(t - 2, 'g')))): t += 1
            B.putg(t, txt, tag)
            if sc: B.put(t - 1 if not B.pre[t - 1] else t - 2, 's', sc)
            return t
        def S1(t, txt):
            while B.pre[t] or B.has(t, 'g'): t += 1
            B.put(t, 's', txt); return t
        for c in range(1, 7):
            dx = (m.OPR[c] ^ m.OPR[c - 1]) & ~0x8000
            if dx:
                for mb in range(4): B.place(cs(c) + 16 * mb - 12, cs(c) + 16 * mb, 'v', f"v_xor_b32 v{OA+mb}, {dx:#x}, v{OA+mb}", back=True)
        G1(cs(5), f"buffer_store_dword v{VFL}, v{VFL}, s[12:15], {sFCTX} offen offset:64 sc1", "fl")
        t = H
        if not role:
            for x in m.po_rest: t = G1(t, x, "po") + 3
            assert t < pub
            tt = G1(pub + 1, f"buffer_store_dword v{VFL}, v{VFL}, s[12:15], s59 offen sc1", "fl")
            if o['popf']:
                B.place(H, pub, 'v', "v_lshlrev_b32 v14, 7, v0")
                for qs in range(2): tt = G1(tt + 2, f"buffer_load_dword v15, v14, s[12:15], s{55+qs} offen sc1", "pf")
        else:
            if not o['shb2'] and not o['sh2c']: G1(N - o['oplead'], "buffer_load_dword v12, v10, s[12:15], s44 offen sc1", "p1")
            for h, cb in (((1, o['sh2c']),) if o['sh2c'] else () if o['shb'] else ((0, o['opc0'] if SM else 3),)):
                G1(cs(cb) - o['oplead'], f"buffer_load_dword v11, v10, s[12:15], s44 offen offset:{64*(1-h)} sc1", f"p{h}")
                tt = B.place(cs(cb), N, 'v', "v_cmp_ne_u32 vcc, 0, v11") + 1
                while B.pre[tt] or B.has(tt, 'g') or B.has(tt, 'v'): tt += 1
                for x in ("s_cmp_eq_u64 vcc, s[52:53]", f"s_cselect_b32 s{49+h}, 1, 0", f"s_cselect_b32 s51, s{37+h}, 2.0"): B.put(tt, 's', x)
                for k in range(16):
                    tt = G1(tt + (o['opr'] if k else 1), f"buffer_load_dwordx4 a[{64+64*h+4*k}:{67+64*h+4*k}], v1, s[12:15], s51 offen offset:{(k%4)*1024} sc1", "sh", "s_add_u32 s51, s51, 4096" if (k and k % 4 == 0) else None)
        t = max(t, H + 1)
        for c in range(2, 7):
            if c >= 5: t = max(t, cs(c - 3) + 1 if SM else cs(2) + 12)
            if SM: t = max(t, cs(c) - SM)
            if c == 3: t = max(t, cs(1) + 1)
            for j in range(8): m0, tx = m.wo(c, j); t = G1(t, tx, f"w{c}", m0) + o['opw']
            t = max(t, B.place(t - o['opw'] + 1, N, 'v', m.woadv) + 1)
        if not role:
            t = max(t, cs(5) + 12)
            for m0, tx in m.s2_dmas(): t = G1(t, tx, "u", m0) + o['opw']
        for mb, lo_ in ((1, H), (2, H), (3, H)): B.place(lo_, H + 2 + 16 * (mb - 1), 'v', f"v_xor_b32 v{OA+mb}, {32*mb}, v{OA}")
        B.place(H, H + 30, 'v', f"v_accvgpr_read_b32 v{VFL}, a245")
        tq = H
        for x in ["s_lshl_b32 s48, s63, 3", "s_add_u32 s48, s48, s3", f"s_mul_i32 s48, s48, {14*m.PS}", f"s_lshl_b32 s58, {sH}, 10", "s_add_u32 s48, s48, s58", f"s_add_u32 s48, s48, {WS_PP}"]: tq = S1(tq, x)
        assert tq < H + 26
        late_setup = Asm(); keep = m.a; m.a = late_setup
        if role: late_setup("v_and_b32 v10, 15, v0", "v_lshlrev_b32 v10, 2, v10", f"s_cmp_lt_u32 {sJJ}, 14", "s_cselect_b32 s52, 0, 1", "s_mov_b32 s53, 0")
        else: m.s2_setup()
        m.a = keep
        t = cs(4) if not role else tq
        k = 0; L_ = late_setup.L
        while k < len(L_):
            n_ = 1
            if L_[k].startswith("s_cmp"):
                while L_[k + n_].startswith(("s_cmov", "s_cselect")): n_ += 1
            if L_[k].startswith("s_"):
                t = S1(t + 1, L_[k])
                for y in L_[k + 1:k + n_]: B.put(t, 's', y)
            else:
                c_ = [q for q in range(t + 2, t + 8) if B.fits(q, 'v')] or [q for q in range(t, t + 6) if not B.has(q, 'g')]
                t = c_[0]; B.put(t, 'v', L_[k])
            k += n_
        assert t < (cs(3) - o['oplead'] if role else cs(5)), t
        rest = []
        for mp in range(14):
            for qs in range(2):
                r = Reg('v', AC(2 * mp, qs).lo, 8)
                cv = [f"v_mul_f32 {r[i]}, {r[i]}, v{64+qs}" for i in range(4, 8)] + [f"v_cvt_pk_bf16_f32 {r[i]}, {r[2*i]}, {r[2*i+1]}" for i in range(4)]
                t = done[2 * mp, qs] + 5
                for i in range(4): t = B.place(t, N, 'v', f"v_mul_f32 {r[i]}, {r[i]}, v{64+qs}")
                sto = (f"buffer_store_dwordx4 {r[0:4]}, v1, s[12:15], s58 offen {o['opfl']}", f"st{mp//7}", f"s_add_u32 s58, s48, {(qs*4*14 + mp)*m.PS + (0x40000000 if (o.get('xst', 0) >> role & 1 and mp % 2) else o['opoob'])}")
                t = max(t, done[2 * mp + 1, qs] + 5)
                if t + 12 < N:
                    for x in cv: t = B.place(t, N, 'v', x)
                    t = G1(t + 1, *sto); assert mp >= 11 or t < done[2 * mp + 6, qs] - 8, (mp, t)
                else: rest += cv + [sto[2], sto[0]]
        if not role:
            for k, tx in enumerate(m.s2_pads()): B.put(N - LO + 1 + k, 'd', tx)
        t = H + 30
        for x in m.red_addr() + [f"s_add_u32 s38, s37, {0x40000000 if o.get('xld', 0) & 1 else 7*m.PS}"]: t = S1(t, x)
        assert t < cs(3) - o['oplead'] - 2
        ops = B.resolve_vm(["old"])
        if role and not o['shb2']: m.after_p1 = len(ops) - 1 - ops.index("p1") + sum(1 for x in rest if x.startswith("buffer_"))
        if not role: m.after_u = len(ops) - 1 - max(i for i, x in enumerate(ops) if x == "u") + sum(1 for x in rest if x.startswith("buffer_"))
        print(f"op{role} pattern:", B.pattern(), len(B.report()), len(rest))
        assert [x[1] for k in range(H) for x in B.vec[k]] == m.op_pre(role)
        for k in range(H): a(*B.pre[k])
        m.mark("op_go")
        if o.get('idlerole', (9, 0))[0] == role: a(f"s_sleep {o['idlerole'][1]}")
        a(*B.lines(H, N)); a("s_nop 4"); a(*rest)
        m.mark("op_end")
        a(f"s_cmp_ge_u32 {sJJ}, 14", f"s_cbranch_scc1 {name}_idle")

    S2W, S2K = 8736, 4608
    def s2_setup(m):
        a = m.a
        a(f"s_lshl_b32 s34, {sIDX}, 2", "s_add_u32 s34, s34, s3", f"s_mul_i32 s35, s34, {m.CS}", "s_lshl_b32 s34, s34, 12", "s_cmp_eq_u32 s62, 0", "s_cmov_b32 s34, 2.0", "s_cmov_b32 s35, 2.0", f"s_add_u32 s35, s35, {WS_U}",
          f"s_mul_i32 s33, s3, {m.S2W}", "s_add_u32 s33, s33, 0x10000")
        srd(a, 4, pAssm, 448 * 4096)
        a("v_lshrrev_b32 v10, 1, v0", "v_lshlrev_b32 v10, 7, v10", "v_and_b32 v11, 1, v0", "v_lshl_add_u32 v10, v11, 4, v10",
          "v_and_b32 v11, 31, v0", "v_lshl_add_u32 v11, v11, 2, s33", "v_and_b32 v12, 7, v0", "v_lshl_add_u32 v12, v12, 2, s33", "v_mov_b32 v13, 0")
    def s2_dmas(m):
        return [(f"s_add_u32 m0, s33, {m.S2K + 32}" if k == 0 else None, f"buffer_load_dwordx4 v1, s[4:7], s34 offen offset:{1024*k} lds") for k in range(4)] + \
               [(f"s_add_u32 m0, s33, {p*1152 + 128 - 32*p}", f"buffer_load_dwordx4 v10, s[12:15], s35 offen offset:{32*p} sc1 lds") for p in range(4)]
    def sh_dmas(m):
        return [(([f"s_lshl_b32 m0, s3, 14"] if k == 0 else ["s_add_u32 m0, m0, 4096", "s_add_u32 s51, s51, 4096"]) if k % 4 == 0 else [], f"buffer_load_dwordx4 v1, s[12:15], s51 offen offset:{(k%4)*1024} sc1 lds") for k in range(16)]
    def s2_pads(m): return [f"ds_write_b32 v11, v13 offset:{p*1152}" for p in range(4)] + [f"ds_write_b32 v12, v13 offset:{m.S2K}"]
    def s2(m, setup, qloads):
        a, name, o = m.a, m.n, m.o
        KB = m.S2K + 32
        VZ, VXX, VU, VB, VY_, VONE = 16, 17, 18, 19, 20, 21
        a("v_and_b32 v22, 15, v0", "v_lshrrev_b32 v23, 4, v0", f"v_lshl_add_u32 v{VU}, v22, 3, s33", f"v_lshl_add_u32 v{VZ}, v23, 4, v{VU}", f"v_lshl_add_u32 v{VU}, v23, 1, v{VU}",
          f"v_and_b32 v{VXX}, 3, v0", "v_bfe_u32 v24, v0, 2, 2", f"v_sub_u32 v{VXX}, v{VXX}, v24", "v_lshlrev_b32 v24, 3, v23", f"v_sub_u32 v{VXX}, v{VXX}, v24", f"v_add_u32 v{VXX}, 32, v{VXX}",
          f"v_lshl_add_u32 v{VXX}, v{VXX}, 3, s33",
          f"v_lshlrev_b32 v{VY_}, 5, v22", f"v_lshl_add_u32 v{VY_}, v23, 3, v{VY_}",
          "v_add_u32 v24, -1, v0", "v_and_b32 v24, 15, v24", "v_add_u32 v24, 48, v24", f"v_add_u32 v{VB}, -16, v0", "v_cmp_gt_u32 vcc, 16, v0", f"v_accvgpr_read_b32 v{VONE}, a245", f"s_add_u32 s34, s35, {WS_Y - WS_U}",
          f"v_cndmask_b32 v{VB}, v{VB}, v24, vcc", f"v_lshlrev_b32 v{VB}, 2, v{VB}", "v_cmp_eq_u32 vcc, 63, v0",
          "s_lshl_b32 s30, s31, 16", "s_and_b32 s31, s31, 0xffff0000", "s_bitcmp1_b32 s3, 0", "s_cselect_b32 s31, s31, s30")
        X = lambda n: Reg('v', 160 + 4 * n, 4)
        Z = lambda p, d: Reg('v', 12, 4) if (p, d) == (3, 15) else Reg('a', (p * 16 + d) * 4, 4)
        AC = lambda c, p: Reg('v', 32 + 16 * c + 4 * p, 4)
        T = lambda c, j: Reg('v', 224 + 8 * (c % 4) + j, 1); U = lambda c, r: Reg('v', 228 + 8 * (c % 4) + r, 1)
        for i in range(224, 256, 2): a(f"v_mov_b64 v[{i}:{i+1}], 0")
        lds = []
        for d in range(16):
            lds += [(f"ds_read_b64_tr_b16 {X(d)[2*e:2*e+2]}, v{VXX} offset:{KB - 64 + 256*d + 32*(1-e)}", X(d)[2*e:2*e+2]) for e in range(2)]
            if d % 2 == 1:
                lds += [(f"ds_read_b64 {Z(p,dd)[2*e:2*e+2]}, v{VZ} offset:{p*1152 + 8 + 64*dd + 8*e}", Z(p, dd)[2*e:2*e+2]) for p in range(4) for dd in (d, d - 1) for e in range(2)]
        N = 288; B = Body(N, cyclic=False)
        n = 0; endc = {}
        for c in range(8):
            for p in range(4):
                for k in range(2 * c + 2):
                    B.set_mfma(n, AC(c, p), X(k), Z(p, 2 * c - k + 1), 0 if k == 0 else AC(c, p)); n += 1
            endc[c] = n - 1
        PRE = 44
        a(f"s_waitcnt vmcnt({m.after_u}) lgkmcnt(0)")
        for k, (tx, r) in enumerate(lds[:PRE]):
            a(tx)
            if k % 8 == 7: a("s_waitcnt lgkmcnt(6)")
        a("s_waitcnt lgkmcnt(0)")
        m.mark("s2_go")
        for k, (tx, r) in enumerate(lds[PRE:]): B.put(k, 'd', tx, r)
        pub = o['s2pub']
        B.put(pub - 1, 's', "s_waitcnt vmcnt(0)"); B.put(pub, 's', "s_barrier"); B.putg(pub + 1, f"buffer_store_dword v{VONE}, v{VONE}, s[12:15], {sFCTX} offen sc1", "fl")
        B.putg(N - o['oplead'], f"buffer_load_dword v23, v11, s[12:15], {'s44' if o['shb2'] else 's45'} offen sc1", "p")
        a("v_lshlrev_b32 v11, 2, v22", "s_add_u32 s45, s44, 1088")
        if o['shb']:
            B.putg(o['shb'] - 41, "buffer_load_dword v23, v11, s[12:15], s44 offen offset:64 sc1", "p0")
            t = o['shb']
            while B.pre[t] or B.pre[t + 1] or B.has(t, 'v'): t += 1
            B.vmwait(t, ["p0"]); B.put(t, 'v', "v_cmp_ne_u32 s[52:53], 0, v23")
            for x in ("s_cmp_eq_u64 s[52:53], 0", "s_cselect_b32 s49, 1, 0", "s_cselect_b32 s51, s37, 2.0"): B.put(t + 1, 's', x)
            for k, (sc, x) in enumerate(m.sh_dmas()):
                t += o['shstep'] if k else 4
                while B.has(t, 'g') or B.has(t, 'v') or B.pre[t] or (sc and (B.pre[t - 1] or B.pre[t - 2] or B.has(t - 1, 'g') or B.has(t - 2, 'g'))): t += 1
                B.putg(t, x, "sh")
                for j, y in enumerate(sc): B.put(t - 2 + j, 's', y)
            assert t < N - o['oplead']
        rest = []; tv = len(lds) - PRE - 30; td = len(lds) - PRE - 1
        for c in range(8):
            A0, A1, A2, A3 = (AC(c, p) for p in range(4))
            st1 = [f"v_add_f32 {A1[3]}, {A1[3]}, {A2[2]}", f"v_add_f32 {A2[3]}, {A2[3]}, {A3[2]}", f"v_add_f32 {A1[3]}, {A1[3]}, {A3[1]}"]
            st1 += [f"v_cndmask_b32_e64 {T(c,j)}, {AC(c,j+1)[3]}, {AC(c-1,j+1)[3] if c else 0}, vcc" for j in range(3)]
            ds = [(f"ds_bpermute_b32 {T(c,j)}, v{VB}, {T(c,j)}", T(c, j)) for j in range(3)] + [(f"ds_read_u16_d16_hi {U(c,r)}, v{VU} offset:{r*1152 + 128 + 128*c}", U(c, r)) for r in range(4)]
            st2 = [f"v_add_f32 {A0[1]}, {A0[1]}, {A1[0]}", f"v_add_f32 {A0[2]}, {A0[2]}, {A1[1]}", f"v_add_f32 {A0[3]}, {A0[3]}, {A1[2]}",
                   f"v_add_f32 {A0[2]}, {A0[2]}, {A2[0]}", f"v_add_f32 {A0[3]}, {A0[3]}, {A2[1]}", f"v_add_f32 {A0[3]}, {A0[3]}, {A3[0]}"]
            st3 = [(f"v_add_f32 {A0[j]}, {A0[j]}, {T(c,j)}", T(c, j)) for j in range(3)] + [(f"v_fmac_f32 {A0[r]}, s31, {U(c,r)}", U(c, r)) for r in range(4)]
            st4 = [f"v_cvt_pk_bf16_f32 {A0[0]}, {A0[0]}, {A0[1]}", f"v_cvt_pk_bf16_f32 {A0[1]}, {A0[2]}, {A0[3]}"]
            sto = f"buffer_store_dwordx2 {A0[0:2]}, v{VY_}, s[12:15], s34 offen offset:{512*c} sc1"
            if c < 7:
                tv = max(tv, endc[c] + 8)
                for x in st1: tv = B.place(tv, N, 'v', x)
                td = max(td, tv)
                for x, r in ds: td = B.place(td + 1, N, 'd', x, r)
                for x in st2: tv = B.place(tv, N, 'v', x)
                t3 = max(tv, td + 6)
                for x, r in st3: t3 = B.place(t3, N, 'v', x, None, r)
                for x in st4: t3 = B.place(t3, N, 'v', x)
                t3 = B.place(t3 + 1, N, 'g', sto)
                done3 = getattr(m, '_d3', {}); done3[c] = t3; m._d3 = done3
                if c >= 3: tv = max(tv, done3[c - 3])
            else: rest = ["s_nop 7"] + st1 + [x for x, r in ds] + st2 + ["s_waitcnt lgkmcnt(0)"] + [x for x, r in st3] + st4 + [sto]
        B.auto_lgkm(look=2, maxcnt=15)
        t = pub + 4
        for x in setup:
            if x.startswith("s_"):
                t += 1
                while B.pre[t] or B.has(t, 'g'): t += 1
                B.put(t, 's', x)
            else: t = B.place(t, N, 'v', x)
        t = max(t, m._d3[2])
        for x in qloads: t = B.place(t + 2, N, 'g', x) + 10
        assert t - 10 < N - o['oplead']
        ops = B.resolve_vm(); m.after_p = len(ops) - 1 - ops.index("p") + 1
        print("s2 pattern:", B.pattern(), len(B.report()))
        a(*B.lines()); a(*rest)
        m.mark("s2_end")

    def red_setup(m):
        a = m.a
        a("s_lshl_b32 s42, s42, 4", "s_lshl_b32 s36, s41, 6", "s_add_u32 s36, s36, 896", f"s_add_u32 s35, s36, {1024*1792}", f"s_add_u32 s39, s37, {0x40000000 if m.o.get('xld', 0) & 2 else 64*14*m.PS}")
        srd(a, 8, pOut, 2048 * 1792)
        a("v_and_b32 v2, 15, v0", "v_add_u32 v2, s42, v2", "v_mul_u32_u24 v7, 896, v2", "v_lshrrev_b32 v3, 4, v0", "v_lshlrev_b32 v8, 4, v3", "v_lshl_add_u32 v2, v7, 1, v8", "v_add_u32 v7, v7, v8")
        a("v_and_b32 v4, 1, v0", "v_lshlrev_b32 v4, 4, v4", "v_mov_b32 v5, 0x3f80", "v_lshlrev_b32 v4, v4, v5",
          "v_bfe_u32 v5, v0, 3, 1", "v_bfe_u32 v6, v0, 1, 1", "v_lshl_add_u32 v5, v5, 1, v6",
          "v_bfe_u32 v6, v0, 2, 1", "v_lshlrev_b32 v6, 1, v6", "v_sub_u32 v6, v3, v6", "v_lshl_add_u32 v5, v6, 2, v5")
        for h in range(2):
            for k in range(4): a(f"v_cmp_eq_u32 s[{16+2*k}:{17+2*k}], {4*h+k}, v5")
            for k in range(4): a(f"v_cndmask_b32 v{24+4*h+k}, 0, v4, s[{16+2*k}:{17+2*k}]")
    def red_loads(m, sp, base, thr=0):
        for k in range(16):
            if thr and k >= thr: m.a(f"s_waitcnt vmcnt({thr-1})")
            m.a(f"buffer_load_dwordx4 a[{base+4*k}:{base+4*k+3}], v1, s[12:15], {sp} offen offset:{(k%4)*1024} sc1")
            if k % 4 == 3: m.a(f"s_add_u32 {sp}, {sp}, 4096")
    def red_sum(m, base, acc, younger=None):
        for h in range(16):
            if younger is not None: m.a(f"s_waitcnt vmcnt({15 - h + younger})")
            for f in range(2): m.a(mfma(Reg('v', acc + 4 * f, 4), Reg('v', 24 + 4 * f, 4), Reg('a', base + 4 * h, 4), Reg('v', acc + 4 * f, 4) if h else 0))
    def red_out(m, acc, so, off):
        for i in range(4): m.a(f"v_cvt_pk_bf16_f32 v{acc+i}, v{acc+2*i}, v{acc+2*i+1}")
        m.a(f"buffer_store_dwordx4 v[{acc}:{acc+3}], v2, s[8:11], {so} offen offset:{off} {m.o['outfl']}")

    def endgame(m):
        a, name, o = m.a, m.n, m.o
        m.oproj(1)
        if o['shb2']:
            assert o['shb'] and not o['bpre']
            m.red_setup()
            a("s_add_u32 s45, s44, 1024", f"s_add_u32 s39, s39, {7*m.PS}", "s_waitcnt vmcnt(0)", "s_barrier", f"buffer_store_dword v9, v9, s[12:15], {sFCTX} offen sc1")
            m.mark("pub")
            m.poll("s45", 16, 16, 17)
        else:
            if not o['sh2c']: a(f"s_waitcnt vmcnt({m.after_p1})", "v_cmp_ne_u32 vcc, 0, v12", "s_cmp_eq_u64 vcc, 0", "s_cselect_b32 s50, 1, 0", "s_cselect_b32 s51, s38, 2.0")
            real = m.a; m.a = Asm(); m.red_setup(); fill = m.a.L; m.a = Asm(); m.red_loads("s51", 128, o['thrA']); lds = m.a.L; m.a = real
            n0 = o['apre']
            if n0: interleave(a, fill, [[x] for x in lds[:n0 // 4 * 5]])
            else: a(*fill)
            a("s_add_u32 s45, s44, 1024", f"s_add_u32 s39, s39, {7*m.PS}", f"s_waitcnt vmcnt({n0})", "s_barrier", f"buffer_store_dword v9, v9, s[12:15], {sFCTX} offen sc1")
            if not o['sh2c']: a(*lds[n0 // 4 * 5:])
            m.mark("pub")
            if o['shb']:
                a("s_cmp_eq_u32 s50, 1", f"s_cbranch_scc1 {name}_haveshort")
                m.poll("s44", 16, 16, 17)
                m.mark("flag1")
                m.red_loads("s38", 128, o['thrA'])
                a(f"{name}_haveshort:")
                m.apoll("s45", 16, 246, 17)
                m.red_sum(128, 40, 1); a("s_nop 7"); m.red_out(40, "s36", 448); a("s_waitcnt vmcnt(1)")
            else:
                a("s_and_b32 s51, s49, s50", f"s_cbranch_scc1 {name}_haveshort")
                m.poll("s44", 16, 16, 17)
                m.mark("flag1")
                a("s_cmp_eq_u32 s49, 1", f"s_cbranch_scc1 {name}_have1")
                m.red_loads("s37", 64)
                a(f"{name}_have1:", "s_cmp_eq_u32 s50, 1", f"s_cbranch_scc1 {name}_have2")
                m.red_loads("s38", 128)
                a(f"{name}_have2:", "s_waitcnt vmcnt(0)", f"{name}_haveshort:")
                m.red_sum(64, 32)
                m.apoll("s45", 16, 246, 17)
                m.red_sum(128, 40, 1); m.red_out(32, "s36", 0); a("s_nop 2"); m.red_out(40, "s36", 448)
            a("s_waitcnt vmcnt(2)")
            m.mark("mid_end")
            if o['w0poll'] & 1: a("s_cmp_lg_u32 s3, 0", f"s_cbranch_scc1 {name}_w0a")
            m.acheck("s45", 16, 246, 16, 17)
            if o['w0poll'] & 1: a(f"{name}_w0a:", "s_barrier")
        m.mark("ctx_flag")
        m.red_loads("s39", 0); m.red_sum(0, 48, 0)
        m.mark("p4_loop")
        a("s_nop 7"); m.red_out(48, "s35", 448)
        m.mark("p4_end")
        a(f"s_branch {name}_fin", f"{name}_idle:")
        m.publish(sFCTX, V_T0, V_T1)
        a(f"s_branch {name}_fin")
        a(f"{name}_opB:")
        m.oproj(0)
        real = m.a; m.a = a = Asm()
        m.red_setup()
        srd(a, 16, pAq, 2048 * 896)
        a(f"s_lshl_b32 {sFCTX}, {sIDX}, 2", f"s_add_u32 {sFCTX}, {sFCTX}, {F_Y}", "s_lshl_b32 s43, s41, 6", f"s_add_u32 s43, s43, {F_Y}",
          "s_lshl_b32 s46, s41, 7", f"s_add_u32 s54, s46, {1024*896}", f"s_add_u32 s55, s46, {1024*1792}",
          "s_lshl_b32 s56, s42, 1", f"s_mul_i32 s57, s41, {64*m.CS}", "s_add_u32 s56, s56, s57", f"s_add_u32 s56, s56, {WS_Y}", f"s_add_u32 s57, s56, {32*m.CS}", "s_lshl_b32 s58, s3, 12", "s_add_u32 s58, s58, 0x20000", "s_mov_b32 s59, 0xffff0000", "s_lshl_b32 s47, s3, 14",
          "v_lshrrev_b32 v8, 1, v0", f"v_mul_u32_u24 v8, {m.CS}, v8", "v_and_b32 v9, 1, v0", "v_lshl_add_u32 v8, v9, 4, v8",
          "v_lshlrev_b32 v10, 3, v3", "v_bfe_u32 v6, v0, 2, 2", "v_add_u32 v10, v10, v6", "v_lshlrev_b32 v10, 5, v10", "v_and_b32 v6, 3, v0", "v_lshl_add_u32 v10, v6, 3, v10",
          "v_add_u32 v10, s58, v10", "v_add_u32 v9, s47, v1")
        fill = a.L; m.a = Asm(); m.red_loads("s51", 0); lds = m.a.L; m.a = a = real
        m.s2(fill, [f"buffer_load_dwordx4 v[{48+4*k}:{51+4*k}], v7, s[16:19], {'s54' if k >= 2 else 's46'} offen offset:{64*(k%2)}" for k in range(4)])
        a(f"s_waitcnt vmcnt({m.after_p})", "v_cmp_ne_u32 vcc, 0, v23", "s_cmp_eq_u64 vcc, 0", "s_cselect_b32 s50, 1, 0", "s_cselect_b32 s51, s39, 2.0")
        n1 = o['bpre']; assert n1 % 4 == 0
        a(*lds[:n1 // 4 * 5])
        def shsum():
            for k in range(16): a(f"ds_read_b128 a[{64+4*k}:{67+4*k}], v9 offset:{1024*k}")
            for h in range(16):
                a(f"s_waitcnt lgkmcnt({15-h})")
                for f in range(2): a(mfma(Reg('v', 40 + 4 * f, 4), Reg('v', 24 + 4 * f, 4), Reg('a', 64 + 4 * h, 4), Reg('v', 40 + 4 * f, 4) if h else 0))
        if o['shb']: shsum()
        a(f"s_waitcnt vmcnt({n1})", "s_barrier", f"buffer_store_dword v21, v21, s[12:15], {sFCTX} offen sc1")
        if o['shb']:
            a("s_cmp_eq_u32 s49, 1", f"s_cbranch_scc1 {name}_havesh", "s_add_u32 s48, s44, 64", "s_mov_b32 s47, s51")
            m.poll("s48", 16, 16, 17)
            a("s_mov_b32 s51, s37")
            for sc, x in m.sh_dmas(): a(*sc); a("s_nop 0", x)
            a("s_mov_b32 s51, s47", "s_waitcnt vmcnt(0)"); shsum()
            a("s_nop 4", f"{name}_havesh:", "s_nop 2"); m.red_out(40, "s36", 0)
        m.mark("pub")
        if o['shb2']:
            a("s_cmp_eq_u32 s50, 1", f"s_cbranch_scc1 {name}_havesh2")
            m.poll("s44", 16, 16, 17)
            a(f"{name}_havesh2:")
            m.red_loads("s38", 128); m.apoll("s45", 16, 246, 17)
            m.red_sum(128, 80, 1); a("s_nop 7"); m.red_out(80, "s36", 448); a("s_waitcnt vmcnt(1)")
            m.acheck("s45", 16, 246, 16, 17)
        else:
            if o['w0poll'] & 2: a("s_mov_b32 s51, s39", "s_cmp_lg_u32 s3, 0", "s_cmov_b32 s50, 1")
            a("s_cmp_eq_u32 s50, 1", f"s_cbranch_scc1 {name}_havelong")
            m.poll("s45", 16, 16, 17)
        m.mark("flag1")
        a("s_mov_b32 s51, s39"); a(*lds[:n1 // 4 * 5])
        a(f"{name}_havelong:")
        if o['w0poll'] & 2: assert not n1; a("s_barrier")
        ydma = lambda sa: [x for k in range(4) for x in (f"s_add_u32 m0, s58, {1024*(k%2)}", "s_nop 0", f"buffer_load_dwordx4 v8, s[12:15], s{sa+k%2} offen offset:{2048*(k//2)} sc1 lds")]
        thr = lambda L: [y for x in L for y in ([f"s_waitcnt vmcnt({o['thrB']-1})"] if o['thrB'] and x.startswith("buffer") else []) + [x]]
        a(*thr(lds[n1 // 4 * 5:15])); a("buffer_load_dword v23, v11, s[12:15], s43 offen sc1"); a(*thr(lds[15:]))
        for h in range(16):
            if h == 12:
                a("s_waitcnt vmcnt(4)", "v_cmp_ne_u32 vcc, 0, v23", "s_cmp_eq_u64 vcc, 0", "s_cselect_b32 s50, 1, 0", "s_cselect_b32 s52, s56, 2.0", "s_cselect_b32 s53, s57, 2.0")
                a(*ydma(52))
            a(f"s_waitcnt vmcnt({16 - h if h < 12 else 19 - h})")
            for f in range(2): a(mfma(Reg('v', 32 + 4 * f, 4), Reg('v', 24 + 4 * f, 4), Reg('a', 4 * h, 4), Reg('v', 32 + 4 * f, 4) if h else 0))
        a("s_nop 7"); m.red_out(32, "s35", 0)
        m.mark("mid_end")
        a("s_cmp_eq_u32 s50, 1", f"s_cbranch_scc1 {name}_havey")
        m.poll("s43", 16, 16, 17)
        m.mark("ctx_flag")
        a(*ydma(56)); a("s_waitcnt vmcnt(0)", f"{name}_havey:", "s_waitcnt vmcnt(1)")
        for k in range(4):
            for e in range(2): a(f"ds_read_b64_tr_b16 v[{64+4*k+2*e}:{65+4*k+2*e}], v10 offset:{1024*k + 128*e}")
        for k in range(4):
            a(f"s_waitcnt lgkmcnt({6-2*k})")
            for i in range(4):
                q, y = 48 + 4 * k + i, 64 + 4 * k + i
                a(f"v_lshlrev_b32 v16, 16, v{q}", f"v_and_b32 v17, s59, v{q}", f"v_lshlrev_b32 v18, 16, v{y}", f"v_and_b32 v19, s59, v{y}",
                  "v_pk_mul_f32 v[16:17], v[16:17], v[18:19]", f"v_cvt_pk_bf16_f32 v{q}, v16, v17")
            a(f"buffer_store_dwordx4 v[{48+4*k}:{51+4*k}], v2, s[8:11], {'s55' if k >= 2 else 's46'} offen offset:{64*(k%2)} {m.o['outfl']}")
        m.mark("p4_end")

def mega10(a, name, diag=False, **o):
    m = Mega(a, name, diag, **o)
    kernel_header(a, name)
    if o.get('rerun'): a("s_mov_b32 s97, 0")
    a("s_cmp_lt_u32 s2, 256", f"s_cbranch_scc1 {name}_go", "s_endpgm", f"{name}_go:")
    m.proj(); m.attn()
    m.endgame()
    a(f"{name}_fin:")
    if o.get('holdmin'):
        a("s_not_b32 s98, s96" if o['holdmin'] == 1 else "s_mov_b32 s98, s96", "v_mov_b32 v2, 0", "v_mov_b32 v3, s98", "s_mov_b64 exec, 1", f"global_atomic_umax v2, v3, s[{pDbg}:{pDbg+1}] offset:64 sc1", "s_mov_b64 exec, -1",
          f"{name}_h0:", "s_memrealtime s[98:99]", "s_waitcnt lgkmcnt(0)", "s_sub_u32 s98, s98, s96", "s_cmp_lt_u32 s98, 9000", f"s_cbranch_scc1 {name}_h0",
          f"global_load_dword v3, v2, s[{pDbg}:{pDbg+1}] offset:64 sc1", "s_waitcnt vmcnt(0)", "v_readfirstlane_b32 s96, v3", "s_nop 3")
        if o['holdmin'] == 1: a("s_not_b32 s96, s96")
    if not diag: m.mark("drain")
    if diag:
        a("s_waitcnt vmcnt(0)"); m.mark("drain"); m.st.store(a)
        if o.get('dbgout') is not None:
            a(f"s_cmp_lg_u32 s2, {o['dbgout']}", f"s_cbranch_scc1 {name}_nodbg", "s_cmp_lg_u32 s3, 0", f"s_cbranch_scc1 {name}_nodbg", "v_accvgpr_read_b32 v2, a255", "v_mov_b32 v4, 0", "s_nop 1",
              "v_readlane_b32 s40, v2, 0", "v_readlane_b32 s41, v2, 1")
            for k, nm in enumerate(["kv_go", "kv_end", "q_end", "att_go", "tail_end", "op_go", "op_end", "drain"]):
                i = STAMPS.index(nm)
                a(f"v_readlane_b32 s42, v2, {2*i}", f"v_readlane_b32 s43, v2, {2*i+1}", "s_nop 3", "s_sub_u32 s42, s42, s40", "s_sub_u32 s43, s43, s41",
                  f"v_writelane_b32 v4, s42, {2*k}", f"v_writelane_b32 v4, s43, {2*k+1}")
            a("s_mov_b64 exec, 0xffff", f"global_store_dword v1, v4, s[{pDbg}:{pDbg+1}]", f"{name}_nodbg:")
    a("s_endpgm", f"{name}_codeend:")
    return kernel_desc(name)

def make(diag=False, **o):
    from build import build, NAME
    s = build([(NAME + "_kernel", mega10, 256, 163840, o)], diag=diag)
    return s.replace(f"; @launch kernel={NAME}_kernel grid", "; @launch grid").replace(NAME + "_kernel_", "L_")
if __name__ == "__main__":
    import sys, hazard
    s = make(diag=len(sys.argv) > 2)
    print("hazards", hazard.check(s))
    open(sys.argv[1] if len(sys.argv) > 1 else "mega.s", "w").write(s)
```

```python
from common import *
from gemm import Gemm, quad_order
import k2 as AT
from k2 import V_L16, V_KA, V_VA, V_D0, V_D1, TS, LS, NM, V_T0, V_T1, V_T2, V_R, V_T3, P, S, E, C, O, Q, F, fload, set_qk, set_pv, cvts
from k2 import S_KM, S_VM, S_KP, S_VP, S_LEFT, S_THR, S_FLOOR, S_BIG

F_KV, F_CTX, F_PO, F_U, F_Y, F_TK = (WS_FLAG + x for x in (0, 0x1000, 0x2000, 0x6000, 0x7000, 0x8000))
sX, sI, sH, sROLE, sJJ, sW1K = "s24", "s25", "s26", "s27", "s28", "s29"
pAq, pAk, pAv, pAsh, pAssm, pAD, pX, pC, pWq, pWuk, pWuv, pWo, pOut, pDbg = range(64, 92, 2)
sFKV, sFCTX, sFPO, sIDX = "s92", "s93", "s94", "s95"
STAMPS = ["entry", "e_args", "e_t0", "e_t1", "e_wait", "e_land", "kv_go", "kv_end", "q_end", "q_stored", "s1_done", "kv_flag", "att_go", "seg1_end", "seg1_fin", "tail_go", "tail_end", "po_flag", "att_fin", "op_go", "op_end", "s2_go", "s2_end", "pub", "flag1", "mid_end", "ctx_flag", "p4_loop", "p4_end", "drain"]

class Mega:
    def __init__(m, a, name, diag, **o):
        m.a, m.n, m.st = a, name, Stamps2(diag)
        m.o = dict(b1=40, b2=89, gstep=5, nA=20, L=16, NP=4, stfl=' sc1', st0=-104, ststep=7, pubgap=40, LW=13, groups=((0, 1), (2, 3), (4, 5, 6)),
                   wstep=5, pf=1, PD=2, nunits=9, pfdelay=2, DW=7, C0=4, s2pub=6, sleep=6, pgap=109, oppub=40, LO=14, epf=0, ehalf=190, s1g=230, s1gl=240, qlate=0, latepos=0, opw=7, oplead=40, opr=7, opfl='sc1', opoob=0, t1fast=1, outfl='', kg=(1, 6), vg=(49, 6), look=2, afl='sc1', xfl='', yfl='', lean=0, kvlead=30, rot=1, qfl=' sc1', stmod=(1, 1), popf=0, head=1, pre1=10, pfhead=2, stord=(0, 1, 2, 4, 5, 3), stsw=0, ststep0=7, apf=0, stl0=100, stlstep=10, l2pf=0, l2at=44, cs=8, cl=4, opsm=110, opc0=5, w23=(5, 5), w4=6, bpre=0, apre=0, shb=90, shstep=8, cpf1=1, cpf2=None, cpf3=0, x0=6, qsplit=1, zq=0, fa=1, d0wait=1, jjmap=1, fab=1, dse=4, denorm=3, bskip=1, lat=8, gkind=3, coal=1, prog=0, two=0, sh1=0, progk=16, tlb=0, w0poll=3, sh2c=0, thrA=5, thrB=0, jjB=0, yfirst=1, bv3=5, bclean=2, onebr=2, kvbr=1, shb2=1, pad=(0, 0, 0, 1024, 1024, 0)); m.o.update(o)
        m.npoll = 0
        p = m.o['pad']; m.TS = 0x8000 + p[0]; m.HS = 32 * m.TS + p[1]; m.VB = 16 * m.HS + p[2]; m.IS = 0x4000 + p[3]; m.PS = 0x4000 + p[4]; m.CS = 4096 + p[5]
        assert m.VB + 16 * m.HS <= WS_CTX
    def mark(m, nm):
        if m.o.get('attstamp'):
            k = {"entry": 0, "q_end": 1, "att_go": 2, "tail_go": 27, "op_go": 28, "drain": 29}.get(nm)
            if k is not None: m.st.mark(m.a, k)
            if nm == "att_go": m.a("s_mov_b32 s0, 6")
            return
        if (m.st.on != 2 and not m.o.get('tilestamp')) or nm in ("entry", "drain") or (m.o.get('tilestamp') and STAMPS.index(nm) < 8): m.st.mark(m.a, STAMPS.index(nm))
        if m.o.get('tilestamp') and nm in ("q_stored", "s1_done", "att_go", "tail_go"): m.st.mark(m.a, 1 + ("q_stored", "s1_done", "att_go", "tail_go").index(nm))
        m.jitter()
        if m.o.get('idle', (0, 0))[0] == nm: m.a(f"s_sleep {m.o['idle'][1]}")
        h = m.o.get('hold')
        if h and h[0] == nm:
            l = f"{m.n}_hold{m.npoll}"; m.npoll += 1
            m.a(f"{l}:", "s_memrealtime s[98:99]", "s_waitcnt lgkmcnt(0)", "s_sub_u32 s98, s98, s96", f"s_cmp_lt_u32 s98, {h[1]*100}", f"s_cbranch_scc1 {l}")
    def jitter(m):
        j = m.o.get('jitter')
        if not j: return
        l = f"{m.n}_jit{m.npoll}"; m.npoll += 1
        m.a("s_cselect_b32 s99, 1, 0", "s_memtime s[96:97]", "s_waitcnt lgkmcnt(0)", "s_mul_i32 s96, s96, 0x9e3779b1", "s_lshr_b32 s96, s96, 24", f"s_cmp_ge_u32 s96, {j[0]}", f"s_cbranch_scc1 {l}_x",
            f"{l}:", f"s_sleep {j[1]}", "s_sub_u32 s96, s96, 1", f"s_cbranch_scc0 {l}", f"{l}_x:", "s_cmp_lg_u32 s99, 0")
    def poll(m, soff, n, va, vd, val=0, dbg=False):
        a = m.a; l = f"{m.n}_poll{m.npoll}"; m.npoll += 1
        a(f"v_and_b32 v{va}, {n-1}, v0", f"v_lshlrev_b32 v{va}, 2, v{va}", "s_mov_b32 s32, 0", f"{l}:")
        a(f"global_load_dword v{vd}, v{va}, s[{pDbg}:{pDbg+1}] offset:{soff} sc1" if dbg else f"buffer_load_dword v{vd}, v{va}, s[12:15], {soff} offen sc1")
        a("s_waitcnt vmcnt(0)", f"v_cmp_ne_u32 vcc, {val}, v{vd}", f"s_cbranch_vccz {l}_ok", f"s_sleep {m.o['sleep']}", "s_add_u32 s32, s32, 1",
          "s_cmp_lt_u32 s32, 0x80000", f"s_cbranch_scc1 {l}", f"{l}_ok:")
    def apoll(m, soff, n, areg, va):
        m.a(f"v_and_b32 v{va}, {n-1}, v0", f"v_lshlrev_b32 v{va}, 2, v{va}", f"buffer_load_dword a{areg}, v{va}, s[12:15], {soff} offen sc1")
    def acheck(m, soff, n, areg, va, vd):
        l = f"{m.n}_poll{m.npoll}_ok"
        m.a(f"v_accvgpr_read_b32 v{vd}, a{areg}", f"v_cmp_ne_u32 vcc, 0, v{vd}", f"s_cbranch_vccz {l}")
        m.poll(soff, n, va, vd)
    def code_pf_setup(m):
        a, n = m.a, m.n
        mode = m.o['cpf1']; nl = {0: 64, 1: 9, 2: 2, 3: 17}[mode]
        a("s_getpc_b64 s[100:101]", f"{n}_pc:", f"s_sub_u32 s100, s100, {n}_pc-{n}_go", "s_subb_u32 s101, s101, 0")
        if mode == 2: a("s_lshl_b32 s32, s2, 2", "s_add_u32 s32, s32, s3", "s_mul_i32 s32, s32, 144")
        else: a("s_lshr_b32 s32, s2, 1", f"s_and_b32 s32, s32, {(12, 124, 0, 60)[mode]}", "s_add_u32 s32, s32, s3", f"s_mul_i32 s32, s32, {128*nl}", f"s_add_u32 s32, s32, {(0x1000, 0, 0, 0)[mode]}")
        a(f"v_min_u32 v14, {nl-1}, v0", "v_lshl_add_u32 v14, v14, 7, s32", f"v_min_u32 v14, {n}_codeend-{n}_go-4, v14")
    def code_pf(m, v=14): return f"global_load_dword a243, v{v}, s[100:101]"
    def setflag(m, soff, va, vd):
        m.a(f"v_mov_b32 v{va}, 0", "s_mov_b64 exec, 1", f"buffer_store_dword v{va}, v{va}, s[12:15], {soff} offen sc1", "s_mov_b64 exec, -1")
    def publish(m, soff, va, vd, local=False):
        a = m.a; l = f"{m.n}_pub{m.npoll}"; m.npoll += 1
        a("s_waitcnt vmcnt(0)", "s_barrier", "s_cmp_lg_u32 s3, 0", f"s_cbranch_scc1 {l}")
        if local: a("s_cmp_lg_u32 s30, 0", f"s_cbranch_scc1 {l}_x", "buffer_wbl2 sc1", "s_waitcnt vmcnt(0)", f"{l}_x:")
        m.setflag(soff, va, vd)
        a(f"{l}:")

    def proj(m):
        a, name, o = m.a, m.n, m.o
        NP = o['NP']
        m.jitter()
        if m.st.on: a("v_mov_b32 v1, v0"); m.st.init(a); m.mark("entry"); a("v_mov_b32 v0, v1")
        if o.get('hold'): a("s_memrealtime s[96:97]")
        a("s_load_dwordx16 s[64:79], s[0:1], 0", "s_load_dwordx8 s[80:87], s[0:1], 64", "s_load_dwordx4 s[88:91], s[0:1], 96", "s_load_dwordx2 s[12:13], s[0:1], 112")
        a("v_lshrrev_b32 v1, 6, v0", "v_and_b32 v0, 63, v0", "v_readfirstlane_b32 s3, v1",
          f"s_and_b32 {sX}, s2, 7", f"s_bfe_u32 {sI}, s2, 0x30003", f"s_bfe_u32 {sH}, s2, 0x10006", f"s_lshl_b32 s37, {sX}, 1", f"s_add_u32 {sH}, {sH}, s37",
          f"s_lshr_b32 {sROLE}, s2, 7", f"s_bfe_u32 {sJJ}, s2, 0x40003", f"s_lshl_b32 {sW1K}, s3, 10",
          "s_and_b32 s39, s3, 1", "s_lshr_b32 s40, s3, 1")
        if o['jjmap']:
            a(f"s_cmp_eq_u32 {sROLE}, 0", f"s_cselect_b32 s37, {7 - o['jjB']}, {8 - o['jjmap']}", f"s_add_u32 s37, s37, {sI}", "s_and_b32 s37, s37, 7", "s_lshl_b32 s37, s37, 1", f"s_lshr_b32 {sJJ}, {sJJ}, 3", f"s_add_u32 {sJJ}, {sJJ}, s37")
        m.code_pf_setup()
        if o['pf']: a(m.code_pf())
        def wrow(j): return 4 * (j & 1) + 16 * ((j >> 1) & 1) + 32 * (j >> 2)
        for j in range(1, 8): a(f"s_mov_b32 s{40+j}, {65536*j}", f"s_mov_b32 s{47+j}, {wrow(j)*8192}")
        ysoff = lambda j: "0" if j == 0 else f"s{40+j}"
        xsoff = lambda j: "0" if j == 0 else f"s{47+j}"
        a("s_lshl_b32 s56, s39, 1", "s_lshl_b32 s57, s40, 3", "s_add_u32 s56, s56, s57")
        VY, VX, VST, VQ, VXA, VONE = 1, 2, 1, 2, 15, 11
        yaddr = [Reg('v', 4, 1), Reg('v', 5, 1)]
        xaddr = [Reg('v', 6 + i, 1) for i in range(8)]
        a(f"s_lshl_b32 s60, {sI}, 8", "s_lshl_b32 s58, s3, 3", "s_add_u32 s58, s58, s60", "v_lshrrev_b32 v14, 3, v0", "v_add_u32 v14, s58, v14", "v_lshlrev_b32 v14, 11, v14",
          "s_lshl_b32 s58, s39, 2", "v_lshrrev_b32 v15, 4, v0", "v_add_u32 v15, s58, v15", "v_xor_b32 v15, v0, v15", "v_and_b32 v15, 7, v15", f"v_lshl_add_u32 v{VY}, v15, 4, v14")
        a("v_lshrrev_b32 v14, 5, v0", "s_lshl_b32 s58, s3, 1", "v_add_u32 v15, s58, v14",
          "v_lshlrev_b32 v15, 1, v15", "v_xor_b32 v15, v0, v15", "v_and_b32 v15, 31, v15", "v_lshlrev_b32 v15, 4, v15",
          "v_add_u32 v14, s56, v14", "v_lshl_add_u32 v14, v14, 13, v15", f"s_lshl_b32 s58, {sH}, 9", f"v_add_u32 v{VX}, s58, v14")
        a("s_waitcnt lgkmcnt(0)")
        m.mark("e_args")
        a(f"s_cmp_eq_u32 {sROLE}, 0", f"s_cselect_b32 s8, s{pWuk}, s{pWuv}", f"s_cselect_b32 s9, s{pWuk+1}, s{pWuv+1}", "s_mov_b32 s10, 8388608", "s_mov_b32 s11, 0x20000")
        srd(a, 4, pC, 4194304); a(f"s_mov_b32 s14, {WS_BYTES}", "s_mov_b32 s15, 0x20000")
        def dmas(p):
            y = [(f"s_add_u32 m0, {sW1K}, {p*32768 + j*4096}", f"buffer_load_dwordx4 v{VY}, s[4:7], {ysoff(j)} offen {o['yfl']} lds") for j in range(8)]
            x = [(f"s_add_u32 m0, {sW1K}, {65536 + p*32768 + j*4096}", f"buffer_load_dwordx4 v{VX}, s[8:11], {xsoff(j)} offen {o['xfl']} lds") for j in range(8)]
            return [d for pr in zip(x, y) for d in pr]
        adv = [f"v_add_u32 v{VY}, 128, v{VY}", f"v_add_u32 v{VX}, 0x80000, v{VX}"]
        real = a; a = Asm()
        a(f"s_lshl_b32 s58, {sROLE}, 3", f"s_add_u32 s59, s58, {sI}", "s_lshl_b32 s59, s59, 2", f"s_lshl_b32 {sFKV}, {sH}, 7", f"s_add_u32 {sFKV}, {sFKV}, s59", f"s_add_u32 {sFKV}, {sFKV}, {F_KV}",
          f"s_add_u32 s58, s58, {sX}", f"s_mul_i32 {sIDX}, s58, 14", f"s_add_u32 {sIDX}, {sIDX}, {sJJ}",
          f"s_sub_u32 s63, 15, {sI}", f"s_cmp_eq_u32 {sROLE}, 0", f"s_cselect_b32 s63, {sI}, s63",
          f"s_lshl_b32 {sFCTX}, s63, 7", f"s_lshl_b32 s59, {sH}, 2", f"s_add_u32 {sFCTX}, {sFCTX}, s59", f"s_add_u32 {sFCTX}, {sFCTX}, {F_CTX}",
          f"s_and_b32 {sFPO}, s2, 127", f"s_lshl_b32 {sFPO}, {sFPO}, 7", f"s_add_u32 {sFPO}, {sFPO}, {F_PO}")
        a("s_cmp_lg_u32 s3, 0", f"s_cbranch_scc1 {name}_noclr")
        a(f"s_lshl_b32 s58, {sIDX}, 2", f"s_add_u32 s59, s58, {F_Y}", f"s_add_u32 s58, s58, {F_U}", f"s_lshl_b32 s61, {sROLE}, 2", f"s_add_u32 s61, s61, {sFPO}",
          f"s_cmp_lt_u32 {sJJ}, 14", f"s_cselect_b32 s58, s58, {sFKV}", f"s_cselect_b32 s59, s59, {sFKV}",
          f"v_mov_b32 v14, {sFKV}", f"v_writelane_b32 v14, {sFCTX}, 1", "v_writelane_b32 v14, s61, 2", "v_writelane_b32 v14, s58, 3", "v_writelane_b32 v14, s59, 4",
          f"s_add_u32 s58, {sFCTX}, 64", "v_writelane_b32 v14, s58, 5",
          "s_lshl_b32 s58, s2, 12", f"s_add_u32 s58, s58, {F_TK}", "s_cmp_lt_u32 s2, 4", f"s_cselect_b32 s58, s58, {sFKV}", "v_writelane_b32 v14, s58, 6", "v_mov_b32 v15, 1", "s_mov_b64 exec, 127", "buffer_store_dword v15, v14, s[12:15], 0 offen sc1", "s_mov_b64 exec, -1")
        a(f"{name}_noclr:")
        a("s_cmp_eq_u32 s3, 0", "s_cselect_b32 s58, 0, 0x80000000", "v_bfrev_b32 v14, 1", "v_writelane_b32 v14, s58, 0", "v_accvgpr_write_b32 a245, v14")
        a("s_lshl_b32 s58, s39, 7", "s_lshl_b32 s59, s40, 3")
        a("v_and_b32 v14, 15, v0", "v_lshrrev_b32 v15, 4, v0",
          "s_lshl_b32 s60, s63, 7", "s_lshl_b32 s62, s3, 4", "s_add_u32 s60, s60, s62", "v_lshrrev_b32 v13, 3, v0", "v_lshlrev_b32 v13, 1, v13", "v_add_u32 v12, s60, v13", "v_mul_u32_u24 v12, 896, v12", "v_lshrrev_b32 v13, 1, v13", "v_xor_b32 v13, v0, v13", "v_and_b32 v13, 7, v13",
          "v_lshl_add_u32 v13, v13, 4, v12", "v_accvgpr_write_b32 a240, v13",
          "v_lshrrev_b32 v13, 1, v14", "v_xor_b32 v12, v13, v15", "v_lshlrev_b32 v12, 4, v12", "v_lshl_add_u32 v12, v13, 7, v12", "v_and_b32 v13, 1, v14", "v_lshl_add_u32 v12, v13, 10, v12",
          "s_lshl_b32 s33, s3, 13", "s_add_u32 s33, s33, 0x20000", "v_add_u32 v12, s33, v12", "v_accvgpr_write_b32 a242, v12",
          f"v_lshrrev_b32 {yaddr[1]}, 1, v14", f"v_xor_b32 {yaddr[1]}, {yaddr[1]}, v15",
          f"v_add_u32 v14, s58, v14", "v_lshlrev_b32 v14, 7, v14", f"v_lshl_add_u32 {yaddr[0]}, {yaddr[1]}, 4, v14", f"v_xor_b32 {yaddr[1]}, 64, {yaddr[0]}")
        a("v_bfe_u32 v14, v0, 2, 3", "v_lshrrev_b32 v15, 5, v0", "v_lshl_add_u32 v13, v15, 4, v14", "v_lshlrev_b32 v13, 9, v13",
          "v_xor_b32 v14, s59, v14", "v_lshl_add_u32 v13, v14, 5, v13", "v_and_b32 v14, 3, v0", "v_lshl_add_u32 v13, v14, 3, v13",
          f"v_add_u32 {xaddr[0]}, 0x10000, v13")
        for nb in range(1, 8): a(f"v_xor_b32 {xaddr[nb]}, {nb*32}, {xaddr[0]}")
        srd(a, 16, pWq, 448 * 8192); srd(a, 20, pX, 2048 * 896)
        cq = fbits(LOG2E / 16)
        a("s_and_b32 s62, s2, 127", "s_lshl_b32 s62, s62, 2", "s_add_u32 s62, s62, s3", f"s_mul_i32 s62, s62, {m.IS}", f"s_add_u32 s62, s62, {WS_CTX}",
          f"s_mul_i32 s58, {sH}, {m.HS}", f"s_mul_i32 s59, {sI}, {4*m.TS}", "s_add_u32 s58, s58, s59", f"s_mul_i32 s59, s39, {2*m.TS}", "s_add_u32 s58, s58, s59",
          "s_lshl_b32 s59, s40, 12", f"s_lshl_b32 s59, s59, {sROLE}", "s_add_u32 s58, s58, s59", f"s_mul_i32 s59, {sROLE}, {m.VB}", "s_add_u32 s58, s58, s59",
          f"s_mov_b32 s57, {64*896}", "s_lshl_b32 s60, s40, 8", "s_add_u32 s60, s60, 0x10000", f"s_mov_b32 s34, {cq}", f"s_mov_b32 s35, {cq}")
        niter = (16 - NP) // 2
        HEAD = o['head']
        a(f"s_mul_i32 s55, {sI}, {niter - 1}", "s_lshr_b32 s55, s55, 3", "s_add_u32 s55, s55, 1", "s_cmp_lg_u32 s3, 0", f"s_cmov_b32 s55, {niter}", "v_mov_b32 v15, 1")
        a(
          f"s_cmp_ge_u32 {sI}, {(33 - o['nA']) // 2}", "s_cmov_b32 s62, 2.0")
        selops = lambda b: ([f"v_mov_b32 v{b}, 0", f"v_mov_b32 v{b+1}, 0", f"v_mov_b32 v{b+4}, 0", f"v_mov_b32 v{b+5}, 0", f"v_and_b32 v{b+6}, 1, v0", f"v_lshlrev_b32 v{b+6}, 4, v{b+6}", f"v_mov_b32 v{b+7}, 0x3f80",
                             f"v_lshlrev_b32 v{b+6}, v{b+6}, v{b+7}", f"v_bfe_u32 v{b+7}, v0, 1, 3", f"v_lshrrev_b32 v{b+8}, 4, v0", f"v_lshlrev_b32 v{b+8}, 1, v{b+8}", f"v_sub_u32 v{b+7}, v{b+7}, v{b+8}",
                             f"v_cmp_eq_u32 s[0:1], 0, v{b+7}", f"v_cmp_eq_u32 vcc, 1, v{b+7}"],
                            [f"v_cndmask_b32 v{b+2}, 0, v{b+6}, s[0:1]", f"v_cndmask_b32 v{b+3}, 0, v{b+6}, vcc"])
        so = selops(20); keep = m.a; m.a = Asm(); m.op_setup(30, 31); ops_ = m.a.L[:-4]; m.a = keep
        a(*so[0]); a(*[x.replace("s78", "s31") for x in ops_[:8]]); a(*so[1]); a(*[f"v_accvgpr_write_b32 a{248+i}, v{20+i}" for i in range(6)])
        a("v_accvgpr_write_b32 a241, v30", f"s_lshl_b32 s31, {sROLE}, 3", f"s_add_u32 s31, s31, {sI}", f"s_cmp_lt_u32 s31, {(33 - o['nA']) // 2}", "s_cselect_b64 vcc, -1, 0", "v_lshlrev_b32 v31, 4, v0",
          "v_cndmask_b32 v30, v30, v31, vcc", "v_accvgpr_write_b32 a244, v30")
        a(*m.op_addr0(30, 31)); a("v_accvgpr_write_b32 a254, v30")
        m.wo_scalars = ops_[8:]
        lean = o['lean']
        a(f"s_lshl_b32 s31, {sI}, 16", f"s_lshl_b32 s32, {sH}, 9", "s_add_u32 s31, s31, s32")
        if lean: a("v_bfe_u32 v15, v0, 2, 3", "v_lshlrev_b32 v15, 13, v15", "v_and_b32 v14, 3, v0", "v_lshlrev_b32 v14, 7, v14", "v_add3_u32 v16, v14, v15, s31", "v_lshrrev_b32 v18, 5, v0", "v_lshl_add_u32 v16, v18, 30, v16")
        else: a("v_lshrrev_b32 v15, 3, v0", "v_lshlrev_b32 v15, 13, v15", "v_and_b32 v14, 7, v0", "v_lshlrev_b32 v14, 6, v14", "v_add3_u32 v16, v14, v15, s31")
        a(f"s_lshl_b32 s31, {sI}, 2", "s_lshr_b32 s32, s2, 6", "s_add_u32 s31, s31, s32", "s_lshl_b32 s31, s31, 17", "v_lshlrev_b32 v17, 11, v0", "v_add_u32 v17, s31, v17")
        if lean == 2: a("v_lshrrev_b32 v14, 3, v0", f"v_xor_b32 v14, {sX}, v14", "v_lshl_add_u32 v17, v14, 27, v17")
        PD = o['PD']; units = [pWq, pWq, pX, pAk, pAv, pWo, pWo, pAssm, pAq][:o['nunits']]
        a("s_mul_i32 s36, s2, 7282", "s_lshr_b32 s36, s36, 16", "s_mul_i32 s37, s36, 9", "s_sub_u32 s37, s2, s37", "s_lshl_b32 s38, s36, 16",
          f"s_mov_b64 s[30:31], s[{pWq}:{pWq+1}]")
        for u, pp in list(enumerate(units))[2:]: a(f"s_cmp_eq_u32 s37, {u}", f"s_cmov_b64 s[30:31], s[{pp}:{pp+1}]")
        a("s_add_u32 s32, s38, 1835008", "s_cmp_eq_u32 s37, 1", "s_cmov_b32 s38, s32", "s_cmp_eq_u32 s37, 6", "s_cmov_b32 s38, s32",
          "s_lshl_b32 s32, s39, 15", "s_add_u32 s38, s38, s32",
          f"s_cmp_ge_u32 s37, {len(units)}", "s_cmov_b32 s36, 28", "s_cmp_lt_u32 s36, 28", "s_cselect_b32 s32, 0x8000, 0", "s_cselect_b32 s38, s38, 0",
          "s_add_u32 s36, s30, s38", "s_addc_u32 s37, s31, 0", "s_mov_b32 s38, s32", "s_mov_b32 s39, 0x20000",
          "v_lshlrev_b32 v14, 6, v0" if not lean else "v_lshlrev_b32 v14, 7, v0", f"s_mov_b32 s56, {(-(o['pfdelay'] + max(PD, 1)) * 0x1000) & 0xffffffff:#x}", "s_movk_i32 s30, 0x1000")
        if lean: a("v_and_b32 v14, 0xfff, v14", "v_lshl_add_u32 v14, v18, 20, v14")
        a("s_cmp_ge_u32 s3, 2", f"s_cbranch_scc1 {name}_pfset", "s_mov_b32 s38, 0")
        if PD:
            a("s_cmp_eq_u32 s3, 0", "s_cselect_b64 s[36:37], s[8:9], s[4:5]", "s_cselect_b32 s38, s10, s6", "s_movk_i32 s30, 128", "s_cmov_b32 s30, 0x80000", "s_cselect_b64 vcc, -1, 0",
              "s_lshl_b32 s56, s30, 1", "v_cndmask_b32 v14, v17, v16, vcc")
        a(f"{name}_pfset:", "v_mov_b32 v15, 1", "v_lshlrev_b32 v3, 21, v0")
        if o['tlb']: a("s_cmp_eq_u32 s3, 2", "s_cselect_b32 s0, 0, 2.0", "s_cmp_eq_u32 s3, 3", f"s_cmov_b32 s0, {128*MB}")
        if not HEAD:
            for i in range(16, 256, 2): a(f"v_mov_b64 v[{i}:{i+1}], 0")
            for i in range(224, 240): a(f"v_accvgpr_write_b32 a{i}, 0")
        fill = a.L; a = real
        half = o['ehalf']; assert fill.index(f"{name}_noclr:") < half
        half = max(half, fill.index(f"{name}_pfset:") + 2)
        print("prologue fill", len(fill), half)
        grp = lambda p: [[m0, "s_nop 0", t] for m0, t in dmas(p)]
        if HEAD:
            g0 = grp(0); g0[-1] = g0[-1] + adv
            interleave(a, fill, g0 + grp(1)[:o['pre1']]); m.mark("e_t0")
        else:
            interleave(a, fill[:half], grp(0)); a(*adv); m.mark("e_t0")
            interleave(a, fill[half:], grp(1)); a(*adv); m.mark("e_t1")
        NPRE = 0 if (HEAD and o['pfhead']) else max(PD, 1)
        for k in range(NPRE): a("buffer_load_dword a243, v14, s[36:39], s56 offen", "s_add_u32 s56, s56, s30")
        pfs = [("buffer_load_dword a243, v14, s[36:39], s56 offen", "s_add_u32 s56, s56, s30")] * 2 if o['pf'] else None
        xreg = lambda p, x, s_: Reg('a', (x * 2 + s_) * 4, 4)
        yreg = lambda p, y, s_: Reg('a', 64 + (y * 2 + s_) * 4, 4)
        G = []
        for ty in range(2):
            key = (lambda x, y: (x // 2, y)) if ty == 0 else (lambda x, y: (x, y // 2))
            done = {}
            for n, (x, y, st) in enumerate(quad_order(8, 8, 1)): done[key(x, y)] = n
            order = sorted(done, key=lambda k: done[k])
            preg = {}; nv = 0
            for pi, k in enumerate(order):
                if pi in (2, 3): preg[k] = Reg('a', 224 + 8 * (pi - 2), 8)
                else: preg[k] = Reg('v', 16 + 8 * nv, 8); nv += 1
            half = (lambda x, y: x % 2) if ty == 0 else (lambda x, y: y % 2)
            acc = lambda x, y, preg=preg, key=key, half=half: preg[key(x, y)][4 * half(x, y):4 * half(x, y) + 4]
            g = Gemm(8, 8, acc, ty == 1, xreg, yreg, xaddr, yaddr, dmas, adv, o['b1'], o['b2'], o['gstep'], pf=pfs, bskip=o['bskip'], lat=o['lat'])
            g.order, g.preg, g.done = order, preg, done
            G.append(g)
        assert HEAD
        a(f"s_cmp_eq_u32 {sROLE}, 0", f"s_cbranch_scc0 {name}_vloop_head")
        def head(g, lab):
            T = 128; b1, b2 = o['b1'], o['b2']
            B = Body(T + 8, cyclic=False); seen = set()
            for n in range(T + 8):
                tx, src, dst = g.B.m[n]; key = min(dst)
                if key not in seen: seen.add(key); tx = tx[:tx.rindex(",")] + ", 0"
                B.m[n] = (tx, src, dst)
            for q, rel, txt, reg in g.dl:
                if 0 <= q * T + rel < T: B.put(q * T + rel, 'd', txt, reg)
            B.put(b1 - 1, 's', "s_waitcnt lgkmcnt(0)"); B.put(b1, 's', "s_barrier"); B.vmwait(b2 - 1, ["t1"]); B.put(b2, 's', "s_barrier")
            B.auto_lgkm(look=2)
            def G1(t, txt, tag, sc):
                while B.has(t, 'v') or B.pre[t - 1] or not all(x.startswith("s_waitcnt") for x in B.pre[t]): t += 1
                B.putg(t, txt, tag, sc); return t
            t = 1
            for m0, tx in dmas(1)[o['pre1']:]: t = G1(t, tx, "t1", m0) + 4
            for x in adv: t = max(t, B.place(max(t - 3, 0), T, 'v', x) + 2)
            if o['pfhead'] == 1:
                for k in range(PD):
                    t = G1(t, pfs[0][0], "pf", None)
                    while B.pre[t + 1]: t += 1
                    B.put(t + 1, 's', pfs[0][1]); t += 4
            t = max(t, b1 + 2); st = 4 if t > 46 else 5
            for m0, tx in dmas(0): t = G1(t, tx, "t2", m0) + st
            t -= st; assert t < T
            B.resolve_vm(["t1"])
            print("head pattern:", B.pattern())
            a(f"{lab}_head:"); m.mark("e_wait")
            a("s_mov_b32 s61, 0", f"s_waitcnt vmcnt({o['pre1']+NPRE})"); m.mark("e_land"); a("s_barrier")
            a(*g.preload[0]); m.mark("kv_go"); a("s_waitcnt lgkmcnt(0)")
            a(*B.lines(0, T)); a(*adv)
            if pfs and o['pfhead'] >= 2:
                for k in range(PD): a(pfs[0][1]) if k < o['pfhead'] - 1 else a(*pfs[0])
            if pfs: a(*pfs[0])
            if o['tlb']:
                a("buffer_load_dword a243, v3, s[12:15], s0 offen")
            a(f"s_branch {lab}_mid")

        def tail(g, ty, late=None):
            T = 128; H = 256; Z = H + NP * T; N = Z + 448
            b1, b2 = o['b1'], o['b2']
            B = Body(N, cyclic=False)
            for u in range(NP + 2):
                p = u % 2
                for n in range(T): B.m[u * T + n] = g.B.m[p * T + n]
                for q, rel, txt, reg in g.dl:
                    if q == p and u * T + rel >= 0: B.put(u * T + rel, 'd', txt, reg)
                B.put(u * T + b1 - 1, 's', "s_waitcnt lgkmcnt(0)"); B.put(u * T + b1, 's', "s_barrier")
            hi = lambda pi: g.preg[g.order[pi]][4:8]; lo = lambda pi: g.preg[g.order[pi]][0:4]
            qlist = [('hi', 1), ('hi', 5), ('hi', 6), ('hi', 7), ('hi', 0), ('hi', 4)] + [('hi', k) for k in range(8, 32)] + [('lo', 0), ('lo', 1)]
            qacc = lambda db, qs: (hi if qlist[2 * db + qs][0] == 'hi' else lo)(qlist[2 * db + qs][1])
            xf = lambda ks, qs: Reg('a', (128 + (ks * 2 + qs) * 4) if ks < 12 else (112 + ((ks - 12) * 2 + qs) * 4), 4)
            groups = o['groups']; region = [0, 0x10000, 0x8000, 0x18000, 0x20000, 0, 0x10000]
            ring = lambda f: Reg('a', 64 + 4 * (f % 12), 4)
            n = Z; f = 0; LW = o['LW']; gstart = []; qdone = {}; xors = []; na = 0
            for gi, grp in enumerate(groups):
                kss = [2 * t + h for t in grp for h in range(2)]
                gstart.append(Z + 2 * f - LW)
                for db in range(16):
                    for qs in range(2):
                        for j, ks in enumerate(kss):
                            B.set_mfma(n, qacc(db, qs), ring(f + j), xf(ks, qs), 0 if (gi == 0 and j == 0) else qacc(db, qs)); n += 1
                        qdone[db, qs] = n - 1
                    for j, ks in enumerate(kss):
                        if ks % 2 == 0:
                            va = 7 + na % 4; na += 1
                            xors.append((Z + 2 * (f + j) - LW, f"v_xor_b32 v{va}, {db*32 | region[ks//2]}, v6"))
                        for e in range(2):
                            B.put(Z + 2 * (f + j) - LW + e, 'd', f"ds_read_b64_tr_b16 {ring(f+j)[2*e:2*e+2]}, v{va} offset:{(ks%2)*16384 + e*4096}", ring(f + j)[2*e:2*e+2])
                    f += len(kss)
            lastread = Z + 2 * f - LW
            assert NP >= 4
            for u in range(NP + 2):
                kt = 16 - NP - 2 + u; p = u % 2
                if kt + 2 < 16:
                    for (m0, txt), gp in zip(dmas(p), g.gpos[p]): B.putg(gp - p * T + u * T, txt, f"kv{kt+2}", m0)
                    for gp, txt in g.advpos:
                        if gp // T == p: B.put(gp - p * T + u * T, 'v', txt)
            if pfs: B.putg(g.gpos[1][-1] + 3, pfs[1][0], "pf")
            t12 = (NP - 2) * T; xlast = {}
            for rnd in range(4):
                t = t12 + rnd * T + b2 if rnd < 3 else Z
                for tt in range(2 * rnd, min(2 * rnd + 2, 7)):
                    for qs in range(2):
                        for h in range(2):
                            tx = f"ds_read_b128 {xf(2*tt+h, qs)}, v{3 if h else 14} offset:{(tt%2)*4096 + qs*2048}"
                            if rnd == 2 and (t + 1 - b1 - 3) % 5 == 0: t += 1
                            if rnd < 3: t = B.place(t + 1, t + 12, 'd', tx, xf(2 * tt + h, qs))
                            else: t += 2; B.put(t, 'd', tx, xf(2 * tt + h, qs))
                xlast[rnd] = t
            def lgkm_cover(pos, lastpos):
                cnt = sum(1 for k in range(lastpos + 1, pos) for it in B.vec[k] if it[0] == 'd')
                B.put(pos, 's', f"s_waitcnt lgkmcnt({min(cnt, 15)})")
            xstart = {0: t12 + o['x0']}
            for rnd in range(1, 4):
                pos = max(t12 + rnd * T + 2, xlast[rnd - 1] + 8); lgkm_cover(pos, xlast[rnd - 1]); xstart[rnd] = pos + 1
            br4 = xlast[3] + 10; lgkm_cover(br4 - 1, xlast[3]); B.put(br4, 's', "s_barrier")
            bfree = gstart[1] + 10
            B.put(bfree - 1, 's', "s_waitcnt lgkmcnt(9)"); B.put(bfree, 's', "s_barrier")
            B.put(N - 3, 's', "s_waitcnt lgkmcnt(0)"); B.put(N - 2, 's', "s_barrier")
            bars = []
            for u in range(1, NP + 1): bars.append((u * T + b2, [f"kv{16-NP-2+u+1}"] + ([f"x{u-NP+2}"] if u >= NP - 2 else [])))
            for gi, grp in enumerate(groups): bars.append((gstart[gi] - 1, [f"wq{t}" for t in grp] + (["x3"], [], ["arm"])[gi]))
            for pos, tags in bars: B.vmwait(pos - 1, tags); B.put(pos, 's', "s_barrier")
            B.auto_lgkm(look=3, maxcnt=15)
            def gfree(t): return not B.has(t, 'g') and not any(k in 've' for k, *_ in B.vec[t]) and all(x.startswith("s_waitcnt") for x in B.pre[t]) and len(B.pre[t]) <= 1
            state = dict(last=-1)
            def G1(t, txt, tag, sc=None, mind=2):
                while True:
                    if gfree(t) and not any(B.has(k, 'g') for k in range(max(0, t - mind + 1), min(N, t + mind))) and (sc is None or not B.pre[t - 1] or (not B.pre[t - 2] and not B.has(t - 2, 'g'))): break
                    t += 1
                B.putg(t, txt, tag)
                if sc: B.put(t - 1 if not B.pre[t - 1] else t - 2, 's', sc)
                return t
            for pos, tx in xors: B.place(pos - 3, pos, 'v', tx, back=True)
            B.place((NP + 1) * T + b1, xors[0][0] - 3, 'v', "v_xor_b32 v6, s60, v6")
            wq = lambda t, j: (f"buffer_load_dwordx4 v{VQ}, s[16:19], {xsoff(j)} offen lds", f"wq{t}", f"s_add_u32 m0, {sW1K}, {region[t] + j*4096}")
            B.place(H, H + 5, 'v', f"v_accvgpr_read_b32 v{VXA}, a240")
            if o['pf'] and o['cpf2'] is not None:
                tq = B.place(H, H + 5, 'v', "v_accvgpr_read_b32 v14, a244"); tq = G1(max(tq + 1, H + o['cpf2']), m.code_pf(), "pf")
            else: tq = H
            if o['l2pf'] & 1:
                tq = B.place(max(tq + 1, H + o['l2at']), N, 'v', "v_accvgpr_read_b32 v14, a241"); tq = G1(tq + 1, "buffer_load_dword a243, v14, s[16:19], 0 offen", "pf")
            if o['l2pf'] & 2:
                tq = B.place(max(tq + 1, H + o['l2at']), N, 'v', "v_accvgpr_read_b32 v14, a253")
                for pp in (pAk, pAv): tq = G1(tq + 1, f"global_load_dword a243, v14, s[{pp}:{pp+1}]", "pf")
            assert tq < H + b2 - 6
            tq = B.place(tq + 1, tq + 20, 'v', "v_accvgpr_read_b32 v14, a242"); B.place(tq + 1, tq + 20, 'v', "v_xor_b32 v3, 64, v14")
            B.place(NP * T, NP * T + 20, 'v', f"v_lshlrev_b32 v{VST}, 4, v0")
            cur = [16]
            def wgroup(t, start, step):
                start = B.place(start - 2, start + 8, 'v', f"v_add_u32 v{VQ}, {((t - cur[0]) * 0x80000) & 0xffffffff:#x}, v{VQ}") + 1; cur[0] = t
                for j in range(8): start = G1(start, *wq(t, j)) + step
                return start
            for rnd in range(4):
                t = xstart[rnd]
                for tt in range(2 * rnd, min(2 * rnd + 2, 7)):
                    for qs in range(2):
                        for h in range(2):
                            im = h * 896 + tt * 128
                            t = G1(t, f"buffer_load_dwordx4 v{VXA}, s[20:23], {'s57' if qs else 0} offen offset:{im} lds", f"x{rnd}", f"s_add_u32 m0, s33, {((tt%2)*4096 + qs*2048 + h*1024 - im) & 0xffffffff:#x}") + 4
                assert t - 4 < t12 + rnd * T + b1 + 12, (rnd, t)
            t = wgroup(0, NP * T + b1 + 3, 5); t = wgroup(1, t, 5)
            plan = o['plan'][late] if o.get('plan') else None
            if not plan:
                w23 = o['w23'][late]
                t = wgroup(2, (NP + 1) * T + b1 + 3, w23); t = wgroup(3, t, w23)
                t = wgroup(4, max(t, br4 + 3), o['w4'])
                t = wgroup(5, max(t, bfree + 3), o['wstep']); t = wgroup(6, t, o['wstep'])
            def V1(t, txt): return B.place(t, N, 'v', txt)
            soff = (lambda k: (k[1] // 4) * m.TS + (k[1] % 4) * 8192 + k[0] * 1024) if ty == 0 else (lambda k: (k[1] // 2) * m.TS + (k[1] % 2) * 16384 + k[0] * 1024)
            base15 = (NP + 1) * T
            tv = 0; ready = {}; packed = {}
            def S1(t, txt):
                while B.pre[t] or B.has(t, 'g'): t += 1
                for y in (txt if isinstance(txt, tuple) else (txt,)): B.put(t, 's', y)
                return t
            S1(base15 - 20, (f"s_cmp_lt_u32 {sI}, 4", f"s_cselect_b32 s1, 2.0, {sFKV}")); S1(base15 - 30, "s_mov_b32 s56, s58")
            def store(t, pi, base, tag):
                r = {2: hi(0), 3: hi(4)}.get(pi) or lo(pi); off = soff(g.order[pi])
                return G1(t, f"buffer_store_dwordx4 {r}, v{VST}, s[12:15], s59 offen offset:{off % 4096}{o['stfl']}", tag, f"s_add_u32 s59, {base}, {off - off % 4096}")
            ts = Z + o['st0']; spos = {}; xslot = None
            if plan:
                todo = list(o['stord'] + tuple(range(6, 32))); rel = {2: base15 + b1 + 3, 3: 0, 4: br4 + 3, 5: bfree + 3, 6: 0}; tq_ = ts
                for it in plan.split():
                    if it[0] == 'S':
                        for k in range(int(it[1:])): pi = todo.pop(0); ts = spos[pi] = store(tq_, pi, "s56", "st"); tq_ = max(tq_ + o['cs'], ts + 2)
                    elif it[0] == 'W': t = tq_ = wgroup(int(it[1:]), max(tq_, rel[int(it[1:])]), o['cl'])
                    elif it[0] == '@': tq_ = max(tq_, Z + int(it[1:]))
                    elif it[0] == 'X': xslot = tq_; tq_ += 60
                assert not todo
                ts += o['ststep']
            for pi in (() if plan else o['stord'] + tuple(range(6, 32))):
                if late and pi >= 4:
                    if pi < 6: ts += o['ststep0']
                    continue
                ts = spos[pi] = store(ts, pi, "s56", "st")
                ts += o['ststep'] if ts >= Z + o['stsw'] else o['ststep0']
            if late and not plan:
                tl = Z + o['stl0']
                for pi in range(4, 32): tl = spos[pi] = store(tl, pi, "s56", "st"); tl += o['stlstep']
            print("stores end", spos[31] - Z)
            def cv(pi, dst, s0, s1):
                nonlocal tv
                for i, (x, y) in enumerate(((s0[0], s0[1]), (s0[2], s0[3]), (s1[0], s1[1]), (s1[2], s1[3]))): tv = V1(tv, f"v_cvt_pk_bf16_f32 {dst[i]}, {x}, {y}")
                packed[pi] = (dst, tv)
            for pi in (0, 1, 2, 4, 5, 3) + tuple(range(6, 32)):
                k = g.order[pi]; tv = max(tv, base15 + g.done[k] + 8)
                if pi in (2, 3):
                    ta, tb = (hi(0), hi(1)) if pi == 2 else (hi(4), hi(5))
                    for i in range(8): tv = V1(tv, f"v_accvgpr_read_b32 {(ta if i < 4 else tb)[i%4]}, {g.preg[k][i]}")
                    cv(pi, ta, ta, tb); ready['hi', 1 if pi == 2 else 5] = tv
                else:
                    cv(pi, lo(pi), lo(pi), hi(pi)); ready['hi', pi] = tv
            for pi in range(32):
                assert packed[pi][1] < spos[pi], (pi, packed[pi][1], spos[pi])
                ready[{2: ('hi', 0), 3: ('hi', 4)}.get(pi, ('lo', pi))] = spos[pi]
            for idx, kq in enumerate(qlist): assert ready[kq] < Z + 4 * idx - 1, (kq, ready[kq], Z + 4 * idx)
            tp = ts - o['ststep'] + o['pubgap']
            late_pub = tp > N - 12
            if not late:
                while B.pre[tp] or B.pre[tp - 1] or B.has(tp, 'g'): tp += 1
                B.vmwait(tp - 1, ["st"]); B.put(tp, 's', "s_barrier")
                B.place(Z, tp, 'v', f"v_accvgpr_read_b32 v{VONE}, a245")
                G1(tp + 1, f"buffer_store_dword v{VONE}, v{VONE}, s[12:15], {sFKV} offen sc1", "fl", mind=1)
            tz = B.place(Z + 20, N, 'v', "v_mov_b32 v12, 0"); tz = G1(tz + 1, f"global_load_dword v5, v12, s[{pDbg}:{pDbg+1}] offset:128 sc1", "arm")
            tz = B.place(tz + 1, N, 'v', "v_and_b32 v12, 11, v0"); B.place(tz + 1, N, 'v', "v_lshlrev_b32 v12, 2, v12")
            sc, ve, vm = m.s1a_ops(); tz = Z + 40
            for x in sc:
                tz += 1
                while B.pre[tz] or B.has(tz, 'g'): tz += 1
                B.put(tz, 's', x)
            tz = max(tz, spos[16])
            for x in ve: tz = B.place(tz + 1, N, 'v', x)
            tve = tz; tz = max(tz + 1, xslot or Z + o['s1gl' if late else 's1g'])
            for x in (vm[:1] if o.get('nos1') else vm): tz = G1(tz, x, "s1") + 4
            ts1 = tz
            tz = max(t, tve) + 2
            for x in m.att_scalars(ty):
                tz += 1
                while B.pre[tz] or B.has(tz, 'g'): tz += 1
                for y in (x if isinstance(x, tuple) else (x,)): B.put(tz, 's', y)
            assert tz < N - o['kvlead']
            tz = max(tz, ts1)
            for x in m.att_scalars2(ty): tz = S1(tz + 1, x)
            assert tz < N - 4
            G1(N - o['kvlead'], "buffer_load_dword v13, v12, s[12:15], s58 offen sc1", "kvp")
            tz = B.place(Z + 130, N, 'v', f"v_add_u32 v{V_D1}, 4096, v{V_L16}")
            tz = Z + 40
            for x in m.rthr(): tz = B.place(tz + 1, N, 'v', x)
            for k in range(16):
                for j, x in enumerate((f"v_cmp_gt_i32 vcc, {16*(k//4) + k%4}, v{V_R}", "v_cndmask_b32 v3, 0, v15, vcc", f"v_accvgpr_write_b32 a{224+k}, v3")): tz = B.place(tz + (1 if j == 1 else 0), N, 'v', x)
            print("masks end", tz - Z)
            rest = []; tv = 0
            for s in range(8):
                for qs in range(2):
                    ra, rb = qacc(2 * s, qs), qacc(2 * s + 1, qs)
                    cvs = [f"v_cvt_pk_bf16_f32 {ra[i]}, {x}, {y}" for i, (x, y) in enumerate(((ra[0], ra[1]), (ra[2], ra[3]), (rb[0], rb[1]), (rb[2], rb[3])))]
                    wrs = [f"v_accvgpr_write_b32 {Q(qs,s)[i]}, {ra[i]}" for i in range(4)]
                    off = qs * 0x2000 + s * 1024
                    sto = (f"buffer_store_dwordx4 {ra}, v{VST}, s[12:15], s59 offen offset:{off % 4096}{o['qfl']}", "qst", f"s_add_u32 s59, s62, {off - off % 4096}")
                    tv = max(tv, qdone[2 * s + 1, qs] + 8)
                    free = sum(1 for k in range(min(tv, N), N - 4) if B.fits(k, 'v'))
                    if free >= 20 and not rest:
                        for r in (ra, rb):
                            for i in range(4): tv = V1(tv, f"v_mul_f32 {r[i]}, s34, {r[i]}")
                        for x in cvs: tv = V1(tv, x)
                        if ty == 1 and not o['qlate']: G1(tv + 1, *sto)
                        for x in wrs: tv = V1(tv, x)
                    else:
                        rest += [f"v_pk_mul_f32 {r[i:i+2]}, {r[i:i+2]}, s[34:35]" for r in (ra, rb) for i in (0, 2)] + cvs + ([sto[2], sto[0]] if ty == 1 and not o['qlate'] else []) + wrs
            vops = B.resolve_vm()
            print(f"tail{ty} pattern:", " ".join(B.pattern().split()[H:])); print("over", len([x for x in B.report() if x[0] >= H]), "rest", len(rest), "late_pub", late_pub)
            ts_on = o.get('tilestamp')
            if not late:
                g.common = B.lines(H, base15)
                for u in range(NP - 1):
                    if ts_on: m.st.mark(a, 20 + u)
                    a(*B.lines(H + u * T, H + (u + 1) * T))
                a(f"s_cmp_ge_u32 {sI}, 4", f"s_cbranch_scc1 {name}_late{ty}")
            else:
                assert g.common == B.lines(H, base15)
                a(f"{name}_late{ty}:")
            if ts_on: m.st.mark(a, 23)
            a(*B.lines(base15, Z)); m.mark("kv_end")
            for u in range(4):
                a(*B.lines(Z + 112 * u, Z + 112 * (u + 1)))
                if ts_on: m.st.mark(a, 24 + u)
            m.mark("q_end")
            assert not late_pub and vops.index("kvp") > max(i for i, x in enumerate(vops) if x == 's1')
            a(f"s_waitcnt vmcnt({len(vops) - 1 - vops.index('kvp')})", "v_cmp_ne_u32 s[16:17], 0, v13", "v_cmp_gt_u32 vcc, 256, v5", "s_or_b64 vcc, vcc, s[16:17]",
              f"s_mov_b32 m0, s{S_KM}", "s_cselect_b32 s48, 0, 1", f"s_cselect_b32 s52, 2.0, s{S_KP}")
            interleave(a, rest, [(["s_bitset1_b32 m0, 12", "s_nop 0"] if j == 4 else []) + [AT.dma(52, j).replace(" lds", " sc1 lds")] for j in range(8)])

        def loop(g, lab):
            B = g.B
            if o['kvbr']:
                n_ = B.n; fr = [i for i in range(n_ - 6, n_ - 1) if not B.pre[i] and not B.has(i, 'g')][-2:]
                assert not any(x.startswith("s_add") for i in range(fr[1], n_) for x in B.pre[i])
                one = lambda i: B.lines(i, i + 1)[:1] + ({fr[0]: ["s_add_u32 s61, s61, 1"], fr[1]: ["s_cmp_lt_u32 s61, s55"]}.get(i, [])) + B.lines(i, i + 1)[1:]
                L = B.lines(0, 128) + [f"{lab}_mid:"] + [x for i in range(128, n_) for x in one(i)] + [f"s_cbranch_scc1 {lab}", f"s_cmp_lt_u32 s61, {niter}", f"s_cbranch_scc1 {lab}_side"]
            else:
                k = [i for i in range(4, 40) if not B.pre[i] and not B.vec[i]][0]
                pre_k = list(B.pre[k])
                L = B.lines(0, k) + [B.m[k][0], "s_cmp_eq_u32 s61, s55", f"s_cbranch_scc1 {lab}_side", f"{lab}_back:"] + B.lines(k + 1, 128) + [f"{lab}_mid:"] + B.lines(128, B.n - 2)
                L += [B.m[B.n-2][0], "s_add_u32 s61, s61, 1"] + B.lines(B.n - 2, B.n - 1)[1:] + B.lines(B.n - 1, B.n) + [f"s_cmp_lt_u32 s61, {niter}", f"s_cbranch_scc1 {lab}"]
            if o.get('tilestamp'):
                def stp(off): return ["s_memrealtime s[96:97]", "s_memtime s[98:99]", "v_accvgpr_read_b32 v0, a255", "s_waitcnt lgkmcnt(0)", "s_lshl_b32 s97, s61, 2", f"s_add_u32 s97, s97, {off}", "s_add_u32 s99, s97, 1", "s_mov_b32 vcc_lo, m0",
                                      "s_mov_b32 m0, s97", "v_writelane_b32 v0, s96, m0", "s_mov_b32 m0, s99", "v_writelane_b32 v0, s98, m0", "s_mov_b32 m0, vcc_lo", "v_accvgpr_write_b32 a255, v0", "v_mbcnt_lo_u32_b32 v0, -1, 0", "v_mbcnt_hi_u32_b32 v0, -1, v0"]
                im = L.index(f"{lab}_mid:"); L = stp(16) + L[:im + 1] + stp(18) + L[im + 1:]
            if HEAD: head(g, lab)
            a(".p2align 6", f"{lab}:"); a(*L)
            if o.get('rerun'):
                a("s_add_u32 s97, s97, 1", f"s_cmp_gt_u32 s97, {o['rerun']}", f"s_cbranch_scc1 {lab}_norerun", "s_waitcnt vmcnt(0) lgkmcnt(0)", "s_barrier",
                  "s_lshl_b32 s58, s3, 6", "v_add_u32 v0, s58, v0", f"s_branch {name}_go", f"{lab}_norerun:")
        loop(G[0], f"{name}_kloop"); tail(G[0], 0, 0); a(f"s_branch {name}_kvdone"); tail(G[0], 0, 1)
        a(f"s_branch {name}_kvdone")
        for lab in ("kloop", "vloop"):
            a(f"{name}_{lab}_side:", "s_mov_b64 exec, 1", f"global_atomic_add v3, v15, s[{pDbg}:{pDbg+1}] offset:128 sc1", "s_mov_b64 exec, -1", f"s_mov_b32 s55, {niter}", f"s_branch {name}_{lab}{'' if o['kvbr'] else '_back'}")
        loop(G[1], f"{name}_vloop"); tail(G[1], 1, 0); a(f"s_branch {name}_kvdone"); tail(G[1], 1, 1)
        a(f"{name}_kvdone:")
        m.mark("q_stored")

    S1K = lambda m, j: 32 + 8 * j
    S1V = lambda m, j: 72 + 8 * j
    S1W = lambda m, j: 88 + 8 * j
    def s1a_ops(m):
        sc = [f"s_and_b32 s36, {sIDX}, 31", f"s_lshr_b32 s37, {sIDX}, 5", "s_lshl_b32 s38, s3, 4", "s_lshl_b32 s39, s36, 6", "s_add_u32 s38, s38, s39", "s_mul_i32 s38, s38, 896",
              "s_lshl_b32 s39, s37, 7", "s_add_u32 s38, s38, s39", "s_lshl_b32 s39, s37, 9"]
        t = Asm(); srd(t, 4, pAk, 2048 * 896); srd(t, 8, pAv, 2048 * 896); srd(t, 20, pAsh, 448 * 8); sc += t.L
        ve = ["v_lshrrev_b32 v120, 3, v0", "v_mul_u32_u24 v120, 1792, v120", "v_and_b32 v121, 7, v0", "v_lshl_add_u32 v120, v121, 4, v120", "v_add_u32 v120, s38, v120", "v_lshlrev_b32 v121, 6, v121",
              f"v_subrev_u32 v122, {896*3}, v120", f"v_subrev_u32 v123, {896*2}, v120", f"v_subrev_u32 v128, 896, v120"]
        q = lambda r: f"v[{r}:{r+3}]"
        vm = [f"buffer_load_dwordx4 {q(m.S1K(j))}, v{(122,123,128)[j]}, s[4:7], 0 offen" for j in range(3)]
        vm += [f"buffer_load_dwordx4 {q(m.S1K(3+j))}, v120, s[4:7], 0 offen offset:{896*j}" for j in range(2)]
        vm += [f"buffer_load_dwordx4 {q(m.S1V(j))}, v120, s[8:11], 0 offen offset:{896*j}" for j in range(2)]
        vm += [f"buffer_load_dwordx4 {q(m.S1W(j))}, v121, s[20:23], s39 offen offset:{16*j}" for j in range(4)]
        return sc, ve, vm
    def s1b(m):
        a, name = m.a, m.n
        a(f"s_cmp_ge_u32 {sJJ}, 14", f"s_cbranch_scc1 {name}_s1b", "s_mov_b32 s36, 0xffff0000", f"s_and_b32 s33, {sIDX}, 31", f"s_lshr_b32 s34, {sIDX}, 5")
        def unpack(dst, src, hi): a(f"v_and_b32 v{dst}, s36, v{src}" if hi else f"v_lshlrev_b32 v{dst}, 16, v{src}")
        T = 128
        for c2 in range(4):
            for j in range(5):
                for h in range(2): unpack(T + 2 * j + h, m.S1K(j) + c2, h)
            for j in range(2):
                for h in range(2): unpack(T + 10 + 2 * j + h, m.S1V(j) + c2, h)
            for j in range(4):
                for h in range(2): unpack(T + 14 + 2 * j + h, m.S1W(c2) + 2 * h + j // 2, j % 2)
            pr = lambda r: f"v[{T+r}:{T+r+1}]"
            for t in range(2):
                d = pr(22 + 2 * t)
                a(f"v_pk_mul_f32 {d}, {pr(2*t)}, {pr(20)}", f"v_pk_fma_f32 {d}, {pr(2+2*t)}, {pr(18)}, {d}", f"v_pk_fma_f32 {d}, {pr(4+2*t)}, {pr(16)}, {d}",
                  f"v_pk_fma_f32 {d}, {pr(6+2*t)}, {pr(14)}, {d}", f"v_pk_mul_f32 {d}, {d}, {pr(10+2*t)}", f"v_cvt_pk_bf16_f32 v{16+4*t+c2}, v{T+22+2*t}, v{T+23+2*t}")
        a("v_lshrrev_b32 v26, 3, v0", "v_lshlrev_b32 v26, 8, v26", "v_and_b32 v25, 7, v0", "v_lshl_add_u32 v26, v25, 4, v26", "s_lshl_b32 s35, s3, 11", "s_add_u32 s35, s35, 0x20000", "v_add_u32 v26, s35, v26")
        for t in range(2): a(f"ds_write_b128 v26, v[{16+4*t}:{19+4*t}] offset:{128*t}")
        a("v_bfe_u32 v24, v0, 2, 2", "v_bfe_u32 v28, v0, 4, 1", "v_lshl_add_u32 v24, v28, 3, v24", "v_lshlrev_b32 v24, 2, v24", "v_lshrrev_b32 v28, 5, v0", "v_add_u32 v24, v24, v28",
          "v_lshlrev_b32 v24, 7, v24", "v_and_b32 v28, 3, v0", "v_lshl_add_u32 v24, v28, 3, v24", "s_lshl_b32 s35, s3, 5", "s_add_u32 s35, s35, 0x20000", "v_add_u32 v24, s35, v24")
        a("v_and_b32 v25, 15, v0", f"v_mul_u32_u24 v25, {m.CS}, v25", "v_lshrrev_b32 v28, 4, v0", "v_lshl_add_u32 v25, v28, 4, v25",
          "s_lshl_b32 s35, s34, 2", "s_add_u32 s35, s35, s3", f"s_mul_i32 s35, s35, {16*m.CS}", "s_lshl_b32 s36, s33, 7", "s_add_u32 s35, s35, s36", f"s_add_u32 s35, s35, {WS_U}")
        a(f"{name}_s1b:")
    def s1c(m):
        a, name = m.a, m.n
        a(f"s_cmp_ge_u32 {sJJ}, 14", f"s_cbranch_scc1 {name}_s1c")
        for ph in range(2):
            for e in range(2): a(f"ds_read_b64_tr_b16 v[{16+4*ph+2*e}:{17+4*ph+2*e}], v24 offset:{(16*e + 2*ph)*128}")
        a("s_waitcnt lgkmcnt(0)")
        for ph in range(2): a(f"buffer_store_dwordx4 v[{16+4*ph}:{19+4*ph}], v25, s[12:15], s35 offen offset:{64*ph} sc1")
        a(f"{name}_s1c:")

    def rthr(m): return [f"v_and_b32 v{V_R}, 15, v0", "v_lshrrev_b32 v3, 4, v0", "v_lshlrev_b32 v3, 2, v3", f"v_sub_u32 v{V_R}, v{V_R}, v3", f"v_lshrrev_b32_e64 v3, 6, {sW1K}", f"v_add_u32 v{V_R}, v3, v{V_R}",
                         f"v_mov_b32 v15, {fbits(-1e30)}"]
    def att_scalars2(m, role):
        L = ["s_and_b32 s4, s2, 127", "s_lshl_b32 s4, s4, 2", "s_add_u32 s4, s4, s3"]
        if role: L += ["s_lshl_b32 s6, s4, 10", f"s_add_u32 s6, s6, {WS_PL}", f"s_mul_i32 s4, s4, {m.IS}", f"s_add_u32 s4, s4, {WS_PO}", "s_add_u32 s5, s4, 0x2000", "s_mov_b32 s7, 0", "s_mov_b32 s53, 0",
                       ("s_cmp_eq_u32 s38, 0", "s_cmov_b32 s4, 2.0"), ("s_cmp_eq_u32 s38, 0", "s_cmov_b32 s5, 2.0"), ("s_cmp_eq_u32 s38, 0", "s_cmov_b32 s6, 2.0")]
        else: L += [f"s_mul_i32 s5, s4, {m.IS}", f"s_add_u32 s5, s5, {WS_CTX}", "s_add_u32 s4, s5, 0x2000", "s_mov_b32 s6, 2.0", "s_min_u32 s7, s38, 1", (f"s_cmp_eq_u32 s{S_LEFT}, 1", "s_cselect_b32 s53, 1, 0"),
                    ("s_cmp_eq_u32 s38, 0", "s_cmov_b32 s4, 2.0"), ("s_cmp_eq_u32 s38, 0", "s_cmov_b32 s5, 2.0"), ("s_cmp_eq_u32 s38, 0", "s_cmov_b32 s60, s58")]
        return L + ["s_mov_b64 s[8:9], s[12:13]", "s_mov_b32 s10, s14", "s_mov_b32 s76, 0", "s_movk_i32 s77, 0x1000", "s_mov_b32 s51, 0"] + m.wo_scalars
    def att_scalars(m, role):
        L = [f"s_and_b32 s58, {sFKV}, ~127", f"s_lshl_b32 s37, {sI}, 1", f"s_sub_i32 s38, {32-m.o['nA']}, s37", "s_max_i32 s38, s38, 0",
             f"s_mul_i32 s49, {sH}, {m.HS}", "s_lshl_b32 s50, s3, 13", "s_add_u32 s49, s49, s50", f"s_mov_b32 s54, {2*role}"]
        if role: L += [f"s_sub_u32 s{S_LEFT}, 31, s37", f"s_sub_u32 s{S_LEFT}, s{S_LEFT}, s38", f"s_mul_i32 s55, s38, {m.TS}", f"s_add_u32 s{S_KP}, s55, s49", "s_add_u32 s60, s58, 16", f"s_sub_u32 s{S_THR}, 17, s37"]
        else: L += [f"s_add_u32 s{S_LEFT}, s37, 1", f"s_mov_b32 s{S_KP}, s49", f"s_add_u32 s60, {sFPO}, 4", f"s_mov_b32 s{S_THR}, 2"]
        if role and m.o['rot']:
            assert m.o['nA'] >= 19
            L += [f"s_sub_u32 s66, s{S_KP}, {m.TS}", f"s_add_u32 s{S_KP}, s49, {15*m.TS}", f"s_add_u32 s67, s49, {16*m.TS}", f"s_add_u32 s68, s66, {m.VB}", f"s_add_u32 s69, s67, {m.VB}",
                  f"s_mov_b32 s70, {-m.TS & 0xffffffff:#x}", "s_mov_b32 s71, s70"]
        else: L += ["s_mov_b32 s66, 1", "s_mov_b32 s68, 1", f"s_mov_b32 s70, {m.TS}", "s_mov_b32 s71, s70"]
        L += [f"s_add_u32 s{S_VP}, s{S_KP}, {m.VB}", f"s_mov_b32 s{S_KM}, s50", f"s_add_u32 s{S_VM}, s50, 0x10000",
              f"s_lshr_b32 s61, {sIDX}, 4", "s_lshl_b32 s61, s61, 7", f"s_add_u32 s61, s61, {F_U}", f"s_mov_b32 s{S_BIG}, {fbits(2.0**24)}",
              f"s_lshl_b32 s30, {sIDX}, 1", "s_lshr_b32 s31, s3, 1", "s_add_u32 s30, s30, s31", "s_min_u32 s30, s30, 223", "s_lshl_b32 s30, s30, 2"]
        return L
    def attn(m):
        a, name, o = m.a, m.n, m.o
        nA, L = o['nA'], o['L']
        sNB, sHB, sW8K, sMODE, sQB = "s38", "s49", "s50", "s54", "s51"
        dma = lambda sp, j: AT.dma(sp, j).replace(" lds", " sc1 lds")
        a(f"s_load_dword s31, s[{pAD}:{pAD+1}], s30")
        if not o.get('nos1'): m.s1b()
        m.mark("s1_done")
        def issue(sm, sp, a):
            a(f"s_mov_b32 m0, s{sm}", "s_nop 0")
            for j in range(8):
                if j == 4: a("s_bitset1_b32 m0, 12", "s_nop 0")
                a(dma(sp, j))
            a(f"s_add_u32 s{sp}, s{sp}, s70", f"s_xor_b32 s{sm}, s{sm}, 0x8000")
        def qload(qb, dst, a):
            a(f"s_add_u32 s55, {qb}, s3", f"s_mul_i32 s55, s55, {m.IS}", f"s_add_u32 s55, s55, {WS_CTX}", "s_add_u32 s56, s55, 0x2000")
            for qs in range(2):
                for s in range(8): a(f"buffer_load_dwordx4 a[{dst+(qs*8+s)*4}:{dst+(qs*8+s)*4+3}], v{V_D0 if s < 4 else V_D1}, s[12:15], s{55+qs} offen offset:{(s%4)*1024} sc1")
        BIG = fbits(2.0**24)
        sFQ, sFU, sSSM = "s60", "s61", "s62"
        fill = [f"v_mov_b32 v{V_KA}, v{V_L16}", f"v_add_u32 v{V_VA}, 0x10000, v{V_L16}"] + [f"v_mov_b64 v[{i}:{i+1}], 0" for i in range(96, 256, 2)] + [f"v_mov_b32 {r}, 0" for r in LS + NM]
        fill += [f"v_mov_b32 v{V_T2}, v{V_L16}"]
        fill += [f"v_mul_u32_u24 v{V_T3}, {sROLE}, v12", "v_accvgpr_write_b32 a246, 1", "v_accvgpr_write_b32 a247, 1", f"s_cmp_lt_u32 {sJJ}, 14", f"s_cselect_b32 {sSSM}, 1, 0", f"s_andn2_b32 {sSSM}, {sSSM}, {sROLE}"]
        wosw = [f"v_accvgpr_read_b32 v{V_T2}, a241", f"s_mov_b64 s[8:9], s[{pWo}:{pWo+1}]", f"s_mov_b32 s10, {4096*896}"]
        if o['apf']:
            fill += ["s_mul_i32 s39, s2, 7168", "s_cmp_eq_u32 s3, 1", "s_cselect_b32 s36, 1835008, 0", "s_add_u32 s39, s39, s36",
                     f"s_mov_b64 s[4:5], s[{pWo}:{pWo+1}]", "s_cmp_eq_u32 s3, 2", f"s_cmov_b64 s[4:5], s[{pAssm}:{pAssm+1}]", "s_cmp_eq_u32 s3, 3", f"s_cmov_b64 s[4:5], s[{pAq}:{pAq+1}]",
                     "s_add_u32 s4, s4, s39", "s_addc_u32 s5, s5, 0", "s_movk_i32 s6, 7168", f"s_mov_b32 s39, {(-1024*o['apf']) & 0xffffffff:#x}",
                     f"v_lshrrev_b32 v{V_T3}, 3, v0", f"v_lshlrev_b32 v{V_T3}, 20, v{V_T3}", f"v_lshl_add_u32 v{V_T3}, v0, 7, v{V_T3}"]
        a("s_add_u32 s52, s52, s70", f"s_or_b32 m0, s{S_KM}, 0x8000", "s_nop 0")
        interleave(a, fill, [(["s_bitset1_b32 m0, 12", "s_nop 0"] if j == 4 else []) + [dma(52, j)] for j in range(8)])
        def mask(qs, park):
            a(f"v_mov_b32 v16, {fbits(-1e30)}")
            for kb in range(4):
                for i in range(4): a(f"v_cmp_gt_i32 s[{16+2*i}:{17+2*i}], {16*kb+i}, v{V_R}")
                for i in range(4): a(f"v_cndmask_b32 {'v%d' % (20+i) if park else C(kb,qs)[i]}, {NM[qs]}, v16, s[{16+2*i}:{17+2*i}]")
                if park: a(*[f"v_accvgpr_write_b32 a{224+4*kb+i}, v{20+i}" for i in range(4)])
        mread = lambda kb: [f"v_accvgpr_read_b32 {C(kb,0)[i]}, a{224+4*kb+i}" for i in range(4)]
        a(f"s_cmp_ge_u32 s{S_LEFT}, 2", f"s_cbranch_scc1 {name}_nomask0")
        for kb in range(4): a(*mread(kb))
        a(f"{name}_nomask0:", "v_accvgpr_read_b32 v27, a245", f"s_lshl_b32 s36, {sIDX}, 2", f"s_add_u32 s36, s36, {F_U}", f"s_cmp_lt_u32 {sJJ}, 14", "s_cselect_b32 s36, s36, 2.0",
          f"s_add_u32 s33, {sFPO}, 4", f"s_cmp_eq_u32 {sROLE}, 1", "s_cselect_b32 s33, s33, 2.0",
          "s_cmp_eq_u32 s48, 0", f"s_cbranch_scc1 {name}_kvlate", f"s_add_u32 s{S_KP}, s52, s70", f"{name}_kvok:", "s_waitcnt vmcnt(8) lgkmcnt(0)", "s_barrier")
        real = a; a = m.a = Asm()
        a(f"{name}_kvlate:", "v_cmp_gt_u32 vcc, 256, v5", "v_mov_b32 v29, 0", "s_mov_b32 s32, 0", f"s_cbranch_vccz {name}_armed",
          f"{name}_pollA:", f"global_load_dword v28, v29, s[{pDbg}:{pDbg+1}] offset:128 sc1", "s_add_u32 s32, s32, 1", "s_waitcnt vmcnt(0)", "v_cmp_gt_u32 vcc, 256, v28",
          "s_cmp_lt_u32 s32, 0x80000", "s_cselect_b64 vcc, vcc, 0", f"s_cbranch_vccnz {name}_pollA", f"{name}_armed:")
        m.poll("s58", 12, 28, 29)
        m.mark("kv_flag")
        issue(S_KM, S_KP, a); issue(S_KM, S_KP, a)
        a(f"s_branch {name}_kvok")
        late = a.L; a = m.a = real
        m.mark("att_go")
        B0 = Body(64, cyclic=False); set_qk(B0, 0)
        for n in range(8): a(fload(n))
        a("buffer_store_dword v27, v27, s[12:15], s1 offen sc1")
        a("buffer_store_dword v27, v27, s[12:15], s33 offen sc1")
        if not o.get('nos1'): m.s1c()
        a(f"s_mov_b32 m0, s{S_VM}", "s_waitcnt lgkmcnt(0)")
        for n in range(8, 32): B0.put(2 * n - 16, 'd', fload(n), F(n))
        B0.auto_lgkm(look=2, maxcnt=15)
        for j in range(8):
            B0.put(1 + 4 * j, 'g', dma(S_VP, j))
            if j == 4: B0.put(4 * j, 's', "s_bitset1_b32 m0, 12")
        B0.put(32, 's', f"s_add_u32 s{S_VP}, s{S_VP}, s71"); B0.put(34, 's', f"s_xor_b32 s{S_VM}, s{S_VM}, 0x8000")
        rest = []; te = 0; ta = 0; epos = {}
        els = [(kb, qs, i) for kb in range(4) for qs in range(2) for i in range(4)]
        ex = lambda kb, qs, i: f"v_exp_f32 {E(kb,qs)[i]}, {S(kb,qs)[i]}"
        ad = lambda kb, qs, i: f"v_add_f32 {TS[qs]}, {E(0,qs)[0] if (kb == 0 and i == 1) else TS[qs]}, {E(kb,qs)[i]}"
        for el in els:
            try: te = B0.place(max(te, 16 * el[0] + 8 * el[1] + 13), 64, 'e', ex(*el)); epos[el] = te
            except RuntimeError: te = 64; rest.append(ex(*el))
        rest2 = []
        for el in els:
            if el[0] == 0 and el[2] == 0: continue
            try: ta = B0.place(max(ta + 1, epos.get(el, 64) + 1), 64, 'v', ad(*el))
            except RuntimeError: ta = 64; rest2.append(ad(*el))
        print("first pattern:", B0.pattern(), len(rest), len(rest2))
        a(*B0.lines())
        a(f"v_xor_b32 v{V_KA}, 0x8000, v{V_KA}", "s_waitcnt vmcnt(8)", "s_barrier")
        for n in range(L // 2): a(fload(n))
        a("buffer_store_dword v27, v27, s[12:15], s36 offen sc1")
        a(*rest); a(*rest2)
        a(f"{name}_first:", f"v_add_f32 v{V_T0}, {TS[0]}, {TS[1]}", f"v_min_f32 v{V_T1}, {TS[0]}, {TS[1]}", f"v_cmp_nge_f32 vcc, s{S_BIG}, v{V_T0}",
          f"s_mov_b32 s{S_FLOOR}, 0xff800000", f"s_cbranch_vccnz {name}_slow2", f"v_cmp_gt_f32 vcc, {fbits(2.0**-24)}, v{V_T1}", f"s_cbranch_vccnz {name}_rowchk",
          f"{name}_firstok:", f"s_mov_b32 s{S_FLOOR}, 0", "s_waitcnt lgkmcnt(0)", f"s_cmp_gt_u32 s{S_LEFT}, s{S_THR}", f"s_cbranch_scc0 {name}_ret2")
        front = a; a = m.a = Asm()
        a(*late)
        a(f"{name}_rowchk:", f"v_mov_b32 v16, {TS[0]}", f"v_mov_b32 v17, {TS[1]}")
        for sw in ("v_permlane32_swap_b32", "v_permlane16_swap_b32"):
            a("v_mov_b32 v18, v16", "v_mov_b32 v19, v17", "s_nop 0", f"{sw} v16, v18", f"{sw} v17, v19", "s_nop 0", "v_add_f32 v16, v16, v18", "v_add_f32 v17, v17, v19")
        a("v_min_f32 v16, v16, v17", f"v_cmp_gt_f32 vcc, {fbits(2.0**-24)}, v16", f"s_cbranch_vccz {name}_firstok", f"s_branch {name}_slow2")
        a(f"{name}_slow:", f"s_cmp_lg_u32 s{S_BIG}, {BIG}", f"s_cbranch_scc1 {name}_switched", "s_nop 5", f"{name}_slow2:")
        for qs in range(2):
            mx, t = f"v{V_T0+qs}", "v16"
            el = [S(kb, qs)[i] for kb in range(4) for i in range(4)]
            a(f"v_max3_f32 {mx}, {el[0]}, {el[1]}, {el[2]}")
            for k in range(3, 15, 2): a(f"v_max3_f32 {mx}, {mx}, {el[k]}, {el[k+1]}")
            a(f"v_max_f32 {mx}, {mx}, {el[15]}")
            for sw in ("v_permlane32_swap_b32", "v_permlane16_swap_b32"):
                a(f"v_mov_b32 {t}, {mx}", "s_nop 1", f"{sw} {mx}, {t}", "s_nop 1", f"v_max_f32 {mx}, {mx}, {t}")
            a(f"v_max_f32 {mx}, s{S_FLOOR}, {mx}", f"v_sub_f32 {NM[qs]}, {NM[qs]}, {mx}")
            for e in el: a(f"v_sub_f32 {e}, {e}, {mx}")
            for kb in range(4):
                for i in range(4): a(f"v_exp_f32 {E(kb,qs)[i]}, {S(kb,qs)[i]}", f"v_mov_b32 {C(kb,qs)[i]}, {NM[qs]}")
            ee = [E(kb, qs)[i] for kb in range(4) for i in range(4)]
            a(f"v_add_f32 {TS[qs]}, {ee[0]}, {ee[1]}")
            for k in range(2, 16): a(f"v_add_f32 {TS[qs]}, {TS[qs]}, {ee[k]}")
        mask(0, True)
        a("s_waitcnt lgkmcnt(0)", f"s_cmp_lg_u32 s{S_FLOOR}, 0", f"s_mov_b32 s{S_FLOOR}, 0", f"s_cbranch_scc1 {name}_ret")
        for qs in range(2):
            f = f"v{V_T0+qs}"
            a(f"v_exp_f32 {f}, -{f}", "s_nop 0", f"v_mul_f32 {LS[qs]}, {LS[qs]}, {f}")
            for db in range(16):
                for i in range(4): a(f"v_mul_f32 {O(db,qs)[i]}, {O(db,qs)[i]}, {f}")
        a(f"s_branch {name}_ret")
        rare = a.L; a = m.a = front
        B = AT.main_body(name, L, kg=o['kg'], vg=o['vg'], look=o['look'], down=((66, 67, 70), (68, 69, 71)), kgen=(V_T2, 39, 76, 77), tstride=m.TS, bclean=o['bclean'], onebr=o['onebr'],
                         pfslot=(45, f"buffer_load_dword a243, v{V_T3}, s[4:7], s39 offen", "s_add_u32 s39, s39, 1024") if o['apf'] else None, pollslot=(o['pgap'], f"buffer_load_dword a246, v{V_T3}, s[12:15], {sFQ} offen sc1"))
        for i in range(B.n): B.vec[i] = [(k, t.replace(" lds", f" {o['afl']} lds") if k == 'g' else t, d, s_) for k, t, d, s_ in B.vec[i]]
        ab = o.get('aabl', '')
        for i in range(B.n):
            B.vec[i] = [it for it in B.vec[i] if it[0] not in ab]
            if 'b' in ab: B.pre[i] = [x for x in B.pre[i] if x != "s_barrier"]
            if 'w' in ab: B.pre[i] = [x for x in B.pre[i] if not x.startswith("s_waitcnt lgkm")]
        print("attn pattern:", B.pattern()); print("over:", B.report())
        a(".p2align 6", f"{name}_loop:")
        if o.get('attstamp'):
            a("s_memrealtime s[96:97]", "s_memtime s[98:99]", "v_accvgpr_read_b32 v0, a255", "s_waitcnt lgkmcnt(0)", "s_mov_b32 m0, s0", "s_add_u32 s0, s0, 1", "v_writelane_b32 v0, s96, m0", "s_mov_b32 m0, s0",
              "s_add_u32 s0, s0, 1", "v_writelane_b32 v0, s98, m0", "v_accvgpr_write_b32 a255, v0", "v_mbcnt_lo_u32_b32 v0, -1, 0", "v_mbcnt_hi_u32_b32 v0, -1, v0")
        a(*B.lines())
        def lsum_ops(t):
            out = []
            for sw in ("v_permlane32_swap_b32", "v_permlane16_swap_b32"):
                out.append([f"v_mov_b32 v{t+qs}, {LS[qs]}" for qs in range(2)])
                out.append([f"{sw} {LS[qs]}, v{t+qs}" for qs in range(2)])
                out.append([f"v_add_f32 {LS[qs]}, {LS[qs]}, v{t+qs}" for qs in range(2)])
            return out
        sel = lambda qs: "op_sel:[0,0] op_sel_hi:[1,0]" if qs == 0 else "op_sel:[0,1] op_sel_hi:[1,1]"
        cv = lambda qs, s: [f"v_cvt_pk_bf16_f32 v{O(2*s,qs).lo+i}, v{O(2*s,qs).lo+2*i}, v{O(2*s,qs).lo+2*i+1}" for i in range(4)]
        poadr = ["s_and_b32 s55, s2, 127", "s_lshl_b32 s57, s55, 2", "s_add_u32 s57, s57, s3", f"s_mul_i32 s55, s57, {m.IS}", f"s_add_u32 s55, s55, {WS_PO}", "s_lshl_b32 s57, s57, 10", f"s_add_u32 s57, s57, {WS_PL}"]
        H = 16; G1_, G2_, N = H + 128, H + 224, H + 288
        FB = Body(N, cyclic=False); R16 = lambda f: F(f % 16); first = {}; last = {}; sdone = {}; odone = {}; ltx = {}; cuse = {}
        for k in range(H): FB.m[k] = ("s_nop 0", set(), set())
        SELA = [Reg('a', 250, 4), Reg('a', 248, 4)]
        HX = lambda s: Reg('a', 128 + 4 * s, 4); HY = lambda s: Reg('a', 4 * s, 4)
        def M(n, d, f, b, c):
            FB.set_mfma(n, d, R16(f) if isinstance(f, int) else f, b, c)
            if isinstance(f, int): first.setdefault(f, n); last[f] = n
        kadr = lambda n: f"v{V_KA} offset:{n*1024}"; vadr = lambda db, ks: f"v{V_VA} offset:{(ks*16+db)*1024}"
        snake = ((0, 0), (1, 0), (1, 1), (0, 1))
        for kb in range(4):
            for k, qs in enumerate((1, 0)):
                for s in range(8): M(H + 16 * kb + 8 * k + s, S(kb, qs), 8 * kb + s, Q(qs, s), C(kb, qs) if s == 0 else S(kb, qs)); ltx[8 * kb + s] = kadr(8 * kb + s)
                sdone[0, kb, qs] = H + 16 * kb + 8 * k + 7; cuse[0, kb, qs] = H + 16 * kb + 8 * k
        for db in range(16):
            for k, (ks, qs) in enumerate(snake): M(H + 64 + 4 * db + k, O(db, qs), 32 + 2 * db + ks, P(ks, qs), O(db, qs)); ltx[32 + 2 * db + ks] = vadr(db, ks)
        for kb in range(4):
            b0 = G1_ + 24 * kb; f0 = 64 + 16 * kb
            for s in range(8): M(b0 + s, S(kb, 1), f0 + s, Q(1, s), C(kb, 1) if s == 0 else S(kb, 1)); ltx[f0 + s] = kadr(8 * kb + s)
            sdone[1, kb, 1] = b0 + 7; cuse[1, kb, 1] = b0
            order = [(d4, ks, qs) for qs in range(2) for d4 in range(4) for ks in range(2)] if kb == 0 else [(d4, ks, qs) for d4 in range(4) for ks, qs in snake]
            for k, (d4, ks, qs) in enumerate(order): M(b0 + 8 + k, O(4 * kb + d4, qs), f0 + 8 + 2 * d4 + ks, P(ks, qs), O(4 * kb + d4, qs)); ltx[f0 + 8 + 2 * d4 + ks] = vadr(4 * kb + d4, ks)
        for db in range(16):
            M(G2_ + db, O(db, 0), SELA[db % 2], HX(db // 2), O(db, 0)); odone[db, 0] = G2_ + db
            for ks in range(2): M(G2_ + 16 + 3 * db + ks, O(db, 1), 128 + 2 * db + ks, P(ks, 1), O(db, 1)); ltx[128 + 2 * db + ks] = vadr(db, ks)
            M(G2_ + 18 + 3 * db, O(db, 1), SELA[db % 2], HY(db // 2), O(db, 1)); odone[db, 1] = G2_ + 18 + 3 * db
        fl = lambda f: f"ds_read_b128 {R16(f)}, {ltx[f]}"
        bv, bk, bv2, bk2, bv3 = H + 47, H + 111, H + 115, G1_ + 81, G2_ + o['bv3']
        pos = {}
        for f in range(72): pos[f] = H + 2 * f - 16
        for k in range(6): pos[72 + k] = H + 117 + 2 * k
        t = G1_ - 1
        for f in range(78, 160):
            t = max(t + 1 + (1 if f % 2 == 0 and f > 80 else 0), last[f - 16], first[f] - 22, bv3 if f >= 128 else 0); pos[f] = t
            if f == 127:
                for n in range(8): t = max(t + 1, bk2 + 1 + int(1.6 * n)); FB.put(t, 'd', fload(n), F(n))
                assert t < G2_
        for f, t in pos.items():
            assert f < 16 or (last[f - 16] <= t <= first[f] - 6), (f, t, first[f])
            FB.put(t, 'd', fl(f), R16(f))
        FB.put(H - 2, 's', "s_waitcnt lgkmcnt(5)")
        for b, tags in ((bv, ["old"]), (bk, ["k"]), (bv2, ["v0"]), (bk2, ["kw", "x"]), (bv3, ["v1"])): FB.vmwait(b - 1, tags); FB.put(b, 's', "s_barrier")
        FB.vmwait(G2_ + 16, ["y"]); FB.put(G1_ + 26, 's', "s_barrier")
        FB.auto_lgkm(look=2, maxcnt=15)
        assert not FB.pre[H - 1]
        lastg = [-1]
        def GF(t, txt, tag, sc=()):
            ok = lambda k: all(x.startswith("s_waitcnt") for x in FB.pre[k]) and not FB.has(k - 1, 'g') and not FB.has(k, 'v') and sum(1 for q in range(max(k - 3, lastg[0] + 1), k) if not FB.pre[q]) >= len(sc)
            c = [k for k in range(t, t + 8) if ok(k)]
            c0 = [k for k in c if k < t + 2 and not FB.vec[k]]
            t = (c0 or c)[0]; FB.putg(t, txt, tag)
            fr = [q for q in range(max(t - 3, lastg[0] + 1), t) if not FB.pre[q]]
            for q, y in zip(fr[::-1], sc): FB.put(q, 's', y)
            lastg[0] = t; return t
        def SF(t, *txt):
            while FB.pre[t] or FB.has(t, 'g'): t += 1
            for y in txt: FB.put(t, 's', y)
            return t
        def VF(lo, hi, txt, kind='v'):
            c = [k for k in range(lo, hi) if FB.fits(k, kind)]
            if kind == 'v' and lo >= H + 12 and hi <= G1_ - 10: c = [k for k in c if FB.vec[k]] or c
            k = c[0] if c else min((k for k in range(lo, hi) if not FB.has(k, 'g')), key=lambda k: (FB.vcost(k), k))
            FB.put(k, kind, txt); return k
        m0s = lambda sm: (lambda j: {0: [f"s_mov_b32 m0, s{sm}"], 4: ["s_bitset1_b32 m0, 12"]}.get(j, []))
        hl = lambda r, sp, s: f"buffer_load_dwordx4 {r}, v{V_D0 if s < 4 else V_D1}, s[12:15], {sp} offen offset:{(s%4)*1024} sc1"
        xl = [f"buffer_load_dwordx4 a[192:195], v{V_L16}, s[12:15], s57 offen sc1"] + [hl(HX(s), "s55", s) for s in range(8)]
        lastg[0] = H - 1
        for j in range(8): t = GF(H + 1 + 6 * j, dma(S_KP, j), "k", m0s(S_KM)(j))
        t = FB.place(bv + 1, bv + 3, 'v', f"v_accvgpr_read_b32 v{V_T1}, a246"); t = FB.place(t + 2, bv + 6, 'v', f"v_cmp_ne_u32 s[20:21], 0, v{V_T1}"); tlook = t
        for j in range(8): t = GF(bv + 2 + 4 * j, dma(S_VP, j), "v0", m0s(S_VM)(j))
        tv0 = t
        pick = ["s_cselect_b32 s51, 1, 0", "s_cselect_b32 s55, s4, 2.0", "s_cselect_b32 s56, s5, 2.0", "s_cselect_b32 s57, s6, 2.0"]
        q = tlook + 1
        for x in ["s_cmp_eq_u64 s[20:21], 0"] + pick: q = SF(q, x)
        assert q < tv0
        for k, x in enumerate(xl): t = GF(t + 4, x, "x")
        q = SF(tv0 + 1, f"s_add_u32 s{S_VP}, s{S_VP}, {m.TS}"); q = SF(q, f"s_xor_b32 s{S_VM}, s{S_VM}, 0x8000"); q = SF(q, f"s_xor_b32 s{S_KM}, s{S_KM}, 0x8000")
        redir = [f"s_add_u32 s52, {sW8K}, {m.OPR[0]}", f"s_mul_i32 s58, s3, {56*896}", "s_sub_u32 s58, 128, s58", "s_cmp_eq_u32 s7, 0", f"s_cselect_b32 s{S_KP}, s78, {sHB}", f"s_cmov_b32 s{S_KM}, s52",
                 f"s_cmov_b64 s[8:9], s[{pWo}:{pWo+1}]", f"s_cmov_b32 s10, {4096*896}", "s_cmov_b32 s76, 6144", "s_cmov_b32 s77, 10240", f"s_mov_b32 s{S_LEFT}, 1"]
        for x in redir: q = SF(q, x)
        q = SF(q, "s_cmp_eq_u32 s51, 1"); qsel = q
        assert t < G1_ and q < G1_ - 3, (t, q)
        lastg[0] = G1_ - 1
        for j in range(8):
            t = GF(G1_ + 1 + int(3.7 * j), f"buffer_load_dwordx4 v{V_T2}, s[8:11], s{39 if j else S_KP} offen offset:{(j%4)*1024} sc1 lds", "kw",
                   ([f"s_add_u32 s39, s{39 if j > 1 else S_KP}, s{77 if j == 4 else 76}"] if j else []) + m0s(S_KM)(j))
        gv = [(dma(S_VP, j), "v1", m0s(S_VM)(j)) for j in range(8)]; gy = [(hl(HY(s), "s56", s), "y", []) for s in range(8)]
        assert t > G1_ + 26
        for k, x in enumerate(gy + gv if o['yfirst'] else gv + gy): t = GF(max(t + 2, G1_ + 1 + int(3.7 * (8 + k))), *x)
        assert t < G2_ - 1
        SF(G1_ + 70, f"s_mov_b32 s{S_LEFT}, 0")
        t = bv3 + 2
        for j in range(8): m0, tx = m.wo(1, j); t = GF(t, tx, "w", [m0]) + 4
        FB.place(t - 3, N, 'v', m.woadv)
        kx, vx = f"v_xor_b32 v{V_KA}, 0x8000, v{V_KA}", f"v_xor_b32 v{V_VA}, 0x8000, v{V_VA}"
        VF(pos[31], bk, kx); VF(pos[63], bv2, vx); VF(pos[119], bk2, kx); VF(pos[127], G2_, vx)
        VF(H + 60, G1_, f"v_accvgpr_read_b32 v{V_T2}, a244")
        cvl = cvts(); cvq = lambda kb, qs: cvl[(kb * 2 + qs) * 2:(kb * 2 + qs) * 2 + 2]
        ladd = lambda q: f"v_add_f32 {LS[q]}, {LS[q]}, {TS[q]}"
        cpos = {}; t = H
        for kb in range(4):
            for x in mread(kb): VF(max(H, cuse[0, kb, 0] - 22), cuse[0, kb, 0] - 1, x)
            for qs in (1, 0):
                for x in cvq(kb, qs): t = cpos[kb, qs] = VF(t, min(H + 61, max(t + 8, sdone[0, kb, qs] + 12)), x)
            if kb == 0: tl = max(VF(t, t + 8, ladd(q)) for q in range(2))
        assert t < H + 62
        te = H; epos = {}
        for kb in range(4):
            for qs in (1, 0):
                for i in range(4): te = epos[kb, qs, i] = VF(max(te + 1, sdone[0, kb, qs] + 5, cpos[kb, qs] + 1), max(te + 1, sdone[0, kb, qs] + 5, cpos[kb, qs] + 1) + o['dse'], ex(kb, qs, i), 'e')
        ta = tl
        for kb in range(4):
            for qs in (1, 0):
                for i in range(4):
                    if kb or i: lo = max(ta, epos[kb, qs, i]) + 1; ta = VF(lo, lo + (4 if lo < H + 100 else 2), ad(kb, qs, i))
        ta = VF(ta + 1, ta + 3, f"v_add_f32 v{V_T0}, {TS[0]}, {TS[1]}"); ta = VF(ta + 1, ta + 3, f"v_cmp_nge_f32 vcc, s{S_BIG}, v{V_T0}")
        q = SF(max(ta + 1, qsel + 1), "s_cselect_b64 vcc, vcc, -1"); assert q < G1_, q
        assert not any(x.startswith(("s_add", "s_xor", "s_sub", "s_cmp")) for k in range(qsel + 1, q) for x in FB.pre[k])
        t = VF(H + 60, H + 70, f"v_sub_f32 v{V_T1}, {NM[1]}, {NM[0]}")
        for kb in range(4):
            for i in range(4): VF(max(t + 1, H + 64), G1_ - 1, f"v_add_f32 {C(kb,1)[i]}, {C(kb,0)[i]}, v{V_T1}")
        t = G1_
        for qs in range(2):
            for kb in range(4):
                for x in cvq(kb, qs): cpos[kb, qs] = VF(G1_, G1_ + 6 + 8 * qs, x)
        tl = max(VF(G1_, G1_ + 18, ladd(q)) for q in range(2)); te = G1_ + 13; ta = tl
        for kb in range(4):
            for i in range(4):
                lo = max(te + 1, sdone[1, kb, 1] + 5); te = VF(lo, lo + (3 if kb < 3 else 2), ex(kb, 1, i), 'e')
                if kb or i: lo = max(ta, te) + 1; ta = VF(lo, lo + 2, ad(kb, 1, i))
        ta = VF(ta + 1, G2_, f"v_cmp_nge_f32 vcc, s{S_BIG}, {TS[1]}")
        RL = 64; ST = Reg('v', 32, 4); tv = G2_
        for x in [y for kb in range(4) for y in cvq(kb, 1)] + [ladd(1)]: tv = FB.place(tv, G2_ + 14, 'v', x)
        tl = tv
        for grp in lsum_ops(40) + [[f"v_add_f32 {LS[q]}, {LS[q]}, {ST[q]}" for q in range(2)]]:
            tl += 2
            for x in grp: tl = FB.place(tl, N, 'v', x)
        t = G2_
        for x in m.op_addr(): t = FB.place(t, N, 'v', x)
        pre1 = m.op_pre(1)
        restf = [f"v_rcp_f32 v{RL+q}, {LS[q]}" for q in range(2)]
        for qs in range(2):
            for s in range(8):
                tv = max(tv, odone[2 * s + 1, qs] + 5)
                for x in cv(qs, s):
                    try:
                        if len(restf) > 2: raise RuntimeError
                        tv = FB.place(tv, N, 'v', x)
                    except RuntimeError: restf.append(x)
        FB.resolve_vm(["old"])
        print("ds pattern:", FB.pattern(), len(FB.report()), sum(u - 2 for _, u in FB.report()), len(restf))
        a(f"{name}_ret2:", f"s_cmp_lg_u32 s{S_LEFT}, 2", f"s_cbranch_scc1 {name}_disp")
        a(*FB.lines(H, G1_)); a(f"s_cbranch_vccnz {name}_g0x", f"{name}_p1:")
        a(*FB.lines(G1_, G2_)); a(f"s_cbranch_vccnz {name}_slow", f"{name}_p2:", "s_cmp_lg_u32 s7, 0", f"s_cbranch_scc1 {name}_switch"); m.mark("tail_go")
        m.apoll(sFU, 32, 247, V_T0)
        a(*[f"v_accvgpr_read_b32 {ST[i]}, a{192+i}" for i in range(4)])
        a(f"v_add_u32 v2, s58, v{V_T2}", f"v_cmp_neq_f32 vcc, {ST[2]}, {NM[0]}", f"v_cmp_neq_f32 s[20:21], {ST[3]}, {NM[1]}", "s_or_b64 vcc, vcc, s[20:21]",
          "s_cmp_eq_u32 s51, 1", "s_cselect_b64 vcc, vcc, -1", f"s_cmp_eq_u32 {sNB}, 0", "s_cselect_b64 vcc, 0, vcc", f"s_cbranch_vccnz {name}_fagen")
        a(*FB.lines(G2_, N)); m.mark("tail_end"); a(*pre1); a("s_nop 1"); a(*restf)
        a(f"s_cmp_eq_u32 {sROLE}, 0", f"s_cbranch_scc1 {name}_bpark")
        m.end_a()
        a(f"{name}_bpark:", "s_waitcnt vmcnt(0) lgkmcnt(0)", "s_mov_b32 s59, 2.0", f"s_cmp_eq_u32 {sSSM}, 0", f"s_cbranch_scc1 {name}_t1park")
        m.acheck(sFU, 32, 247, V_T0, V_T1)
        a(f"s_branch {name}_t1park")
        a(*rare)
        a(f"{name}_ret:"); m.jitter()
        a(f"s_cmp_gt_u32 s{S_LEFT}, s{S_THR}", f"s_cbranch_scc1 {name}_loop", f"s_branch {name}_ret2")
        a(f"{name}_disp:"); m.jitter()
        a(f"s_cmp_lt_u32 s{S_LEFT}, 2", f"s_cbranch_scc1 {name}_d1")
        a("s_waitcnt vmcnt(0)")
        m.acheck(sFQ, 12, 246, V_T0, V_T1)
        a(f"s_cmp_eq_u32 {sNB}, 0", f"s_cselect_b32 {sFQ}, {sFQ}, {sFPO}", f"v_mov_b32 v{V_T3}, 0", f"s_mov_b32 s{S_THR}, 2", f"s_branch {name}_loop")
        a(f"{name}_d1:", f"s_cmp_eq_u32 {sMODE}, 1", f"s_cbranch_scc1 {name}_seg2", f"s_cmp_eq_u32 s{S_LEFT}, 0", f"s_cbranch_scc1 {name}_p2")
        a("s_cmp_eq_u32 s53, 0", f"s_cbranch_scc1 {name}_g0y", "s_mov_b32 s53, 0"); a(*redir)
        a("s_waitcnt vmcnt(0)", "s_barrier"); a(*[fl(f) for f in range(72, 78)])
        a(f"s_branch {name}_g0y", f"{name}_g0x:", f"v_cmp_nge_f32 vcc, s{S_BIG}, v{V_T0}", f"s_cbranch_vccnz {name}_slow", f"{name}_g0y:")
        mask(1, False)
        a("s_waitcnt lgkmcnt(0)", "s_cmp_eq_u32 s51, 1", f"s_cbranch_scc1 {name}_p1", "s_cmp_eq_u32 s7, 0", f"s_cbranch_scc1 {name}_g0z")
        sl = o['sleep']; o['sleep'] = 1; m.poll(sFQ, 1, V_T0, V_T1); o['sleep'] = sl
        a(f"s_branch {name}_g0w", f"{name}_g0z:", f"buffer_load_dword v{V_T1}, v{V_T3}, s[12:15], {sFQ} offen sc1", "s_waitcnt vmcnt(0)", f"v_cmp_ne_u32 vcc, 0, v{V_T1}", f"{name}_g0w:", "s_cmp_eq_u64 vcc, 0")
        a(*pick); a(*xl); a(f"s_branch {name}_p1")
        a(f"{name}_seg2:", f"s_cmp_eq_u32 s{S_LEFT}, 0", f"s_cbranch_scc1 {name}_tail", f"{name}_last:")
        m.apoll(sFU, 32, 247, V_T0)
        a(*wosw)
        a(f"s_mov_b32 s{S_KP}, s78", f"s_add_u32 s{S_KM}, {sW8K}, {m.OPR[0]}", "s_movk_i32 s76, 6144", "s_movk_i32 s77, 10240", f"s_branch {name}_loop")
        a(f"{name}_switch:")
        for i in range(32): a(f"v_accvgpr_mov_b32 a{32+i}, a{128+i}")
        for i in range(96, 128, 2): a(f"v_mov_b64 v[{i}:{i+1}], 0")
        for kb in range(4): a(*[f"v_mov_b64 {E(kb,0)[i:i+2]}, 0" for i in (0, 2)])
        a(f"v_mov_b32 {TS[0]}, 0", f"s_add_u32 s{S_KP}, {sHB}, {m.TS}", f"s_xor_b32 s{S_KM}, s{S_KM}, 0x8000", f"s_xor_b32 s{S_VM}, s{S_VM}, 0x8000",
          f"s_add_u32 s{S_VP}, {sHB}, {m.VB}", f"s_mov_b32 s{S_LEFT}, {sNB}", f"s_mov_b32 s{S_THR}, 1", f"s_mov_b32 s{S_BIG}, -1.0", f"s_waitcnt vmcnt({8 if o['yfirst'] else 0}) lgkmcnt(0)",
          f"s_cmp_eq_u32 {sNB}, 1", f"s_cbranch_scc1 {name}_last", f"s_branch {name}_loop")
        a(f"{name}_switched:")
        m.mark("seg1_end")
        for grp in lsum_ops(18): a(*grp); a("s_nop 0")
        for qs in range(2): a(f"v_rcp_f32 v{16+qs}, {LS[qs]}")
        a(f"s_mov_b32 s{S_BIG}, {BIG}", f"s_mov_b32 {sMODE}, 1")
        for qs in range(2):
            a(f"v_accvgpr_write_b32 a{200+qs}, v{16+qs}")
            for s in range(8): a(*cv(qs, s)); a(*[f"v_accvgpr_write_b32 a{128+(qs*8+s)*4+i}, {O(2*s,qs)[i]}" for i in range(4)])
        for i in range(128, 256, 2): a(f"v_mov_b64 v[{i}:{i+1}], 0")
        for r in LS + NM: a(f"v_mov_b32 {r}, 0")
        m.mark("seg1_fin")
        a(f"s_branch {name}_first")
        a(f"{name}_fagen:", f"v_mov_b32 {TS[0]}, 0", f"buffer_load_dword a246, v{V_T3}, s[12:15], {sFQ} offen sc1")
        for kb in range(4): a(*[f"v_mov_b32 {E(kb,0)[i]}, 0" for i in range(4)])
        a(f"{name}_tail:"); m.mark("tail_go")
        a(*poadr)
        a(f"s_mul_i32 s58, s3, {56*896}", "s_sub_u32 s58, 128, s58", f"v_add_u32 v2, s58, v{V_T2}")
        a(*cvts())
        for q in range(2): a(f"v_add_f32 {LS[q]}, {LS[q]}, {TS[q]}")
        a("s_waitcnt vmcnt(0) lgkmcnt(0)", "s_barrier")
        for n in range(32, 40): a(fload(n))
        RL = 64; ST = Reg('v', 68, 4)
        def tail_body():
            BT = Body(64, cyclic=False); set_pv(BT, 0)
            for n in range(40, 64): BT.put(2 * (n - 32) - 16, 'd', fload(n), F(n))
            BT.auto_lgkm(look=2, maxcnt=15)
            return BT
        def put_lsum(BT):
            t = 3
            for grp in lsum_ops(72):
                for x in grp: BT.put(t, 'v', x)
                t += 4
            return t
        poa = lambda qs, s: f"v{V_D0 if s < 4 else V_D1}, s[12:15], s{55+qs} offen offset:{(s%4)*1024} sc1"
        a(f"s_cmp_lg_u32 {sNB}, 0", f"s_cselect_b32 s58, {sMODE}, 0", "s_cmp_eq_u32 s58, 2", f"s_cbranch_scc1 {name}_tail2")
        a(f"s_cmp_eq_u32 {sSSM}, 0", f"s_cbranch_scc1 {name}_nou")
        m.acheck(sFU, 32, 247, V_T0, V_T1)
        a(f"{name}_nou:", f"s_cmp_eq_u32 {sMODE}, 1", "s_cselect_b32 s55, s55, 2.0", "s_cselect_b32 s57, s57, 2.0", f"s_cselect_b32 s59, {sFPO}, 2.0", "s_add_u32 s56, s55, 0x2000", "s_waitcnt lgkmcnt(0)")
        BT = tail_body()
        for j in range(8):
            gp = (1, 5, 9, 11, 13, 17, 19, 21)[j] if o['t1fast'] else 4 * j + 1
            m0, tx = m.wo(1, j); BT.put(gp, 'g', tx); BT.put(gp - 1, 's', m0)
        BT.put(22 if o['t1fast'] else 30, 'v', m.woadv)
        if o['t1fast']:
            for grp, gp in zip(lsum_ops(72), ((0, 2), (3, 3), (6, 7), (8, 10), (14, 15), (18, 20))):
                for x, k in zip(grp, gp): BT.put(k, 'v', x)
        else: put_lsum(BT)
        t = 4
        for x in m.op_addr(): t = BT.place(t, 48, 'v', x)
        pre = m.op_pre(0)
        rest = []; tv = 0; tg = 25 if o['t1fast'] else 33
        for s in range(8):
            for qs in range(2):
                tv = max(tv, 8 * s + 15); sto = f"buffer_store_dwordx4 {O(2*s,qs)}, {poa(qs,s)}"
                slots = [k for k in range(min(tv, 64), 64) if k % 4 != 1 for _ in range(max(0, 2 - BT.vcost(k)))]
                if len(slots) >= 4 and not any(x.startswith("v_") for x in rest):
                    for x, k in zip(cv(qs, s), slots): BT.put(k, 'v', x); tv = k
                    while tg <= tv: tg += 4
                    if tg < 64: BT.put(tg, 'g', sto); tg += 4
                    else: rest.append(sto)
                else: rest += cv(qs, s) + [sto]
        print("tail1pv pattern:", BT.pattern(), len(rest))
        a(*BT.lines())
        m.mark("tail_end")
        a(*pre)
        a(f"v_mov_b32 {ST[0]}, {LS[0]}", f"v_mov_b32 {ST[1]}, {LS[1]}", f"v_mov_b32 {ST[2]}, {NM[0]}", f"v_mov_b32 {ST[3]}, {NM[1]}")
        for qs in range(2): a(f"v_accvgpr_read_b32 v{RL+qs}, a{200+qs}")
        a(*[x for x in rest if x.startswith("v_")])
        m.po_rest = [f"buffer_store_dwordx4 {ST}, v{V_L16}, s[12:15], s57 offen sc1"] + [x for x in rest if x.startswith("buffer_")]
        m.end_b()
        a(f"{name}_t1park:")
        for s in range(8):
            for qs in range(2): a(*[f"v_accvgpr_write_b32 a{128+(qs*8+s)*4+i}, {O(2*s,qs)[i]}" for i in range(4)])
        a(*m.op_addr()); a(*m.op_pre(0)); a(f"s_branch {name}_op0in")
        PB = lambda qs, s: Reg('v', (96 if qs else 32) + s * 4, 4)
        pol = [f"buffer_load_dwordx4 {ST}, v{V_L16}, s[12:15], s57 offen sc1"] + [f"buffer_load_dwordx4 {PB(qs,s)}, {poa(qs,s)}" for s in range(8) for qs in range(2)]
        a(f"{name}_tail2:", f"v_accvgpr_read_b32 v{V_T0}, a246", "s_mov_b32 s52, s55", "s_mov_b32 s53, s57", f"v_readfirstlane_b32 s58, v{V_T0}", "s_mov_b32 s59, 2.0", "s_nop 1",
          "s_cmp_eq_u32 s58, 0", "s_cselect_b32 s55, s55, 2.0", "s_cselect_b32 s57, s57, 2.0", "s_add_u32 s56, s55, 0x2000", pol[0], "s_waitcnt lgkmcnt(0)")
        BT = tail_body()
        for k in range(16): BT.put(max(4 * k - 3, 0) if k else 63, 'g', pol[k if k else 16])
        t = put_lsum(BT)
        print("tail2pv pattern:", BT.pattern())
        a(*BT.lines())
        m.mark("tail_end")
        a("s_cmp_eq_u32 s58, 0", f"s_cbranch_scc1 {name}_merge2")
        m.poll(sFPO, 1, V_T0, V_T1)
        m.mark("po_flag")
        a("s_mov_b32 s55, s52", "s_mov_b32 s57, s53", "s_add_u32 s56, s55, 0x2000"); a(*pol)
        a(f"{name}_merge2:", "s_waitcnt vmcnt(14)", f"v_cmp_neq_f32 vcc, {ST[2]}, {NM[0]}", f"v_cmp_neq_f32 s[20:21], {ST[3]}, {NM[1]}", "s_or_b64 vcc, vcc, s[20:21]", f"s_cbranch_vccnz {name}_mslow")
        BM = Body(32, cyclic=False); SEL = [Reg('a', 250, 4), Reg('a', 248, 4)]
        for s in range(8):
            for qs in range(2):
                for e in range(2): BM.set_mfma(4 * s + 2 * qs + e, O(2 * s + e, qs), SEL[e], PB(qs, s), O(2 * s + e, qs))
        for j in range(8):
            m0, tx = m.wo(1, j); BM.put(4 * j + 1, 'g', tx); BM.put(4 * j, 's', m0)
            if j < 7: BM.put(4 * j + 3, 's', f"s_waitcnt vmcnt({14 - 2*(j+1) + j + 1})")
        for qs in range(2): BM.put(0, 'v', f"v_add_f32 {LS[qs]}, {LS[qs]}, {ST[qs]}"); BM.put(2 + qs, 'e', f"v_rcp_f32 v{RL+qs}, {LS[qs]}")
        rest = []; tv = 0
        for s in range(8):
            for qs in range(2):
                tv = max(tv, 4 * s + 2 * qs + 6)
                for x in cv(qs, s):
                    try:
                        if rest: raise RuntimeError
                        tv = BM.place(tv, 32, 'v', x)
                    except RuntimeError: rest.append(x)
        print("merge pattern:", BM.pattern(), len(rest))
        a(*BM.lines()); a(m.woadv); a(*rest)
        a("s_waitcnt vmcnt(0)", f"s_branch {name}_attdone")
        a(f"{name}_mslow:")
        for j in range(8): a(m.wo(1, j)[0], "s_nop 0", m.wo(1, j)[1])
        a(m.woadv, "s_mov_b32 s58, 0xffff0000", "s_waitcnt vmcnt(0)")
        for qs in range(2):
            a(f"v_min_f32 v20, {ST[2+qs]}, {NM[qs]}", f"v_sub_f32 v21, v20, {NM[qs]}", f"v_sub_f32 v22, v20, {ST[2+qs]}", f"v_exp_f32 v{16+qs}, v21", f"v_exp_f32 v{18+qs}, v22", "s_nop 0",
              f"v_mul_f32 {LS[qs]}, {LS[qs]}, v{16+qs}", f"v_fmac_f32 {LS[qs]}, {ST[qs]}, v{18+qs}", f"v_rcp_f32 v{RL+qs}, {LS[qs]}")
        for qs in range(2):
            sel3 = "op_sel:[0,0,0] op_sel_hi:[1,0,1]" if qs == 0 else "op_sel:[0,1,0] op_sel_hi:[1,1,1]"
            for s in range(8):
                r = Reg('v', O(2 * s, qs).lo, 8)
                for k in range(4):
                    pb = PB(qs, s)[k]; t = Reg('v', 24 + 2 * k, 2)
                    a(f"v_lshlrev_b32 {t[0]}, 16, {pb}", f"v_and_b32 {t[1]}, s58, {pb}", f"v_pk_mul_f32 {t}, {t}, v[18:19] {sel(qs)}",
                      f"v_pk_fma_f32 {r[2*k:2*k+2]}, {r[2*k:2*k+2]}, v[16:17], {t} {sel3}")
                a(*cv(qs, s))
        a(f"{name}_attdone:"); a(*m.op_addr()); a(*m.op_pre(1)); a(f"s_branch {name}_op1in")

    OPR = [0x20000, 0, 0x8000, 0x10000, 0x18000, 0x20000, 0]
    def op_setup(m, v, t):
        a = m.a
        a(f"v_lshrrev_b32 v{t}, 3, v0", "s_lshl_b32 s78, s3, 6", f"v_add_u32 v{v}, s78, v{t}", f"v_mul_u32_u24 v{v}, 896, v{v}", f"v_and_b32 v{t}, 6, v{t}", f"v_xor_b32 v{t}, v{t}, v0", f"v_and_b32 v{t}, 7, v{t}",
          f"v_lshl_add_u32 v{v}, v{t}, 4, v{v}", f"s_mul_i32 s78, {sH}, {256*896}")
        for j in range(1, 8): a(f"s_add_u32 s{78+j}, s78, {32*896*j}")
        srd(a, 8, pWo, 4096 * 896)
    def wo(m, c, j, v=2): return (f"s_add_u32 m0, {sW1K}, {m.OPR[c] + j*4096}", f"buffer_load_dwordx4 v{v}, s[8:11], s{78+j} offen lds")
    woadv = "v_add_u32 v2, 128, v2"
    def red_addr(m):
        return [f"s_lshl_b32 s44, {sX}, 7", f"s_add_u32 s44, s44, {F_CTX}", f"s_lshl_b32 s40, {sX}, 1", f"s_and_b32 s41, {sJJ}, 1", "s_add_u32 s40, s40, s41", f"s_lshr_b32 s41, {sJJ}, 1",
                "s_lshl_b32 s42, s40, 2", "s_add_u32 s42, s42, s3", f"s_mul_i32 s37, s42, {14*m.PS}", f"s_mul_i32 s43, s41, {m.PS}", "s_add_u32 s37, s37, s43", f"s_add_u32 s37, s37, {WS_PP}"]
    OA = 44
    def op_ring(m, role): return lambda f: Reg('a', (160 if role else 0) + 4 * (f % 16), 4)
    def op_addr(m): return [f"v_accvgpr_read_b32 v{m.OA}, a254"]
    def op_addr0(m, v, t):
        return [f"v_lshrrev_b32 v{t}, 2, v0", f"v_lshlrev_b32 v{v}, 7, v{t}", f"v_bfe_u32 v{t}, v{t}, 1, 2", f"v_lshl_add_u32 v{v}, v{t}, 5, v{v}", f"v_and_b32 v{t}, 3, v0", f"v_lshl_add_u32 v{v}, v{t}, 3, v{v}",
                f"v_add_u32 v{v}, {m.OPR[0]}, v{v}"]
    def op_pre(m, role): return [f"ds_read_b64_tr_b16 {m.op_ring(role)(k//2)[2*(k%2):2*(k%2)+2]}, v{m.OA} offset:{(k//2)*4096 + (k%2)*2048}" for k in range(m.o['LO'])]
    def oproj(m, role):
        a, name, o = m.a, m.n, m.o
        LO = o['LO']; VFL = 9
        a(f"{name}_op{role}in:")
        ring = m.op_ring(role); OA = m.OA
        CF = (lambda qs, s: O(2 * s, qs)) if role else (lambda qs, s: Reg('a', 128 + (qs * 8 + s) * 4, 4))
        AC = lambda mb, qs: Reg('v', 72 + ((mb // 2) % 3) * 16 + qs * 8 + (mb % 2) * 4, 4)
        H = 16; N = H + 448; B = Body(N, cyclic=False)
        for k in range(H): B.m[k] = ("s_nop 0", set(), set())
        n = H; done = {}
        for mb in range(28):
            for qs in range(2):
                for s in range(8): B.set_mfma(n, AC(mb, qs), ring(8 * mb + s), CF(qs, s), 0 if s == 0 else AC(mb, qs)); n += 1
                done[mb, qs] = n - 1
            c = mb // 4
            for s in range(8):
                for e in range(2):
                    B.put(H + 2 * (8 * mb + s) - LO + e, 'd', f"ds_read_b64_tr_b16 {ring(8*mb+s)[2*e:2*e+2]}, v{OA + mb%4} offset:{(m.OPR[c] & 0x8000) + s*4096 + e*2048}", ring(8 * mb + s)[2*e:2*e+2])
        cs = lambda c: H + 64 * c - LO
        def bar(pos, tags=None, lg=None):
            if tags: B.vmwait(pos - 1, tags)
            if lg is not None: B.put(pos - 1, 's', f"s_waitcnt lgkmcnt({lg})")
            B.put(pos, 's', "s_barrier")
        pub = H + o['oppub']
        if not role: assert pub < cs(1) - 1; bar(pub, ["po"]); bar(cs(5) + 10, lg=9)
        else: bar(cs(1) - 1, ["old"])
        SM = o['opsm']
        if SM:
            for c in range(2, 7): bar(cs(c) - 1, [f"w{c}"] + (["p0"] if role and c == o['opc0'] and not o['shb'] else []) + (["p1"] if role and c == o['sh2c'] else []) + (["st0"] if c == 5 else []))
        else: bar(cs(2) - 1, ["w2"]); bar(cs(2) + 10, lg=9); bar(cs(3) - 1, ["w3", "w4"] + (["p0"] if role else [])); bar(cs(5) - 1, ["w5", "w6", "st0"])
        B.auto_lgkm(look=3, maxcnt=15)
        def gfree(t): return not B.has(t, 'g') and not any(k in 've' for k, *_ in B.vec[t]) and all(x.startswith("s_waitcnt") for x in B.pre[t]) and len(B.pre[t]) <= 1
        def G1(t, txt, tag, sc=None):
            while not (gfree(t) and not B.has(t - 1, 'g') and not (t + 1 < N and B.has(t + 1, 'g')) and (sc is None or not B.pre[t - 1] or (not B.pre[t - 2] and not B.has(t - 2, 'g')))): t += 1
            B.putg(t, txt, tag)
            if sc: B.put(t - 1 if not B.pre[t - 1] else t - 2, 's', sc)
            return t
        def S1(t, txt):
            while B.pre[t] or B.has(t, 'g'): t += 1
            B.put(t, 's', txt); return t
        for c in range(1, 7):
            dx = (m.OPR[c] ^ m.OPR[c - 1]) & ~0x8000
            if dx:
                for mb in range(4): B.place(cs(c) + 16 * mb - 12, cs(c) + 16 * mb, 'v', f"v_xor_b32 v{OA+mb}, {dx:#x}, v{OA+mb}", back=True)
        G1(cs(5), f"buffer_store_dword v{VFL}, v{VFL}, s[12:15], {sFCTX} offen offset:64 sc1", "fl")
        t = H
        if not role:
            for x in m.po_rest: t = G1(t, x, "po") + 3
            assert t < pub
            tt = G1(pub + 1, f"buffer_store_dword v{VFL}, v{VFL}, s[12:15], s59 offen sc1", "fl")
            if o['popf']:
                B.place(H, pub, 'v', "v_lshlrev_b32 v14, 7, v0")
                for qs in range(2): tt = G1(tt + 2, f"buffer_load_dword v15, v14, s[12:15], s{55+qs} offen sc1", "pf")
        else:
            if not o['shb2'] and not o['sh2c']: G1(N - o['oplead'], "buffer_load_dword v12, v10, s[12:15], s44 offen sc1", "p1")
            for h, cb in (((1, o['sh2c']),) if o['sh2c'] else () if o['shb'] else ((0, o['opc0'] if SM else 3),)):
                G1(cs(cb) - o['oplead'], f"buffer_load_dword v11, v10, s[12:15], s44 offen offset:{64*(1-h)} sc1", f"p{h}")
                tt = B.place(cs(cb), N, 'v', "v_cmp_ne_u32 vcc, 0, v11") + 1
                while B.pre[tt] or B.has(tt, 'g') or B.has(tt, 'v'): tt += 1
                for x in ("s_cmp_eq_u64 vcc, s[52:53]", f"s_cselect_b32 s{49+h}, 1, 0", f"s_cselect_b32 s51, s{37+h}, 2.0"): B.put(tt, 's', x)
                for k in range(16):
                    tt = G1(tt + (o['opr'] if k else 1), f"buffer_load_dwordx4 a[{64+64*h+4*k}:{67+64*h+4*k}], v1, s[12:15], s51 offen offset:{(k%4)*1024} sc1", "sh", "s_add_u32 s51, s51, 4096" if (k and k % 4 == 0) else None)
        t = max(t, H + 1)
        for c in range(2, 7):
            if c >= 5: t = max(t, cs(c - 3) + 1 if SM else cs(2) + 12)
            if SM: t = max(t, cs(c) - SM)
            if c == 3: t = max(t, cs(1) + 1)
            for j in range(8): m0, tx = m.wo(c, j); t = G1(t, tx, f"w{c}", m0) + o['opw']
            t = max(t, B.place(t - o['opw'] + 1, N, 'v', m.woadv) + 1)
        if not role:
            t = max(t, cs(5) + 12)
            for m0, tx in m.s2_dmas(): t = G1(t, tx, "u", m0) + o['opw']
        for mb, lo_ in ((1, H), (2, H), (3, H)): B.place(lo_, H + 2 + 16 * (mb - 1), 'v', f"v_xor_b32 v{OA+mb}, {32*mb}, v{OA}")
        B.place(H, H + 30, 'v', f"v_accvgpr_read_b32 v{VFL}, a245")
        tq = H
        for x in ["s_lshl_b32 s48, s63, 3", "s_add_u32 s48, s48, s3", f"s_mul_i32 s48, s48, {14*m.PS}", f"s_lshl_b32 s58, {sH}, 10", "s_add_u32 s48, s48, s58", f"s_add_u32 s48, s48, {WS_PP}"]: tq = S1(tq, x)
        assert tq < H + 26
        late_setup = Asm(); keep = m.a; m.a = late_setup
        if not role: m.s2_setup()
        m.a = keep
        t = cs(4) if not role else tq
        k = 0; L_ = late_setup.L
        while k < len(L_):
            n_ = 1
            if L_[k].startswith("s_cmp"):
                while L_[k + n_].startswith(("s_cmov", "s_cselect")): n_ += 1
            if L_[k].startswith("s_"):
                t = S1(t + 1, L_[k])
                for y in L_[k + 1:k + n_]: B.put(t, 's', y)
            else:
                c_ = [q for q in range(t + 2, t + 8) if B.fits(q, 'v')] or [q for q in range(t, t + 6) if not B.has(q, 'g')]
                t = c_[0]; B.put(t, 'v', L_[k])
            k += n_
        assert t < (cs(3) - o['oplead'] if role else cs(5)), t
        rest = []
        for mp in range(14):
            for qs in range(2):
                r = Reg('v', AC(2 * mp, qs).lo, 8)
                cv = [f"v_mul_f32 {r[i]}, {r[i]}, v{64+qs}" for i in range(4, 8)] + [f"v_cvt_pk_bf16_f32 {r[i]}, {r[2*i]}, {r[2*i+1]}" for i in range(4)]
                t = done[2 * mp, qs] + 5
                for i in range(4): t = B.place(t, N, 'v', f"v_mul_f32 {r[i]}, {r[i]}, v{64+qs}")
                sto = (f"buffer_store_dwordx4 {r[0:4]}, v1, s[12:15], s58 offen {o['opfl']}", f"st{mp//7}", f"s_add_u32 s58, s48, {(qs*4*14 + mp)*m.PS + (0x40000000 if (o.get('xst', 0) >> role & 1 and mp % 2) else o['opoob'])}")
                t = max(t, done[2 * mp + 1, qs] + 5)
                if t + 12 < N:
                    for x in cv: t = B.place(t, N, 'v', x)
                    t = G1(t + 1, *sto); assert mp >= 11 or t < done[2 * mp + 6, qs] - 8, (mp, t)
                else: rest += cv + [sto[2], sto[0]]
        if not role:
            for k, tx in enumerate(m.s2_pads()): B.put(N - LO + 1 + k, 'd', tx)
        t = H + 30
        if o['sh1'] and not role:
            for x in m.red_addr() + [f"s_mul_i32 s36, s42, {16*1792}", "s_lshl_b32 s43, s41, 6", "s_add_u32 s36, s36, s43"]: t = S1(t, x)
        assert t < cs(3) - o['oplead'] - 2
        ops = B.resolve_vm(["old"])
        if role and not o['shb2']: m.after_p1 = len(ops) - 1 - ops.index("p1") + sum(1 for x in rest if x.startswith("buffer_"))
        if not role: m.after_u = len(ops) - 1 - max(i for i, x in enumerate(ops) if x == "u") + sum(1 for x in rest if x.startswith("buffer_"))
        print(f"op{role} pattern:", B.pattern(), len(B.report()), len(rest))
        assert [x[1] for k in range(H) for x in B.vec[k]] == m.op_pre(role)
        for k in range(H): a(*B.pre[k])
        m.mark("op_go")
        if o.get('idlerole', (9, 0))[0] == role: a(f"s_sleep {o['idlerole'][1]}")
        a(*B.lines(H, N)); a("s_nop 4"); a(*rest)
        m.mark("op_end")

    S2W, S2K = 8736, 4608
    def s2_setup(m):
        a = m.a
        a(f"s_lshl_b32 s34, {sIDX}, 2", "s_add_u32 s34, s34, s3", f"s_mul_i32 s35, s34, {m.CS}", "s_lshl_b32 s34, s34, 12", "s_cmp_eq_u32 s62, 0", "s_cmov_b32 s34, 2.0", "s_cmov_b32 s35, 2.0", f"s_add_u32 s35, s35, {WS_U}",
          f"s_mul_i32 s33, s3, {m.S2W}", "s_add_u32 s33, s33, 0x10000")
        srd(a, 4, pAssm, 448 * 4096)
        a("v_lshrrev_b32 v10, 1, v0", "v_lshlrev_b32 v10, 7, v10", "v_and_b32 v11, 1, v0", "v_lshl_add_u32 v10, v11, 4, v10",
          "v_and_b32 v11, 31, v0", "v_lshl_add_u32 v11, v11, 2, s33", "v_and_b32 v12, 7, v0", "v_lshl_add_u32 v12, v12, 2, s33", "v_mov_b32 v13, 0")
    def s2_dmas(m):
        return [(f"s_add_u32 m0, s33, {m.S2K + 32}" if k == 0 else None, f"buffer_load_dwordx4 v1, s[4:7], s34 offen offset:{1024*k} lds") for k in range(4)] + \
               [(f"s_add_u32 m0, s33, {p*1152 + 128 - 32*p}", f"buffer_load_dwordx4 v10, s[12:15], s35 offen offset:{32*p} sc1 lds") for p in range(4)]
    def sh_dmas(m):
        return [(([f"s_lshl_b32 m0, s3, 14"] if k == 0 else ["s_add_u32 m0, m0, 4096", "s_add_u32 s51, s51, 4096"]) if k % 4 == 0 else [], f"buffer_load_dwordx4 v1, s[12:15], s51 offen offset:{(k%4)*1024} sc1 lds") for k in range(16)]
    def s2_pads(m): return [f"ds_write_b32 v11, v13 offset:{p*1152}" for p in range(4)] + [f"ds_write_b32 v12, v13 offset:{m.S2K}"]
    def s2(m, setup):
        a, name, o = m.a, m.n, m.o
        KB = m.S2K + 32
        VZ, VXX, VU, VB, VY_, VONE = 16, 17, 18, 19, 20, 21
        a("v_and_b32 v22, 15, v0", "v_lshrrev_b32 v23, 4, v0", f"v_lshl_add_u32 v{VU}, v22, 3, s33", f"v_lshl_add_u32 v{VZ}, v23, 4, v{VU}", f"v_lshl_add_u32 v{VU}, v23, 1, v{VU}",
          f"v_and_b32 v{VXX}, 3, v0", "v_bfe_u32 v24, v0, 2, 2", f"v_sub_u32 v{VXX}, v{VXX}, v24", "v_lshlrev_b32 v24, 3, v23", f"v_sub_u32 v{VXX}, v{VXX}, v24", f"v_add_u32 v{VXX}, 32, v{VXX}",
          f"v_lshl_add_u32 v{VXX}, v{VXX}, 3, s33",
          f"v_lshlrev_b32 v{VY_}, 5, v22", f"v_lshl_add_u32 v{VY_}, v23, 3, v{VY_}",
          "v_add_u32 v24, -1, v0", "v_and_b32 v24, 15, v24", "v_add_u32 v24, 48, v24", f"v_add_u32 v{VB}, -16, v0", "v_cmp_gt_u32 vcc, 16, v0", f"v_accvgpr_read_b32 v{VONE}, a245", f"s_add_u32 s34, s35, {WS_Y - WS_U}",
          f"v_cndmask_b32 v{VB}, v{VB}, v24, vcc", f"v_lshlrev_b32 v{VB}, 2, v{VB}", "v_cmp_eq_u32 vcc, 63, v0",
          "s_lshl_b32 s30, s31, 16", "s_and_b32 s31, s31, 0xffff0000", "s_bitcmp1_b32 s3, 0", "s_cselect_b32 s31, s31, s30")
        X = lambda n: Reg('v', 160 + 4 * n, 4)
        Z = lambda p, d: Reg('v', 12, 4) if (p, d) == (3, 15) else Reg('a', (p * 16 + d) * 4, 4)
        AC = lambda c, p: Reg('v', 32 + 16 * c + 4 * p, 4)
        T = lambda c, j: Reg('v', 224 + 8 * (c % 4) + j, 1); U = lambda c, r: Reg('v', 228 + 8 * (c % 4) + r, 1)
        for i in range(224, 256, 2): a(f"v_mov_b64 v[{i}:{i+1}], 0")
        lds = []
        for d in range(16):
            lds += [(f"ds_read_b64_tr_b16 {X(d)[2*e:2*e+2]}, v{VXX} offset:{KB - 64 + 256*d + 32*(1-e)}", X(d)[2*e:2*e+2]) for e in range(2)]
            if d % 2 == 1:
                lds += [(f"ds_read_b64 {Z(p,dd)[2*e:2*e+2]}, v{VZ} offset:{p*1152 + 8 + 64*dd + 8*e}", Z(p, dd)[2*e:2*e+2]) for p in range(4) for dd in (d, d - 1) for e in range(2)]
        N = 288; B = Body(N, cyclic=False)
        n = 0; endc = {}
        for c in range(8):
            for p in range(4):
                for k in range(2 * c + 2):
                    B.set_mfma(n, AC(c, p), X(k), Z(p, 2 * c - k + 1), 0 if k == 0 else AC(c, p)); n += 1
            endc[c] = n - 1
        PRE = 44
        a(f"s_waitcnt vmcnt({m.after_u}) lgkmcnt(0)")
        for k, (tx, r) in enumerate(lds[:PRE]):
            a(tx)
            if k % 8 == 7: a("s_waitcnt lgkmcnt(6)")
        a("s_waitcnt lgkmcnt(0)")
        m.mark("s2_go")
        for k, (tx, r) in enumerate(lds[PRE:]): B.put(k, 'd', tx, r)
        pub = o['s2pub']
        B.put(pub - 1, 's', "s_waitcnt vmcnt(0)"); B.put(pub, 's', "s_barrier"); B.putg(pub + 1, f"buffer_store_dword v{VONE}, v{VONE}, s[12:15], {sFCTX} offen sc1", "fl")
        if o['sh1']: a("v_lshlrev_b32 v22, 2, v22")
        if o['sh1']:
            B.putg(o['shb'] - 41, "buffer_load_dword v23, v22, s[12:15], s44 offen offset:64 sc1", "p0")
            t = o['shb']
            while B.pre[t] or B.pre[t + 1] or B.has(t, 'v'): t += 1
            B.vmwait(t, ["p0"]); B.put(t, 'v', "v_cmp_ne_u32 s[52:53], 0, v23")
            for x in ("s_cmp_eq_u64 s[52:53], 0", "s_cselect_b32 s49, 1, 0", "s_cselect_b32 s51, s37, 2.0"): B.put(t + 1, 's', x)
            for k, (sc, x) in enumerate(m.sh_dmas()):
                t += o['shstep'] if k else 4
                while B.has(t, 'g') or B.has(t, 'v') or B.pre[t] or (sc and (B.pre[t - 1] or B.pre[t - 2] or B.has(t - 1, 'g') or B.has(t - 2, 'g'))): t += 1
                B.putg(t, x, "sh")
                for j, y in enumerate(sc): B.put(t - 2 + j, 's', y)
        rest = []; tv = len(lds) - PRE - 30; td = len(lds) - PRE - 1
        for c in range(8):
            A0, A1, A2, A3 = (AC(c, p) for p in range(4))
            st1 = [f"v_add_f32 {A1[3]}, {A1[3]}, {A2[2]}", f"v_add_f32 {A2[3]}, {A2[3]}, {A3[2]}", f"v_add_f32 {A1[3]}, {A1[3]}, {A3[1]}"]
            st1 += [f"v_cndmask_b32_e64 {T(c,j)}, {AC(c,j+1)[3]}, {AC(c-1,j+1)[3] if c else 0}, vcc" for j in range(3)]
            ds = [(f"ds_bpermute_b32 {T(c,j)}, v{VB}, {T(c,j)}", T(c, j)) for j in range(3)] + [(f"ds_read_u16_d16_hi {U(c,r)}, v{VU} offset:{r*1152 + 128 + 128*c}", U(c, r)) for r in range(4)]
            st2 = [f"v_add_f32 {A0[1]}, {A0[1]}, {A1[0]}", f"v_add_f32 {A0[2]}, {A0[2]}, {A1[1]}", f"v_add_f32 {A0[3]}, {A0[3]}, {A1[2]}",
                   f"v_add_f32 {A0[2]}, {A0[2]}, {A2[0]}", f"v_add_f32 {A0[3]}, {A0[3]}, {A2[1]}", f"v_add_f32 {A0[3]}, {A0[3]}, {A3[0]}"]
            st3 = [(f"v_add_f32 {A0[j]}, {A0[j]}, {T(c,j)}", T(c, j)) for j in range(3)] + [(f"v_fmac_f32 {A0[r]}, s31, {U(c,r)}", U(c, r)) for r in range(4)]
            st4 = [f"v_cvt_pk_bf16_f32 {A0[0]}, {A0[0]}, {A0[1]}", f"v_cvt_pk_bf16_f32 {A0[1]}, {A0[2]}, {A0[3]}"]
            sto = f"buffer_store_dwordx2 {A0[0:2]}, v{VY_}, s[12:15], s34 offen offset:{512*c} sc1"
            if c < 7:
                tv = max(tv, endc[c] + 8)
                for x in st1: tv = B.place(tv, N, 'v', x)
                td = max(td, tv)
                for x, r in ds: td = B.place(td + 1, N, 'd', x, r)
                for x in st2: tv = B.place(tv, N, 'v', x)
                t3 = max(tv, td + 6)
                for x, r in st3: t3 = B.place(t3, N, 'v', x, None, r)
                for x in st4: t3 = B.place(t3, N, 'v', x)
                t3 = B.place(t3 + 1, N, 'g', sto)
                done3 = getattr(m, '_d3', {}); done3[c] = t3; m._d3 = done3
                if c >= 3: tv = max(tv, done3[c - 3])
            else: rest = ["s_nop 7"] + st1 + [x for x, r in ds] + st2 + ["s_waitcnt lgkmcnt(0)"] + [x for x, r in st3] + st4 + [sto]
        B.auto_lgkm(look=2, maxcnt=15)
        t = pub + 4
        for x in setup:
            if x.startswith("s_"):
                t += 1
                while B.pre[t] or B.has(t, 'g'): t += 1
                B.put(t, 's', x)
            else: t = B.place(t, N, 'v', x)
        if o['sh1']: ops = B.resolve_vm(); m.after_sh = len(ops) - 1 - max(i for i, x in enumerate(ops) if x == "sh") + 1
        print("s2 pattern:", B.pattern(), len(B.report()))
        a(*B.lines()); a(*rest)
        m.mark("s2_end")

    def fin_setup(m):
        a = m.a
        a("v_and_b32 v2, 15, v0", "v_lshlrev_b32 v11, 2, v2", "v_mul_u32_u24 v7, 896, v2", "v_lshrrev_b32 v3, 4, v0", "v_lshlrev_b32 v8, 4, v3", "v_lshl_add_u32 v2, v7, 1, v8", "v_add_u32 v7, v7, v8")
        a("v_and_b32 v4, 1, v0", "v_lshlrev_b32 v4, 4, v4", "v_mov_b32 v5, 0x3f80", "v_lshlrev_b32 v4, v4, v5",
          "v_bfe_u32 v5, v0, 3, 1", "v_bfe_u32 v6, v0, 1, 1", "v_lshl_add_u32 v5, v5, 1, v6",
          "v_bfe_u32 v6, v0, 2, 1", "v_lshlrev_b32 v6, 1, v6", "v_sub_u32 v6, v3, v6", "v_lshl_add_u32 v5, v6, 2, v5")
        for h in range(2):
            for k in range(4): a(f"v_cmp_eq_u32 s[{16+2*k}:{17+2*k}], {4*h+k}, v5")
            for k in range(4): a(f"v_cndmask_b32 v{24+4*h+k}, 0, v4, s[{16+2*k}:{17+2*k}]")
        srd(a, 8, pOut, 2048 * 1792); srd(a, 16, pAq, 2048 * 896)
        a("s_lshl_b32 s58, s3, 12", "s_add_u32 s58, s58, 0x20000", "s_mov_b32 s59, 0xffff0000",
          "v_lshrrev_b32 v8, 1, v0", f"v_mul_u32_u24 v8, {m.CS}, v8", "v_and_b32 v6, 1, v0", "v_lshl_add_u32 v8, v6, 4, v8",
          "v_lshlrev_b32 v10, 3, v3", "v_bfe_u32 v6, v0, 2, 2", "v_add_u32 v10, v10, v6", "v_lshlrev_b32 v10, 5, v10", "v_and_b32 v6, 3, v0", "v_lshl_add_u32 v10, v6, 3, v10",
          "v_add_u32 v10, s58, v10", "v_mov_b32 v5, 0x24000")
        if m.o['coal']:
            a("v_lshrrev_b32 v4, 2, v0", "v_lshl_add_u32 v11, v6, 4, v4", "v_lshlrev_b32 v11, 2, v11", "v_mul_u32_u24 v7, 896, v4", "v_lshlrev_b32 v6, 4, v6", "v_lshl_add_u32 v3, v7, 1, v6", "v_add_u32 v7, v7, v6")
            if m.o['coal'] == 2: a("v_mov_b32 v2, v3")
    def red_loads(m, sp, base, thr=0):
        for k in range(16):
            if thr and k >= thr: m.a(f"s_waitcnt vmcnt({thr-1})")
            m.a(f"buffer_load_dwordx4 a[{base+4*k}:{base+4*k+3}], v1, s[12:15], {sp} offen offset:{(k%4)*1024} sc1")
            if k % 4 == 3: m.a(f"s_add_u32 {sp}, {sp}, 4096")
    def red_sum(m, base, acc, younger=None):
        for h in range(16):
            if younger is not None: m.a(f"s_waitcnt vmcnt({15 - h + younger})")
            for f in range(2): m.a(mfma(Reg('v', acc + 4 * f, 4), Reg('v', 24 + 4 * f, 4), Reg('a', base + 4 * h, 4), Reg('v', acc + 4 * f, 4) if h else 0))
    def red_out(m, acc, so, off):
        for i in range(4): m.a(f"v_cvt_pk_bf16_f32 v{acc+i}, v{acc+2*i}, v{acc+2*i+1}")
        if m.o['coal'] == 2: m.a(*[f"ds_bpermute_b32 v{acc+i}, v11, v{acc+i}" for i in range(4)]); m.a("s_waitcnt lgkmcnt(0)")
        m.a(f"buffer_store_dwordx4 v[{acc}:{acc+3}], v2, s[8:11], {so} offen offset:{off} {m.o['outfl']}")

    tk = ["s_bfe_u32 s40, s2, 0x20003", "s_lshl_b32 s38, s40, 12", f"s_add_u32 s38, s38, {F_TK}"]
    def finish(m):
        if m.st.on: m.a("s_waitcnt vmcnt(0)")
        m.mark("drain"); m.st.store(m.a); m.a("s_endpgm")
    def end_a(m):
        a, name = m.a, m.n
        m.oproj(1)
        a(f"{name}_nossm:"); a(*m.tk)
        a("v_mov_b32 v12, 1", "buffer_atomic_add v12, v9, s[12:15], s38 offen sc0 sc1")
        m.fin_setup()
        a(f"s_branch {name}_pub")
    def end_b(m):
        a, name, o = m.a, m.n, m.o
        real = m.a; m.a = Asm(); m.fin_setup(); setup = m.a.L; m.a = real; tk = m.tk
        m.oproj(0)
        a("s_cmp_eq_u32 s62, 0", f"s_cbranch_scc1 {name}_nossm")
        m.s2(setup + tk + [f"s_lshl_b32 {sFCTX}, {sIDX}, 2", f"s_add_u32 {sFCTX}, {sFCTX}, {F_Y}"])
        a("v_mov_b32 v12, 1", "buffer_atomic_add v12, v9, s[12:15], s38 offen sc0 sc1")
        if o['sh1']:
            def shsum():
                for k in range(16): a(f"ds_read_b128 a[{64+4*k}:{67+4*k}], v13 offset:{1024*k}")
                for h in range(16):
                    a(f"s_waitcnt lgkmcnt({15-h})")
                    for f in range(2): a(mfma(Reg('v', 40 + 4 * f, 4), Reg('v', 24 + 4 * f, 4), Reg('a', 64 + 4 * h, 4), Reg('v', 40 + 4 * f, 4) if h else 0))
            a("s_lshl_b32 s47, s3, 14", "v_add_u32 v13, s47, v1", f"s_waitcnt vmcnt({m.after_sh + 1})"); shsum()
            a("s_waitcnt vmcnt(1)", "s_barrier", f"buffer_store_dword v9, v9, s[12:15], {sFCTX} offen sc1", "s_cmp_eq_u32 s49, 1", f"s_cbranch_scc1 {name}_havesh", "s_add_u32 s48, s44, 64")
            m.poll("s48", 16, 16, 17)
            a("s_mov_b32 s51, s37")
            for sc, x in m.sh_dmas(): a(*sc); a("s_nop 0", x)
            a("s_waitcnt vmcnt(0)"); shsum()
            a("s_nop 4", f"{name}_havesh:", "s_nop 2"); m.red_out(40, "s36", 896)
            a("s_waitcnt vmcnt(2)"); m.mark("pub"); a(f"s_branch {name}_job")
        a(f"{name}_pub:", "s_waitcnt vmcnt(1)", "s_barrier", f"buffer_store_dword v9, v9, s[12:15], {sFCTX} offen sc1", "s_waitcnt vmcnt(1)")
        m.mark("pub")
        a(f"{name}_job:", "s_cmp_lg_u32 s3, 0", f"s_cbranch_scc1 {name}_jobw", "s_mov_b64 exec, 1", "ds_write_b32 v5, v12", "s_mov_b64 exec, -1", "s_waitcnt lgkmcnt(0)",
          f"{name}_jobw:", "s_barrier", "ds_read_b32 v13, v5", "v_xor_b32 v5, 4, v5", "s_waitcnt lgkmcnt(0)", "v_readfirstlane_b32 s41, v13", "v_mov_b32 v12, 1", "s_nop 2",
          f"s_add_u32 s41, s41, {27 if o['sh1'] else -1}", f"s_cmp_ge_u32 s41, {84 if o['two'] else 140}", f"s_cbranch_scc0 {name}_jobgo")
        m.finish()
        a(f"{name}_jobgo:",
          "s_mul_i32 s42, s41, 2341", "s_lshr_b32 s42, s42, 16", "s_mul_i32 s43, s42, 28", "s_sub_u32 s41, s41, s43",
          "s_mul_i32 s43, s41, 37", "s_lshr_b32 s43, s43, 8", "s_mul_i32 s44, s43, 7", "s_sub_u32 s41, s41, s44",
          "s_lshl_b32 s43, s43, 2", "s_add_u32 s43, s43, s40",
          f"s_cmp_eq_u32 s42, {o['gkind']}", f"s_cbranch_scc1 {name}_gate")
        if o['two']: assert o['prog']; a("s_mov_b32 s50, 0")
        a(f"s_cmp_ge_u32 s42, {1 if o['two'] else 2}", "s_cselect_b32 s44, 16, 0", "s_add_u32 s43, s43, s44", f"s_lshr_b32 s44, {0 if o['two'] else 18}, s42", "s_and_b32 s44, s44, 1",
          "s_lshr_b32 s45, s43, 1", "s_lshl_b32 s45, s45, 1", "s_sub_u32 s45, s45, s44", "s_lshl_b32 s45, s45, 6", f"s_add_u32 s45, s45, {F_CTX + 64}",
          "s_mul_i32 s44, s44, 7", "s_add_u32 s41, s41, s44", "s_lshl_b32 s43, s43, 2", "s_add_u32 s43, s43, s3",
          "s_mul_i32 s37, s43, 14", "s_add_u32 s37, s37, s41", f"s_mul_i32 s37, s37, {m.PS}", f"s_add_u32 s37, s37, {WS_PP}",
          f"s_mul_i32 s36, s43, {16*1792}", "s_lshl_b32 s41, s41, 6", "s_add_u32 s36, s36, s41")
        if o['prog']: a(f"s_bitcmp0_b32 {o['progk']}, s42", f"s_cbranch_scc1 {name}_rn")
        NS = o['prog']
        if NS:
            a(f"{name}_rw:", "v_and_b32 v16, 15, v0", "v_lshlrev_b32 v16, 2, v16", "s_mov_b32 s48, 0", "s_mov_b32 s32, 0")
            a(*[f"v_mov_b64 v[{32+2*i}:{33+2*i}], 0" for i in range(4)])
            a(f"{name}_rp:", "buffer_load_dword v17, v16, s[12:15], s45 offen sc1", "s_add_u32 s32, s32, 1", "s_waitcnt vmcnt(0)", "v_cmp_eq_u32 vcc, 0, v17",
              "s_cmp_lt_u32 s32, 0x80000", "s_cselect_b32 s46, vcc_lo, -1", "s_and_b32 s46, s46, 0xffff", "s_andn2_b32 s46, s46, s48", f"s_cbranch_scc1 {name}_ri", f"s_sleep {o['sleep']}", f"s_branch {name}_rp",
              f"{name}_ri:", "s_or_b32 s47, s46, s48", "s_bcnt1_i32_b32 s49, s46", "s_cmp_eq_u32 s47, 0xffff", "s_cselect_b32 s49, s49, 99", *(["s_cmp_eq_u32 s50, 0", "s_cmov_b32 s49, 99"] if o['two'] else []), f"s_cmp_gt_u32 s49, {NS}", f"s_cbranch_scc1 {name}_rl",
              "buffer_atomic_add v12, v9, s[12:15], s38 offen sc0 sc1")
            m.mark("ctx_flag")
            a(f"{name}_rl:")
            for k in range(NS):
                a("s_ff1_i32_b32 s47, s46", "s_bitset0_b32 s46, s47", "s_bitset1_b32 s48, s47", "s_lshl_b32 s47, s47, 10", "s_add_u32 s47, s47, s37",
                  f"buffer_load_dwordx4 a[{4*k}:{4*k+3}], v1, s[12:15], s47 offen sc1")
                if k < NS - 1: a("s_cmp_eq_u32 s46, 0", f"s_cbranch_scc1 {name}_rs{k}")
            for k in range(NS - 1, -1, -1):
                a(f"{name}_rs{k}:", "s_waitcnt vmcnt(0)")
                for f in range(2): a(mfma(Reg('v', 32 + 4 * f, 4), Reg('v', 24 + 4 * f, 4), Reg('a', 4 * k, 4), Reg('v', 32 + 4 * f, 4)))
            a("s_cmp_lg_u32 s46, 0", f"s_cbranch_scc1 {name}_ri", "s_cmp_lg_u32 s48, 0xffff", f"s_cbranch_scc1 {name}_rp")
            m.mark("p4_loop"); a("s_nop 3"); m.red_out(32, "s36", 896)
            if o['two']: a("s_sub_u32 s45, s45, 64", f"s_add_u32 s37, s37, {7*m.PS}", "s_add_u32 s36, s36, 448", "s_xor_b32 s50, s50, 1", f"s_cbranch_scc1 {name}_rw")
            a(f"s_branch {name}_rd")
        a(f"{name}_rn:", "s_cmp_lg_u32 s3, 0", f"s_cbranch_scc1 {name}_rx")
        m.poll("s45", 16, 16, 17)
        a(f"{name}_rx:", "s_barrier"); m.mark("ctx_flag")
        if o['thrA']:
            a("s_cmp_eq_u32 s42, 4", f"s_cbranch_scc1 {name}_rf"); m.red_loads("s37", 0, o['thrA']); a(f"s_branch {name}_rg", f"{name}_rf:")
        m.red_loads("s37", 0); a(f"{name}_rg:", "buffer_atomic_add v12, v9, s[12:15], s38 offen sc0 sc1")
        m.red_sum(0, 32, 1); m.mark("p4_loop"); a("s_nop 7"); m.red_out(32, "s36", 896)
        a(f"{name}_rd:")
        a("s_waitcnt vmcnt(1)"); m.mark("p4_end"); a(f"s_branch {name}_job")
        a(f"{name}_gate:", "s_lshl_b32 s43, s43, 2", "s_add_u32 s43, s43, s3", f"s_mul_i32 s46, s43, {16*896}", "s_lshl_b32 s44, s41, 7", "s_lshl_b32 s47, s46, 1", "s_add_u32 s46, s46, s44", "s_add_u32 s47, s47, s44",
          f"s_add_u32 s54, s46, {1024*896}", f"s_add_u32 s55, s47, {1024*1792}")
        for k in range(4): a(f"buffer_load_dwordx4 v[{48+4*k}:{51+4*k}], v7, s[16:19], {'s54' if k >= 2 else 's46'} offen offset:{64*(k%2)}")
        a("s_lshl_b32 s56, s43, 5", f"s_mul_i32 s57, s41, {64*m.CS}", "s_add_u32 s56, s56, s57", f"s_add_u32 s56, s56, {WS_Y}", f"s_add_u32 s57, s56, {32*m.CS}",
          "s_lshl_b32 s45, s41, 6", f"s_add_u32 s45, s45, {F_Y}", "s_cmp_lg_u32 s3, 0", f"s_cbranch_scc1 {name}_gw")
        m.poll("s45", 16, 16, 17)
        a(f"{name}_gw:", "s_barrier"); m.mark("flag1")
        for k in range(4): a(f"s_add_u32 m0, s58, {1024*(k%2)}", "s_nop 0", f"buffer_load_dwordx4 v8, s[12:15], s{56+k%2} offen offset:{2048*(k//2)} sc1 lds")
        a("buffer_atomic_add v12, v9, s[12:15], s38 offen sc0 sc1", "s_waitcnt vmcnt(1)")
        for k in range(4):
            for e in range(2): a(f"ds_read_b64_tr_b16 v[{64+4*k+2*e}:{65+4*k+2*e}], v10 offset:{1024*k + 128*e}")
        if o['coal']:
            a("s_waitcnt lgkmcnt(0)"); a(*[f"ds_bpermute_b32 v{64+i}, v11, v{64+i}" for i in range(16)])
        for k in range(4):
            a(f"s_waitcnt lgkmcnt({12-4*k if o['coal'] else 6-2*k})")
            for i in range(4):
                q, y = 48 + 4 * k + i, 64 + 4 * k + i
                a(f"v_lshlrev_b32 v16, 16, v{q}", f"v_and_b32 v17, s59, v{q}", f"v_lshlrev_b32 v18, 16, v{y}", f"v_and_b32 v19, s59, v{y}",
                  "v_pk_mul_f32 v[16:17], v[16:17], v[18:19]", f"v_cvt_pk_bf16_f32 v{q}, v16, v17")
            a(f"buffer_store_dwordx4 v[{48+4*k}:{51+4*k}], v{3 if o['coal'] else 2}, s[8:11], {'s55' if k >= 2 else 's47'} offen offset:{64*(k%2)} {m.o['outfl']}")
        a("s_waitcnt vmcnt(4)"); m.mark("mid_end"); a(f"s_branch {name}_job")

def mega12(a, name, diag=False, **o):
    m = Mega(a, name, diag, **o)
    kernel_header(a, name)
    if o.get('rerun'): a("s_mov_b32 s97, 0")
    a("s_cmp_lt_u32 s2, 256", f"s_cbranch_scc1 {name}_go", "s_endpgm", f"{name}_go:")
    m.proj(); m.attn()
    a("s_endpgm", f"{name}_codeend:")
    return kernel_desc(name, denorm=m.o['denorm'])

def make(diag=False, **o):
    from build import build, NAME
    s = build([(NAME + "_kernel", mega12, 256, 163840, o)], diag=diag)
    if 'tag' in o: s += f"; instance {o['tag']}\n"
    return s.replace(f"; @launch kernel={NAME}_kernel grid", "; @launch grid").replace(NAME + "_kernel_", "L_")
if __name__ == "__main__":
    import sys, hazard
    s = make(diag=len(sys.argv) > 2)
    print("hazards", hazard.check(s))
    open(sys.argv[1] if len(sys.argv) > 1 else "mega.s", "w").write(s)
```
